```python
import torch

def _softmax(x, axis=-1):
    return torch.softmax(x, dim=axis)
def _gelu(x):
    return torch.nn.functional.gelu(x, approximate="tanh")
def _silu(x):
    return torch.nn.functional.silu(x)
def _sigmoid(x):
    return torch.sigmoid(x)
def _layernorm(x, axis=-1, eps=1e-5):
    m = x.mean(dim=axis, keepdim=True)
    v = x.var(dim=axis, keepdim=True, unbiased=False)
    return (x - m) / torch.sqrt(v + eps)
def _scatter_add(tgt, idx, src, axis=0):
    return tgt.clone().index_add_(axis, idx, src)
def _segment_sum(src, seg, n):
    out = torch.zeros((n,) + src.shape[1:], dtype=src.dtype)
    return out.index_add_(0, seg, src)
def _pad(x, pw):
    flat = tuple(v for pair in reversed(pw) for v in pair)
    return torch.nn.functional.pad(x, flat)

kernel_name = 'recurrent_scan__gqa_block_cached__mixer_token_mlp__prompt'

def setup_inputs():

    _w = (lambda a: (lambda t: t.to(torch.bfloat16) if t.is_floating_point() else t)(torch.as_tensor(a)))
    def _A_setup():
        B, Sq, D = 1, 2048, 512
        Hq, Hkv, Sk, Dh = 32, 8, 2048, 128
        assert Hq % Hkv == 0, (Hq, Hkv)
        return {
            "x": _w((lambda *s: torch.randn(*s, dtype=torch.bfloat16) * 0.05)(B, Sq, D)),
            "k_cache": _w((lambda *s: torch.randn(*s, dtype=torch.bfloat16) * 3.2)(B, Hkv, Sk, Dh)),
            "v_cache": _w((lambda *s: torch.randn(*s, dtype=torch.bfloat16) * 3.2)(B, Hkv, Sk, Dh)),
            "wq": _w((lambda *s: torch.randn(*s, dtype=torch.bfloat16) * 3.2)(D, Hq * Dh) * (D ** -0.5)),
            "wo": _w((lambda *s: torch.randn(*s, dtype=torch.bfloat16) * 3.2)(Hq * Dh, D) * ((Hq * Dh) ** -0.5)),
        }
    _A_in = _A_setup()

    def _B_setup():
        B, S, D, F = 1, 2048, 512, 1792
        return {
            "x": _w((lambda *s: torch.randn(*s, dtype=torch.bfloat16) * 0.05)(B, S, D)),
            "w1": _w((lambda *s: torch.randn(*s, dtype=torch.bfloat16) * 3.2)(S, F) * (S ** -0.5)),
            "b1": _w((lambda *s: torch.randn(*s, dtype=torch.bfloat16) * 3.2)(F) * 0.02),
            "w2": _w((lambda *s: torch.randn(*s, dtype=torch.bfloat16) * 0.4)(F, S) * (F ** -0.5)),
            "b2": _w((lambda *s: torch.randn(*s, dtype=torch.bfloat16) * 0.4)(S) * 0.02),
        }
    _B_in = _B_setup()

    return {
        "A_x": _A_in["x"],
        "A_k_cache": _A_in["k_cache"],
        "A_v_cache": _A_in["v_cache"],
        "A_wq": _A_in["wq"],
        "A_wo": _A_in["wo"],
        "B_x": _B_in["x"],
        "B_w1": _B_in["w1"],
        "B_b1": _B_in["b1"],
        "B_w2": _B_in["w2"],
        "B_b2": _B_in["b2"],
    }

def reference(A_x, A_k_cache, A_v_cache, A_wq, A_wo, B_x, B_w1, B_b1, B_w2, B_b2):
    def _A_ref(x, k_cache, v_cache, wq, wo):
        B, Sq, D = x.shape
        Hq, Dh = 32, 128
        Hkv = k_cache.shape[1]
        rep = Hq // Hkv
        q = (lambda x, *d: x.permute(*d))((x @ wq).reshape(B, Sq, Hq, Dh), 0, 2, 1, 3)
        k = (lambda x, n, axis: torch.repeat_interleave(x, n, dim=axis))(k_cache, rep, axis=1)
        v = (lambda x, n, axis: torch.repeat_interleave(x, n, dim=axis))(v_cache, rep, axis=1)
        scores = torch.einsum("bhqd,bhkd->bhqk", q, k) * (Dh ** -0.5)
        p = _softmax(scores, axis=-1)
        o = torch.einsum("bhqk,bhkd->bhqd", p, v)
        return (lambda x, *d: x.permute(*d))(o, 0, 2, 1, 3).reshape(B, Sq, Hq * Dh) @ wo

    def _B_ref(x, w1, b1, w2, b2):
        B, S, D = x.shape
        h = _layernorm(x, axis=-1)
        u = torch.einsum("bsd,sf->bdf", h, w1) + b1
        u = _gelu(u)
        y = torch.einsum("bdf,fs->bds", u, w2) + b2
        return (lambda x, *d: x.permute(*d))(y, 0, 2, 1)

    x = A_x
    xn = _layernorm(x, axis=-1)
    s = _A_ref(xn, A_k_cache, A_v_cache, A_wq, A_wo)
    g = _silu(_B_ref(xn, B_w1, B_b1, B_w2, B_b2))
    return x + s * g
```

```python
def vr(a, n=1):
    return f"v{a}" if n == 1 else f"v[{a}:{a+n-1}]"
def ar(a, n=1):
    return f"a{a}" if n == 1 else f"a[{a}:{a+n-1}]"
def sr(a, n=1):
    return f"s{a}" if n == 1 else f"s[{a}:{a+n-1}]"

class Em:
    def __init__(self):
        self.L = []
    def e(self, s):
        self.L.append("    " + s)
    def __call__(self, s):
        for line in s.strip("\n").split("\n"):
            line = line.strip()
            if not line:
                continue
            if line.endswith(":") and " " not in line:
                self.L.append(line)
            else:
                self.L.append("    " + line)
    def lab(self, s):
        self.L.append(s + ":")
    def c(self, s):
        self.L.append("    ; " + s)
    def text(self):
        return "\n".join(self.L) + "\n"

def srd(k, d, base_lo, base_hi, size):
    k.e(f"s_mov_b32 s{d}, s{base_lo}")
    k.e(f"s_mov_b32 s{d+1}, s{base_hi}")
    k.e(f"s_mov_b32 s{d+2}, {size}")
    k.e(f"s_mov_b32 s{d+3}, 0x00020000")

def srd_off(k, d, base_lo, base_hi, off, size):
    k.e(f"s_add_u32 s{d}, s{base_lo}, {off}")
    k.e(f"s_addc_u32 s{d+1}, s{base_hi}, 0")
    k.e(f"s_mov_b32 s{d+2}, {size}")
    k.e(f"s_mov_b32 s{d+3}, 0x00020000")

def kernel_header(name):
    return f""".globl {name}
.p2align 8
.type {name},@function
{name}:
"""

def kernel_desc(name, vgpr, sgpr, accum):
    return f""".amdhsa_kernel {name}
  .amdhsa_next_free_vgpr {vgpr}
  .amdhsa_next_free_sgpr {sgpr}
  .amdhsa_accum_offset {accum}
  .amdhsa_group_segment_fixed_size 0
  .amdhsa_kernarg_size 104
  .amdhsa_user_sgpr_count 2
  .amdhsa_user_sgpr_kernarg_segment_ptr 1
  .amdhsa_system_sgpr_workgroup_id_x 1
.end_amdhsa_kernel
"""

XNF_OFF  = 0
HF_OFF   = 2 << 20
UF_OFF   = 4 << 20
SLAB_OFF = 8 << 20
WS_SIZE  = 268435456

KA_X, KA_K, KA_V, KA_WQ, KA_WO, KA_BX, KA_W1, KA_B1, KA_W2, KA_B2, KA_OUT, KA_DBG, KA_WS = [8*i for i in range(13)]

class Ctr:
    def __init__(self, maxv):
        self.q = []
        self.maxv = maxv
    def issue(self, tag):
        self.q.append(tag)
    def need(self, pred):
        last = -1
        for i, t in enumerate(self.q):
            if pred(t):
                last = i
        if last < 0:
            return None
        n = len(self.q) - 1 - last
        self.q = self.q[last+1:]
        return min(n, self.maxv)
    def drain(self):
        self.q = []

def bf16_round_pair(k, dst_pk, a, b):
    k.e(f"v_cvt_pk_bf16_f32 v{dst_pk}, v{a}, v{b}")

def wave_allreduce_add(k, x, t):
    k.e("s_nop 1")
    k.e(f"v_add_f32_dpp v{x}, v{x}, v{x} quad_perm:[1,0,3,2] row_mask:0xf bank_mask:0xf")
    k.e("s_nop 1")
    k.e(f"v_add_f32_dpp v{x}, v{x}, v{x} quad_perm:[2,3,0,1] row_mask:0xf bank_mask:0xf")
    k.e("s_nop 1")
    k.e(f"v_add_f32_dpp v{x}, v{x}, v{x} row_half_mirror row_mask:0xf bank_mask:0xf")
    k.e("s_nop 1")
    k.e(f"v_add_f32_dpp v{x}, v{x}, v{x} row_mirror row_mask:0xf bank_mask:0xf")
    k.e(f"v_mov_b32 v{t}, v{x}")
    k.e("s_nop 1")
    k.e(f"v_permlane16_swap_b32 v{t}, v{x}")
    k.e(f"v_add_f32 v{x}, v{x}, v{t}")
    k.e(f"v_mov_b32 v{t}, v{x}")
    k.e("s_nop 1")
    k.e(f"v_permlane32_swap_b32 v{t}, v{x}")
    k.e(f"v_add_f32 v{x}, v{x}, v{t}")
```

```python
from common import *
import struct, math
def f2h(x):
    return "0x%08x" % struct.unpack("<I", struct.pack("<f", x))[0]

S0, S1 = 16, 48
NEGM = 80
P0, P1 = 112, 128
QF = 144
ET = 208
LS = 216
LL = 220
KA = 222
VA = 230
DK = 234
DV = 238
WA = 240
XA = 244
DW = 245
T0 = 1
PACC = 16
OA = 0
KF = 128
VF = 144
WF = 128
XF = 160
KRING, VRING, SPARE = 0, 65536, 131072
XT = 65536
S_G, S_RB, S_W = 40, 41, 42
S_KOFF, S_VOFF = 43, 44
S_M0K, S_M0V = 45, 46
S_WOFF, S_WRING = 47, 48
S_THR = 49
S_CNT = 50
S_RET = 52
SRD_K, SRD_V, SRD_WQ, SRD_WO, SRD_X, SRD_SL = 16, 20, 24, 28, 32, 36
THR_LOG2 = 60

def Sbuf(p, qb): return (S0 if p == 0 else S1) + 16 * qb
def Pbuf(p, qb, ks): return (P0 if p == 0 else P1) + 8 * qb + 4 * ks

def mfma(d, a, b, c, dfile='v', afile='a', bfile='v'):
    cs = c if isinstance(c, str) else f"{dfile}[{c}:{c+15}]"
    return f"v_mfma_f32_32x32x16_bf16 {dfile}[{d}:{d+15}], {afile}[{a}:{a+3}], {bfile}[{b}:{b+3}], {cs}"

def k_read(unit, t, ring_i):
    tile = unit >> 1
    off = (tile & 3) * 16384 + (unit & 1) * 8192
    d = KF + (ring_i & 3) * 4
    return [f"ds_read_b128 a[{d}:{d+3}], v{KA+t} offset:{off}"]

def v_read(unit, i, ring_i):
    tile = unit >> 1
    db, ks = i >> 1, i & 1
    off = (tile & 3) * 16384 + (unit & 1) * 8192 + ks * 4096
    d = VF + (ring_i & 3) * 4
    return [f"ds_read_b64_tr_b16 a[{d}:{d+1}], v{VA+db} offset:{off}",
            f"ds_read_b64_tr_b16 a[{d+2}:{d+3}], v{VA+db} offset:{off+2048}"]

def softmax_ops(p):
    ex, ad, cv = [], [], []
    for n in range(32):
        qb, r = n >> 4, n & 15
        e = ET + (n & 7)
        ex.append(f"v_exp_f32 v{e}, v{Sbuf(p,qb)+r}")
        ls = LS + 2 * p + qb
        if r == 0:
            ad.append(None)
        elif r == 1:
            ad.append(f"v_add_f32 v{ls}, v{ET+((n-1)&7)}, v{e}")
        else:
            ad.append(f"v_add_f32 v{ls}, v{ls}, v{e}")
        if r & 1:
            cv.append(f"v_cvt_pk_bf16_f32 v{Pbuf(p,qb,r>>3)+((r&7)>>1)}, v{ET+((n-1)&7)}, v{e}")
        else:
            cv.append(None)
    return ex, ad, cv

EXP_GAP = []
def _mk():
    g = 0; n = 0
    while n < 32:
        EXP_GAP.append(g); n += 1
        if g in (3, 7):
            EXP_GAP.append(g); n += 1
        g += 1
_mk()

def gen_step(k, u, do_qk=True, do_pv=True, do_sm=True, look=None, dma=None, pre=None, rare_id=None, prev_l=True, extra=None):
    p = u & 1
    gaps = [[] for _ in range(32)]
    for i in range(8):
        rd = look(i)
        nread = len(rd)
        for j, ins in enumerate(rd):
            gaps[4 * i + min(j, 2)].append(ins)
    if do_sm:
        ex, ad, cv = softmax_ops(p)
        for n in range(32):
            g = EXP_GAP[n]
            gaps[g].append(ex[n])
        for n in range(32):
            g = EXP_GAP[n] + 1
            if ad[n]: gaps[g].append(ad[n])
            if cv[n]: gaps[g].append(cv[n])
        gaps[31].insert(0, f"v_max_f32 v{T0}, v{LS+2*p}, v{LS+2*p+1}")
        gaps[31].append(f"v_cmp_lt_f32 vcc, s{S_THR}, v{T0}")
    if prev_l:
        pp = 1 - p
        gaps[1].append(f"v_add_f32 v{LL}, v{LL}, v{LS+2*pp}")
        gaps[2].append(f"v_add_f32 v{LL+1}, v{LL+1}, v{LS+2*pp+1}")
    if dma:
        for g, lst in dma.items():
            gaps[g] += lst
    if pre:
        for ins in pre: k.e(ins)
    for g in range(32):
        i, sub = g >> 2, g & 3
        if sub == 0:
            k.e(f"s_waitcnt lgkmcnt({look.outstanding(i)})")
        ins = None
        if sub < 2 and do_qk:
            qb = sub
            d = Sbuf(1 - p, qb)
            c = (NEGM + 16 * qb) if i == 0 else d
            ins = mfma(d, KF + (i & 3) * 4, QF + qb * 32 + i * 4, c)
        elif sub >= 2 and do_pv:
            qb = sub - 2
            db, ks = i >> 1, i & 1
            d = OA + (db * 2 + qb) * 16
            ins = mfma(d, VF + (i & 3) * 4, Pbuf(1 - p, qb, ks), d, dfile='a')
        if ins: k.e(ins)
        for f in gaps[g]: k.e(f)
    if do_sm:
        k.e(f"s_cbranch_vccnz L_rare_{rare_id}")
        k.lab(f"L_back_{rare_id}")

class Look:
    def __init__(self, u, qk_this=True, pv_this=True, qk_next=True, pv_next=True):
        self.u = u; self.qk_this = qk_this; self.pv_this = pv_this; self.qk_next = qk_next; self.pv_next = pv_next
        self.prev_counts = None
    def __call__(self, i):
        u = self.u
        out = []
        j = i + 2
        if j < 8:
            if self.qk_this: out += k_read(u + 1, j, j)
            if self.pv_this: out += v_read(u - 1, j, j)
        else:
            if self.qk_next: out += k_read(u + 2, j - 8, j)
            if self.pv_next: out += v_read(u, j - 8, j)
        return out
    def count(self, i):
        return len(self(i))
    def outstanding(self, i):
        if i == 0:
            return self.prev7
        return self.count(i - 1)

def gen_rare(k, p):
    k.lab(f"L_raresub_{p}")
    k.e("s_nop 15")
    k.e("s_nop 7")
    for qb in range(2):
        S = Sbuf(p, qb); SN = Sbuf(1 - p, qb)
        t, t2, f = T0, T0 + 1, T0 + 2
        k.e(f"v_max3_f32 v{t}, v{S}, v{S+1}, v{S+2}")
        for r in range(3, 15, 2):
            k.e(f"v_max3_f32 v{t}, v{t}, v{S+r}, v{S+r+1}")
        k.e(f"v_max_f32 v{t}, v{t}, v{S+15}")
        k.e(f"v_mov_b32 v{t2}, v{t}")
        k.e("s_nop 1")
        k.e(f"v_permlane32_swap_b32 v{t2}, v{t}")
        k.e(f"v_max3_f32 v{t}, v{t}, v{t2}, 0")
        k.e(f"v_exp_f32 v{f}, -v{t}")
        k.e("s_nop 0")
        k.e(f"v_mul_f32 v{LL+qb}, v{LL+qb}, v{f}")
        for db in range(4):
            for r in range(16):
                a = OA + (db * 2 + qb) * 16 + r
                k.e(f"v_accvgpr_read_b32 v{T0+3+(r&3)}, a{a}")
                k.e(f"v_mul_f32 v{T0+3+(r&3)}, v{T0+3+(r&3)}, v{f}")
                k.e(f"v_accvgpr_write_b32 a{a}, v{T0+3+(r&3)}")
        for r in range(16):
            k.e(f"v_sub_f32 v{NEGM+16*qb+r}, v{NEGM+16*qb+r}, v{t}")
            k.e(f"v_sub_f32 v{SN+r}, v{SN+r}, v{t}")
            k.e(f"v_sub_f32 v{S+r}, v{S+r}, v{t}")
        ls = LS + 2 * p + qb
        for r in range(0, 16, 2):
            k.e(f"v_exp_f32 v{ET}, v{S+r}")
            k.e(f"v_exp_f32 v{ET+1}, v{S+r+1}")
            k.e("s_nop 0")
            if r == 0:
                k.e(f"v_add_f32 v{ls}, v{ET}, v{ET+1}")
            else:
                k.e(f"v_add_f32 v{ls}, v{ls}, v{ET}")
                k.e(f"v_add_f32 v{ls}, v{ls}, v{ET+1}")
            k.e(f"v_cvt_pk_bf16_f32 v{Pbuf(p,qb,r>>3)+((r&7)>>1)}, v{ET}, v{ET+1}")
    k.e("s_nop 1")
    k.e(f"s_setpc_b64 s[{S_RET}:{S_RET+1}]")

def gen_proj(k, tag, srd, RS, natural, dma_pre_issued):
    bp_off = 1024 if natural else 2048
    def dma(t):
        out = [f"s_add_u32 m0, s{S_WRING}, {(t&3)*4096}"]
        for i in range(4):
            if i == 0:
                out.append("s_nop 0")
                out.append(f"buffer_load_dwordx4 v{DW}, s[{srd}:{srd+3}], s{S_WOFF} offen lds")
            else:
                out.append(f"s_add_u32 s{S_WOFF}, s{S_WOFF}, {4*RS-1024}")
                out.append(f"buffer_load_dwordx4 v{DW}, s[{srd}:{srd+3}], s{S_WOFF} offen offset:{1024*i} lds")
        out.append(f"s_add_u32 s{S_WOFF}, s{S_WOFF}, {4*RS+3072}")
        return out
    def reads(t, tt):
        st = t & 1
        out = []
        for qb in range(2):
            d = XF + st * 8 + qb * 4
            out.append(f"ds_read_b128 a[{d}:{d+3}], v{XA} offset:{tt*2048 + qb*1024}")
        for db in range(4):
            for bp in range(2):
                d = WF + st * 16 + db * 4 + bp * 2
                out.append(f"ds_read_b64_tr_b16 a[{d}:{d+1}], v{WA+db} offset:{(t&3)*4096 + bp*bp_off}")
        return out
    def kstep(t_in_body, first, do_read_next, do_dma, vmn):
        t = t_in_body
        st = t & 1
        k.e(f"s_waitcnt vmcnt({vmn}) lgkmcnt(0)")
        rd = reads(t + 1, t + 1) if do_read_next else []
        dm = dma(t) if do_dma else []
        fill = [[] for _ in range(8)]
        for j, ins in enumerate(rd):
            fill[j // 2].append(ins)
        per = [dm[0:3], dm[3:5], dm[5:7], dm[7:]] if dm else [[], [], [], []]
        for j in range(4):
            fill[4 + j] += per[j]
        for db in range(4):
            for qb in range(2):
                d = PACC + (db * 2 + qb) * 16
                c = "0" if first else d
                k.e(mfma(d, WF + st * 16 + db * 4, XF + st * 8 + qb * 4, c, dfile='v', afile='a', bfile='a'))
                for f in fill[db * 2 + qb]: k.e(f)
    if not dma_pre_issued:
        for t in range(4):
            for ins in dma(t): k.e(ins)
    k.e("s_waitcnt vmcnt(12)")
    for ins in reads(0, 0): k.e(ins)
    for t in range(4):
        kstep(t, t == 0, True, True, 8)
    k.e(f"v_add_u32 v{XA}, 8192, v{XA}")
    k.e(f"s_mov_b32 s{S_CNT}, 6")
    k.lab(f"L_proj_{tag}")
    for t in range(4):
        kstep(t, False, True, True, 8)
    k.e(f"v_add_u32 v{XA}, 8192, v{XA}")
    k.e(f"s_sub_u32 s{S_CNT}, s{S_CNT}, 1")
    k.e(f"s_cmp_lg_u32 s{S_CNT}, 0")
    k.e(f"s_cbranch_scc1 L_proj_{tag}")
    for t in range(4):
        kstep(t, False, t < 3, False, [8, 4, 0, 0][t])

def gen_attn(name="attn_kernel", debug=None):
    k = Em()
    k.L.append(kernel_header(name))
    cscale = math.log2(math.e) / math.sqrt(128.0)
    k(f"""
    s_cmp_ge_u32 s2, 256
    s_cbranch_scc1 L_at_done
    s_load_dwordx2 s[4:5], s[0:1], {KA_K}
    s_load_dwordx2 s[6:7], s[0:1], {KA_V}
    s_load_dwordx2 s[8:9], s[0:1], {KA_WQ}
    s_load_dwordx2 s[10:11], s[0:1], {KA_WO}
    s_load_dwordx2 s[12:13], s[0:1], {KA_WS}
    v_lshrrev_b32 v1, 6, v0
    v_and_b32 v0, 63, v0
    s_and_b32 s{S_G}, s2, 7
    v_readfirstlane_b32 s{S_W}, v1
    s_lshr_b32 s{S_RB}, s2, 3
    s_lshl_b32 s14, s{S_G}, 19          ; g*524288
    s_lshl_b32 s15, s{S_RB}, 16         ; rb*65536
    s_lshl_b32 s3, s{S_G}, 21           ; g*2MB
    s_add_u32 s3, s3, {SLAB_OFF}
    s_waitcnt lgkmcnt(0)
    """)
    srd_off(k, SRD_K, 4, 5, "s14", 524288)
    srd_off(k, SRD_V, 6, 7, "s14", 524288)
    srd(k, SRD_WQ, 8, 9, 4194304)
    srd(k, SRD_WO, 10, 11, 4194304)
    srd_off(k, SRD_X, 12, 13, "s15", 65536)
    srd_off(k, SRD_SL, 12, 13, "s3", 2097152)
    k(f"""
    v_lshrrev_b32 v1, 4, v0             ; l>>4 (0..3)
    v_and_b32 v2, 15, v0                ; p = l&15
    ; DV: (l>>4)*256 + ((p ^ ((l>>4)<<2))*16)
    v_lshlrev_b32 v3, 2, v1
    v_xor_b32 v3, v2, v3
    v_lshlrev_b32 v3, 4, v3
    v_lshl_add_u32 v{DV}, v1, 8, v3
    v_lshl_add_u32 v{DW}, v1, 13, v3
    """)
    for i in range(4):
        k(f"""
        v_add_u32 v4, {4*i}, v1
        v_xor_b32 v4, v2, v4
        v_lshlrev_b32 v4, 4, v4
        v_lshl_add_u32 v{DK+i}, v1, 8, v4
        """)
    k(f"""
    v_and_b32 v4, 31, v0
    v_lshrrev_b32 v5, 5, v0             ; hf
    v_xor_b32 v6, v5, v2
    v_lshlrev_b32 v7, 8, v4
    """)
    for t in range(8):
        k.e(f"v_xor_b32 v8, {2*t}, v6")
        k.e(f"v_lshl_add_u32 v{KA+t}, v8, 4, v7")
    k(f"""
    v_bfe_u32 v8, v0, 2, 2              ; r
    v_bfe_u32 v9, v0, 4, 1              ; csub
    v_and_b32 v10, 3, v0                ; c
    v_lshl_add_u32 v11, v5, 2, v8       ; 4hf + r
    v_lshlrev_b32 v11, 8, v11
    v_lshl_add_u32 v11, v9, 5, v11
    v_lshl_add_u32 v12, v10, 3, v11
    """)
    for db in range(4):
        k.e(f"v_xor_b32 v13, {db}, v8")
        k.e(f"v_lshl_add_u32 v13, v13, 6, v12")
        k.e(f"v_add_u32 v{VA+db}, {VRING}, v13")
    k(f"""
    s_and_b32 s14, s{S_W}, 1
    s_lshl_b32 s14, s14, 14
    s_lshr_b32 s15, s{S_W}, 1
    s_mul_i32 s15, s15, {131072-32768}
    s_add_u32 s{S_WRING}, s14, s15
    s_add_u32 s{S_WRING}, s{S_WRING}, 32768
    v_lshl_add_u32 v11, v5, 3, v8
    v_lshlrev_b32 v11, 8, v11
    v_lshl_add_u32 v11, v9, 5, v11
    v_and_b32 v13, 1, v10
    v_lshrrev_b32 v14, 1, v10
    v_lshl_or_b32 v13, v13, 1, v14      ; sigma(c)
    v_lshl_add_u32 v11, v13, 3, v11
    v_add_u32 v11, s{S_WRING}, v11
    """)
    for db in range(4):
        k.e(f"v_xor_b32 v13, {db}, v8")
        k.e(f"v_lshl_add_u32 v{WA+db}, v13, 6, v11")
    k(f"""
    v_lshlrev_b32 v15, 4, v0            ; lane*16
    v_add_u32 v{XA}, {XT}, v15
    s_lshl_b32 s14, s{S_W}, 14
    s_add_u32 m0, s14, {XT}
    s_nop 0
    """)
    for c4 in range(4):
        for i in range(4):
            so = "s14"
            k.e(f"buffer_load_dwordx4 v15, s[{SRD_X}:{SRD_X+3}], s14 offen offset:{1024*i} lds")
        if c4 < 3:
            k.e("s_add_u32 s14, s14, 4096")
            k.e("s_add_u32 m0, m0, 4096")
            k.e("s_nop 0")
    k(f"""
    s_lshl_b32 s14, s{S_G}, 2
    s_add_u32 s14, s14, s{S_W}
    s_lshl_b32 s{S_WOFF}, s14, 8
    """)
    def wdma(t, srd, RS):
        out = [f"s_add_u32 m0, s{S_WRING}, {(t&3)*4096}"]
        for i in range(4):
            if i == 0:
                out.append("s_nop 0")
                out.append(f"buffer_load_dwordx4 v{DW}, s[{srd}:{srd+3}], s{S_WOFF} offen lds")
            else:
                out.append(f"s_add_u32 s{S_WOFF}, s{S_WOFF}, {4*RS-1024}")
                out.append(f"buffer_load_dwordx4 v{DW}, s[{srd}:{srd+3}], s{S_WOFF} offen offset:{1024*i} lds")
        out.append(f"s_add_u32 s{S_WOFF}, s{S_WOFF}, {4*RS+3072}")
        return out
    k(f"""
    s_lshl_b32 s{S_KOFF}, s{S_W}, 12          ; w*4096
    s_mov_b32 s{S_M0K}, s{S_KOFF}
    s_add_u32 s{S_M0V}, s{S_KOFF}, {VRING}
    s_mov_b32 s{S_VOFF}, s{S_KOFF}
    """)
    def kdma(slot):
        out = [f"s_add_u32 m0, s{S_M0K}, {slot*16384}", "s_nop 0"]
        for i in range(4):
            out.append(f"buffer_load_dwordx4 v{DK+i}, s[{SRD_K}:{SRD_K+3}], s{S_KOFF} offen offset:{1024*i} lds")
        out.append(f"s_add_u32 s{S_KOFF}, s{S_KOFF}, 16384")
        return out
    def vdma(slot):
        out = [f"s_add_u32 m0, s{S_M0V}, {slot*16384}", "s_nop 0"]
        for i in range(4):
            out.append(f"buffer_load_dwordx4 v{DV}, s[{SRD_V}:{SRD_V+3}], s{S_VOFF} offen offset:{1024*i} lds")
        out.append(f"s_add_u32 s{S_VOFF}, s{S_VOFF}, 16384")
        return out
    for ins in kdma(0) + kdma(1): k.e(ins)
    for t in range(4):
        for ins in wdma(t, SRD_WQ, 8192): k.e(ins)
    k.e("s_waitcnt vmcnt(16)")
    k.e("s_barrier")
    gen_proj(k, "q", SRD_WQ, 8192, True, True)
    k("""
    s_waitcnt vmcnt(0) lgkmcnt(0)
    s_barrier
    """)
    for ins in vdma(0) + kdma(2) + vdma(1): k.e(ins)
    k.e(f"s_mov_b32 s14, {f2h(cscale)}")
    k.e(f"s_mov_b32 s15, {f2h(cscale)}")
    k.e("s_nop 7")
    for db in range(4):
        for qb in range(2):
            a = PACC + (db * 2 + qb) * 16
            for r in range(0, 16, 2):
                k.e(f"v_pk_mul_f32 v[{a+r}:{a+r+1}], v[{a+r}:{a+r+1}], s[14:15]")
            for r in range(0, 16, 2):
                q = QF + qb * 32 + (2 * db + (r >> 3)) * 4 + ((r & 7) >> 1)
                k.e(f"v_cvt_pk_bf16_f32 v{q}, v{a+r}, v{a+r+1}")
    if debug == "q":
        k(f"""
        s_lshl_b32 s14, s{S_RB}, 2
        s_add_u32 s14, s14, s{S_W}
        s_mul_i32 s14, s14, 16384
        v_lshlrev_b32 v1, 2, v0
        """)
        for i in range(64):
            k.e(f"buffer_store_dword v{QF+i}, v1, s[{SRD_SL}:{SRD_SL+3}], s14 offen offset:{(i&15)*256}")
            if (i & 15) == 15: k.e("s_add_u32 s14, s14, 4096")
        k.e("s_waitcnt vmcnt(0)")
        k.e("s_endpgm")
    for t in range(4):
        for ins in k_read(0, t, t): k.e(ins)
    for t in range(8):
        k.e(f"s_waitcnt lgkmcnt({min(3, 7-t)})")
        for qb in range(2):
            d = Sbuf(0, qb)
            k.e(mfma(d, KF + (t & 3) * 4, QF + qb * 32 + t * 4, "0" if t == 0 else d))
        if t + 4 < 8:
            for ins in k_read(0, t + 4, t + 4): k.e(ins)
    for i in range(128):
        k.e(f"v_accvgpr_write_b32 a{OA+i}, 0")
    k.e(f"v_mov_b32 v{LL}, 0")
    k.e(f"v_mov_b32 v{LL+1}, 0")
    k.e(f"v_mov_b32 v{LS+2}, 0")
    k.e(f"v_mov_b32 v{LS+3}, 0")
    k.e(f"s_mov_b32 s{S_THR}, {f2h(2.0**THR_LOG2)}")
    for qb in range(2):
        S = Sbuf(0, qb)
        t, t2 = T0, T0 + 1
        k.e(f"v_max3_f32 v{t}, v{S}, v{S+1}, v{S+2}")
        for r in range(3, 15, 2):
            k.e(f"v_max3_f32 v{t}, v{t}, v{S+r}, v{S+r+1}")
        k.e(f"v_max_f32 v{t}, v{t}, v{S+15}")
        k.e(f"v_mov_b32 v{t2}, v{t}")
        k.e("s_nop 1")
        k.e(f"v_permlane32_swap_b32 v{t2}, v{t}")
        k.e(f"v_max_f32 v{t}, v{t}, v{t2}")
        for r in range(16):
            k.e(f"v_sub_f32 v{S+r}, v{S+r}, v{t}")
            k.e(f"v_sub_f32 v{NEGM+16*qb+r}, 0, v{t}")
    k.e("s_waitcnt vmcnt(8)")
    k.e("s_barrier")
    for ins in k_read(1, 0, 0) + k_read(1, 1, 1): k.e(ins)
    rare_sites = []
    def dma_plan(lst):
        return {8: [lst[0]], 11: [lst[2]], 15: [lst[3]], 19: [lst[4]], 23: [lst[5]], 27: [lst[6]]}
    def step(u, rid, **kw):
        S = dict(do_qk=True, do_pv=True, qk_next=True, pv_next=True, dma=None, pre=None, prev7=3)
        S.update(kw)
        lk = Look(u, S['do_qk'], S['do_pv'], S['qk_next'], S['pv_next'])
        lk.prev7 = S['prev7']
        gen_step(k, u, S['do_qk'], S['do_pv'], True, lk, S['dma'], S['pre'], rid)
        rare_sites.append((rid, u & 1))
    step(0, "s0", do_pv=False, dma=dma_plan(kdma(3)), prev7=1)
    k.e(f"s_mov_b32 s{S_CNT}, 7")
    k.lab("L_main")
    for uu in range(1, 9):
        j = uu >> 1
        pre = None
        if uu & 1 == 0:
            pre = ["s_waitcnt vmcnt(8)", "s_barrier"]
            dm = dma_plan(kdma((j + 3) & 3))
        else:
            dm = dma_plan(vdma((j + 2) & 3))
        step(uu, f"m{uu}", dma=dm, pre=pre)
    k.e(f"s_sub_u32 s{S_CNT}, s{S_CNT}, 1")
    k.e(f"s_cmp_lg_u32 s{S_CNT}, 0")
    k.e(f"s_cbranch_scc1 L_main")
    step(57, "t57", dma=dma_plan(vdma((28 + 2) & 3)))
    step(58, "t58", pre=["s_waitcnt vmcnt(8)", "s_barrier"])
    step(59, "t59", dma=dma_plan(vdma((29 + 2) & 3)))
    step(60, "t60", pre=["s_waitcnt vmcnt(4)", "s_barrier"])
    step(61, "t61")
    step(62, "t62", pre=["s_waitcnt vmcnt(0)", "s_barrier"], qk_next=False)
    step(63, "t63", do_qk=False, qk_next=False, prev7=2)
    p = 63 & 1
    k.e(f"v_add_f32 v{LL}, v{LL}, v{LS+2*p}")
    k.e(f"v_add_f32 v{LL+1}, v{LL+1}, v{LS+2*p+1}")
    for i in range(8):
        nxt = v_read(63, i + 2, i + 2) if i + 2 < 8 else []
        prevn = 2 if (i == 0 or i + 1 < 8) else 0
        k.e(f"s_waitcnt lgkmcnt({prevn})")
        db, ks = i >> 1, i & 1
        for qb in range(2):
            d = OA + (db * 2 + qb) * 16
            k.e(mfma(d, VF + (i & 3) * 4, Pbuf(p, qb, ks), d, dfile='a'))
            if qb == 0:
                for ins in nxt: k.e(ins)
    k(f"""
    s_waitcnt lgkmcnt(0)
    s_barrier
    s_lshl_b32 s{S_WRING}, s{S_W}, 14
    v_lshrrev_b32 v1, 4, v0
    v_mul_u32_u24 v1, {1024-256}, v1
    v_add_u32 v{DW}, v{DV}, v1
    ; soffset = g*512*1024 + w*256
    s_lshl_b32 s{S_WOFF}, s{S_G}, 19
    s_lshl_b32 s14, s{S_W}, 8
    s_add_u32 s{S_WOFF}, s{S_WOFF}, s14
    """)
    for t in range(4):
        for ins in wdma(t, SRD_WO, 1024): k.e(ins)
    k.e(f"s_sub_u32 s14, s{S_WRING}, {VRING}")
    for db in range(4):
        k.e(f"v_add_u32 v{WA+db}, s14, v{VA+db}")
    for qb in range(2):
        k.e(f"v_mov_b32 v{T0+qb}, v{LL+qb}")
    k.e("s_nop 1")
    for qb in range(2):
        k.e(f"v_permlane32_swap_b32 v{T0+qb}, v{LL+qb}")
    for qb in range(2):
        k.e(f"v_add_f32 v{LL+qb}, v{LL+qb}, v{T0+qb}")
    for qb in range(2):
        k.e(f"v_rcp_f32 v{LL+qb}, v{LL+qb}")
    k(f"""
    s_lshl_b32 s14, s{S_W}, 14
    s_add_u32 s14, s14, {XT}
    v_lshlrev_b32 v15, 4, v0
    v_add_u32 v14, s14, v15
    v_add_u32 v{XA}, {XT}, v15
    """)
    for db in range(4):
        for qb in range(2):
            for ks in range(2):
                tb = S0 + ((db * 4 + qb * 2 + ks) & 3) * 16
                for r in range(8):
                    k.e(f"v_accvgpr_read_b32 v{tb+r}, a{OA+(db*2+qb)*16+ks*8+r}")
                for r in range(8):
                    k.e(f"v_mul_f32 v{tb+r}, v{tb+r}, v{LL+qb}")
                for r in range(0, 8, 2):
                    k.e(f"v_cvt_pk_bf16_f32 v{tb+8+r//2}, v{tb+r}, v{tb+r+1}")
                k.e(f"ds_write_b128 v14, v[{tb+8}:{tb+11}] offset:{(2*db+ks)*2048 + qb*1024}")
    if debug == "o":
        k("""
        s_waitcnt vmcnt(0) lgkmcnt(0)
        s_barrier
        """)
        k(f"""
        s_lshl_b32 s14, s{S_RB}, 16
        s_lshl_b32 s15, s{S_W}, 14
        s_add_u32 s14, s14, s15
        v_add_u32 v13, s15, v{XA}
        """)
        for i in range(16):
            k.e(f"ds_read_b128 v[16:19], v13 offset:{i*1024}")
            k.e("s_waitcnt lgkmcnt(0)")
            k.e(f"buffer_store_dwordx4 v[16:19], v15, s[{SRD_SL}:{SRD_SL+3}], s14 offen")
            k.e("s_add_u32 s14, s14, 1024")
            k.e("s_waitcnt vmcnt(0)")
        k.e("s_endpgm")
    k("""
    s_waitcnt lgkmcnt(0)
    s_barrier
    """)
    gen_proj(k, "o", SRD_WO, 1024, False, True)
    k(f"""
    s_nop 7
    v_and_b32 v1, 31, v0
    v_lshrrev_b32 v2, 5, v0
    v_lshlrev_b32 v1, 10, v1             ; q*1024
    v_lshl_add_u32 v1, v2, 4, v1         ; + hf*16
    s_lshl_b32 s14, s{S_RB}, 16          ; rb*64*1024
    s_lshl_b32 s15, s{S_W}, 8
    s_add_u32 s14, s14, s15
    s_add_u32 s15, s14, 32768            ; qb=1
    s_nop 7
    """)
    for cb in range(4):
        for qb in range(2):
            a = PACC + (cb * 2 + qb) * 16
            o = QF + (cb * 2 + qb) * 8
            for r in range(0, 16, 2):
                k.e(f"v_cvt_pk_bf16_f32 v{o+r//2}, v{a+r}, v{a+r+1}")
            k.e("s_nop 1")
            for pr in range(2):
                k.e(f"v_permlane32_swap_b32 v{o+4*pr}, v{o+4*pr+2}")
                k.e(f"v_permlane32_swap_b32 v{o+4*pr+1}, v{o+4*pr+3}")
            for pr in range(2):
                k.e(f"buffer_store_dwordx4 v[{o+4*pr}:{o+4*pr+3}], v1, s[{SRD_SL}:{SRD_SL+3}], s{14+qb} offen offset:{cb*64+pr*32}")
    k.lab("L_at_done")
    k.e("s_endpgm")
    for rid, p in rare_sites:
        k.lab(f"L_rare_{rid}")
        k.e(f"s_call_b64 s[{S_RET}:{S_RET+1}], L_raresub_{p}")
        k.e(f"s_branch L_back_{rid}")
    gen_rare(k, 0)
    gen_rare(k, 1)
    return k.text(), kernel_desc(name, 512, 64, 256), f"; @launch kernel={name} grid=(256,1,1) block=(256,1,1) lds=163840"
```

```python
from common import *

LOG2E = 1.4426950408889634
import struct
def f2h(x):
    return "0x%08x" % struct.unpack("<I", struct.pack("<f", x))[0]

def bf16_round_inplace(k, a, b, t):
    k.e(f"v_cvt_pk_bf16_f32 v{t}, v{a}, v{b}")
    k.e(f"v_lshlrev_b32 v{a}, 16, v{t}")
    k.e(f"v_and_b32 v{b}, 0xffff0000, v{t}")

def gen_g(which):
    name = "g1_kernel" if which == 1 else "g2_kernel"
    RS = 3584 if which == 1 else 4096
    NKS = 32 if which == 1 else 28
    NKST = 128 if which == 1 else 112
    BOFF = HF_OFF if which == 1 else UF_OFF
    NWG = 224 if which == 1 else 256
    MT_PER = 7 if which == 1 else 8
    ASIZE = 2048 * 3584 if which == 1 else 1792 * 4096
    PF, NS, NB = 6, 8, 7
    ACC = 64
    AF = 128
    BF = 144
    k = Em()
    k.L.append(kernel_header(name))
    P = name[:2]
    k(f"""
    s_cmp_ge_u32 s2, {NWG}
    s_cbranch_scc1 L_{P}_done
    s_load_dwordx2 s[4:5], s[0:1], {KA_W1 if which==1 else KA_W2}
    s_load_dwordx2 s[6:7], s[0:1], {KA_WS}
    s_load_dwordx2 s[8:9], s[0:1], {KA_B1 if which==1 else KA_B2}
    s_load_dwordx2 s[10:11], s[0:1], {KA_X}
    s_load_dwordx2 s[12:13], s[0:1], {KA_OUT}
    v_lshrrev_b32 v1, 6, v0
    v_and_b32 v2, 63, v0               ; lane
    s_nop 0
    v_readfirstlane_b32 s40, v1
    s_and_b32 s47, s2, 7               ; xcd
    s_lshr_b32 s48, s2, 3              ; idx
    s_and_b32 s42, s47, 1
    s_lshl_b32 s42, s42, 2
    s_and_b32 s49, s48, 3
    s_add_u32 s42, s42, s49
    s_lshr_b32 s41, s47, 1
    s_mul_i32 s41, s41, {MT_PER}
    s_lshr_b32 s49, s48, 2
    s_add_u32 s41, s41, s49            ; mt
    s_waitcnt lgkmcnt(0)
    """)
    srd(k, 16, 4, 5, ASIZE)
    srd(k, 20, 6, 7, 8 << 20)
    srd(k, 24, 8, 9, 1792*2 if which == 1 else 2048*2)
    if which == 2:
        srd(k, 28, 10, 11, 2097152)
        srd(k, 32, 12, 13, 2097152)
        srd_off(k, 36, 6, 7, SLAB_OFF, 16 << 20)
    k(f"""
    v_lshrrev_b32 v3, 3, v2
    v_and_b32 v4, 7, v2
    v_lshrrev_b32 v5, 1, v3
    v_and_b32 v5, 1, v5
    v_lshlrev_b32 v5, 2, v5
    v_xor_b32 v4, v4, v5
    s_movk_i32 s49, {RS}
    v_mul_lo_u32 v3, v3, s49
    v_lshl_add_u32 v10, v4, 4, v3       ; v10 = voffA
    v_lshlrev_b32 v11, 4, v2
    v_lshrrev_b32 v3, 5, v2             ; hf
    v_bfe_u32 v4, v2, 4, 1              ; csub
    v_bfe_u32 v5, v2, 2, 2              ; r
    v_and_b32 v6, 3, v2                 ; c
    v_lshlrev_b32 v7, {3 if which==1 else 2}, v3
    v_add_u32 v7, v7, v5
    v_lshlrev_b32 v7, 7, v7             ; *128
    v_lshl_add_u32 v7, v4, 5, v7        ; + csub*32
    v_lshl_add_u32 v7, v6, 3, v7        ; + c*8
    s_lshl_b32 s46, s40, 14
    v_add_u32 v7, s46, v7
    v_lshrrev_b32 v8, 1, v5             ; r>>1
    v_lshlrev_b32 v9, 6, v8             ; (0 ^ (r>>1))*64
    v_add_u32 v12, v7, v9               ; v12 = vA[0]
    v_xor_b32 v9, 64, v9
    v_add_u32 v13, v7, v9               ; v13 = vA[1]
    s_mul_i32 s43, s40, {NKS*16*RS}     ; kw0*RS
    s_lshl_b32 s49, s41, 7
    s_add_u32 s43, s43, s49             ; sA
    s_add_u32 s50, s43, {8*RS-1024}     ; sA2
    s_lshl_b32 s44, s42, 1
    s_mul_i32 s44, s44, {NKST}
    s_mul_i32 s49, s40, {NKS}
    s_add_u32 s44, s44, s49
    s_lshl_b32 s44, s44, 10
    s_add_u32 s44, s44, {BOFF}          ; sB0
    s_add_u32 s45, s44, {NKST*1024}     ; sB1
    """)
    for i in range(64):
        k.e(f"v_mov_b32 v{ACC+i}, 0")
    vm = Ctr(63)
    def issue_loads(ks):
        slot = ks % NS
        k.e(f"s_add_u32 m0, s46, {slot*2048}")
        bs = BF + (ks % NB) * 8
        k.e(f"buffer_load_dwordx4 v[{bs}:{bs+3}], v11, s[20:23], s44 offen")
        vm.issue(("B", ks))
        k.e(f"buffer_load_dwordx4 v10, s[16:19], s43 offen lds")
        vm.issue(("A", ks))
        k.e(f"buffer_load_dwordx4 v10, s[16:19], s50 offen offset:1024 lds")
        vm.issue(("A", ks))
        k.e(f"buffer_load_dwordx4 v[{bs+4}:{bs+7}], v11, s[20:23], s45 offen")
        vm.issue(("B", ks))
        k.e(f"s_add_u32 s43, s43, {16*RS}")
        k.e(f"s_add_u32 s50, s50, {16*RS}")
        k.e(f"s_add_u32 s44, s44, 1024")
        k.e(f"s_add_u32 s45, s45, 1024")
    def tr_reads(ks):
        slot = ks % NS
        out = []
        for mb in range(2):
            for bp in range(2):
                d = AF + (ks & 1) * 8 + mb * 4 + bp * 2
                off = slot * 2048 + bp * (512 if which == 1 else 1024)
                out.append(f"ds_read_b64_tr_b16 v[{d}:{d+1}], v{12+mb} offset:{off}")
        return out
    extra_loads = []
    if which == 1:
        k(f"""
        s_lshr_b32 s51, s40, 1
        s_lshl_b32 s51, s51, 6
        s_lshl_b32 s52, s41, 7          ; mt*64*2
        s_add_u32 s51, s51, s52
        v_lshrrev_b32 v3, 5, v2
        v_lshlrev_b32 v14, 3, v3
        """)
        for b in range(4):
            extra_loads.append((f"buffer_load_dwordx2 v[{20+2*b}:{21+2*b}], v14, s[24:27], s51 offen offset:{16*b}", ("E", 0)))
    else:
        k(f"""
        v_lshrrev_b32 v3, 3, v0
        v_and_b32 v4, 7, v0
        v_lshlrev_b32 v14, 10, v3
        v_lshl_add_u32 v14, v4, 4, v14   ; row*1024 + c*16
        s_lshl_b32 s51, s41, 16          ; mt*64*1024
        s_lshl_b32 s52, s42, 7
        s_add_u32 s51, s51, s52
        s_add_u32 s53, s51, 32768        ; p=1
        v_lshlrev_b32 v15, 1, v3
        s_lshl_b32 s54, s41, 7           ; mt*64*2
        """)
        for g in range(8):
            for p in range(2):
                extra_loads.append((g, p))
    for ks in range(PF):
        issue_loads(ks)
    if which == 1:
        for ins, tag in extra_loads:
            k.e(ins); vm.issue(tag)
    else:
        k.e("buffer_load_ushort v20, v15, s[24:27], s54 offen"); vm.issue(("E", 0))
        k.e("buffer_load_ushort v21, v15, s[24:27], s54 offen offset:64"); vm.issue(("E", 0))
        k.e("buffer_load_dwordx4 a[64:67], v14, s[28:31], s51 offen"); vm.issue(("E", 0))
        k.e("buffer_load_dwordx4 a[68:71], v14, s[28:31], s53 offen"); vm.issue(("E", 0))
    n = vm.need(lambda t: t == ("A", 0))
    k.e(f"s_waitcnt vmcnt({n})")
    for ins in tr_reads(0): k.e(ins)
    slab_i = 0
    for ks in range(NKS):
        n = vm.need(lambda t: (t[0] == "A" and t[1] <= ks + 1) or (t[0] == "B" and t[1] <= ks))
        w = "s_waitcnt lgkmcnt(0)" if n is None else f"s_waitcnt vmcnt({n}) lgkmcnt(0)"
        k.e(w)
        bs = BF + (ks % NB) * 8
        fill = []
        if ks + 1 < NKS:
            fill += tr_reads(ks + 1)
        mf = []
        for mb in range(2):
            for nb in range(2):
                a = AF + (ks & 1) * 8 + mb * 4
                b = bs + nb * 4
                d = ACC + (mb * 2 + nb) * 16
                if which == 1:
                    mf.append(f"v_mfma_f32_32x32x16_bf16 v[{d}:{d+15}], v[{a}:{a+3}], v[{b}:{b+3}], v[{d}:{d+15}]")
                else:
                    mf.append(f"v_mfma_f32_32x32x16_bf16 v[{d}:{d+15}], v[{b}:{b+3}], v[{a}:{a+3}], v[{d}:{d+15}]")
        k.e(mf[0])
        for ins in fill[:2]: k.e(ins)
        k.e(mf[1])
        for ins in fill[2:]: k.e(ins)
        k.e(mf[2])
        if ks + PF < NKS:
            issue_loads(ks + PF)
        if which == 2 and slab_i < 16:
            g, p = extra_loads[slab_i]
            k.e(f"s_add_u32 s55, s{51 if p==0 else 53}, {g*2097152}")
            k.e(f"buffer_load_dwordx4 a[{slab_i*4}:{slab_i*4+3}], v14, s[36:39], s55 offen")
            vm.issue(("E", 0))
            slab_i += 1
        k.e(mf[3])
    k.e("s_nop 15")
    EX = 65536
    if which == 1:
        k(f"""
        s_lshl_b32 s56, s40, 14
        s_add_u32 s56, s56, {EX}
        v_add_u32 v3, s56, v11
        """)
        for blk in range(4):
            for q in range(4):
                r = ACC + blk * 16 + q * 4
                k.e(f"ds_write_b128 v3, v[{r}:{r+3}] offset:{blk*4096 + q*1024}")
        k(f"""
        s_lshl_b32 s56, s40, 12
        s_add_u32 s56, s56, {EX}
        v_add_u32 v3, s56, v11
        s_waitcnt vmcnt(0) lgkmcnt(0)
        s_barrier
        """)
        for src in range(4):
            for q in range(4):
                r = ACC + src * 16 + q * 4
                k.e(f"ds_read_b128 v[{r}:{r+3}], v3 offset:{src*16384 + q*1024}")
        k.e("s_waitcnt lgkmcnt(0)")
        Y = ACC
        for r in range(16):
            k.e(f"v_add_f32 v{Y+r}, v{Y+r}, v{Y+16+r}")
            k.e(f"v_add_f32 v{Y+32+r}, v{Y+32+r}, v{Y+48+r}")
        for r in range(16):
            k.e(f"v_add_f32 v{Y+r}, v{Y+r}, v{Y+32+r}")
        for b in range(4):
            k.e(f"v_lshlrev_b32 v{32+4*b}, 16, v{20+2*b}")
            k.e(f"v_and_b32 v{33+4*b}, 0xffff0000, v{20+2*b}")
            k.e(f"v_lshlrev_b32 v{34+4*b}, 16, v{21+2*b}")
            k.e(f"v_and_b32 v{35+4*b}, 0xffff0000, v{21+2*b}")
        c1 = -2.0 * 0.7978845608028654 * LOG2E
        k.e(f"s_mov_b32 s57, {f2h(c1)}")
        k.e(f"s_mov_b32 s58, {f2h(c1*0.044715)}")
        k.e(f"v_mov_b32 v48, s57")
        for r in range(0, 16, 2):
            a, b = Y + r, Y + r + 1
            bf16_round_inplace(k, a, b, 4)
            k.e(f"v_add_f32 v{a}, v{a}, v{32+r}")
            k.e(f"v_add_f32 v{b}, v{b}, v{33+r}")
            bf16_round_inplace(k, a, b, 4)
            for x, t in ((a, 5), (b, 6)):
                k.e(f"v_mul_f32 v{t}, v{x}, v{x}")
                k.e(f"v_fma_f32 v{t}, v{t}, s58, v48")
                k.e(f"v_mul_f32 v{t}, v{t}, v{x}")
            k.e("v_exp_f32 v5, v5")
            k.e("v_exp_f32 v6, v6")
            k.e("s_nop 0")
            k.e("v_add_f32 v5, 1.0, v5")
            k.e("v_add_f32 v6, 1.0, v6")
            k.e("v_rcp_f32 v5, v5")
            k.e("v_rcp_f32 v6, v6")
            k.e("s_nop 0")
            k.e(f"v_mul_f32 v{a}, v{a}, v5")
            k.e(f"v_mul_f32 v{b}, v{b}, v6")
            k.e(f"v_cvt_pk_bf16_f32 v{52 + r//2}, v{a}, v{b}")
        k(f"""
        s_and_b32 s56, s40, 1
        s_lshl_b32 s57, s42, 1
        s_add_u32 s56, s56, s57
        s_mul_i32 s56, s56, 112
        s_lshl_b32 s57, s41, 2
        s_add_u32 s56, s56, s57
        s_lshr_b32 s57, s40, 1
        s_lshl_b32 s57, s57, 1
        s_add_u32 s56, s56, s57
        s_lshl_b32 s56, s56, 10
        s_add_u32 s56, s56, {UF_OFF}
        buffer_store_dwordx4 v[52:55], v11, s[20:23], s56 offen
        buffer_store_dwordx4 v[56:59], v11, s[20:23], s56 offen offset:1024
        """)
    else:
        PS = 64 * 272
        k(f"""
        v_and_b32 v3, 31, v2
        s_movk_i32 s56, 272
        v_mul_lo_u32 v3, v3, s56
        v_lshrrev_b32 v4, 5, v2
        v_lshl_add_u32 v3, v4, 4, v3      ; + hf*16
        s_mul_i32 s56, s40, {PS}
        s_add_u32 s56, s56, {EX}
        v_add_u32 v3, s56, v3
        """)
        for mb in range(2):
            for nb in range(2):
                for b in range(4):
                    r = ACC + (mb * 2 + nb) * 16 + b * 4
                    k.e(f"ds_write_b128 v3, v[{r}:{r+3}] offset:{mb*32*272 + nb*128 + b*32}")
        k(f"""
        v_lshrrev_b32 v3, 3, v0
        v_and_b32 v4, 7, v0
        s_movk_i32 s56, 272
        v_mul_lo_u32 v3, v3, s56
        v_lshl_add_u32 v3, v4, 5, v3
        v_add_u32 v3, {EX}, v3
        s_waitcnt vmcnt(0) lgkmcnt(0)
        s_barrier
        """)
        for p in range(2):
            for src in range(4):
                r = ACC + p * 32 + src * 8
                k.e(f"ds_read_b128 v[{r}:{r+3}], v3 offset:{src*PS + p*32*272}")
                k.e(f"ds_read_b128 v[{r+4}:{r+7}], v3 offset:{src*PS + p*32*272 + 16}")
        k.e("s_waitcnt lgkmcnt(0)")
        for p in range(2):
            Y = ACC + p * 32
            for i in range(8):
                k.e(f"v_add_f32 v{Y+i}, v{Y+i}, v{Y+8+i}")
                k.e(f"v_add_f32 v{Y+16+i}, v{Y+16+i}, v{Y+24+i}")
                k.e(f"v_add_f32 v{Y+i}, v{Y+i}, v{Y+16+i}")
            k.e(f"v_lshlrev_b32 v22, 16, v{20+p}")
            S = 32
            for g in range(8):
                for j in range(4):
                    k.e(f"v_accvgpr_read_b32 v{24+j}, a{(g*2+p)*4+j}")
                for j in range(4):
                    if g == 0:
                        k.e(f"v_lshlrev_b32 v{S+2*j}, 16, v{24+j}")
                        k.e(f"v_and_b32 v{S+2*j+1}, 0xffff0000, v{24+j}")
                    else:
                        k.e(f"v_lshlrev_b32 v28, 16, v{24+j}")
                        k.e(f"v_and_b32 v29, 0xffff0000, v{24+j}")
                        k.e(f"v_add_f32 v{S+2*j}, v{S+2*j}, v28")
                        k.e(f"v_add_f32 v{S+2*j+1}, v{S+2*j+1}, v29")
            for j in range(4):
                k.e(f"v_accvgpr_read_b32 v{24+j}, a{64+p*4+j}")
            for i in range(0, 8, 2):
                a, b = Y + i, Y + i + 1
                bf16_round_inplace(k, a, b, 4)
                k.e(f"v_add_f32 v{a}, v{a}, v22")
                k.e(f"v_add_f32 v{b}, v{b}, v22")
                bf16_round_inplace(k, a, b, 4)
                k.e(f"v_mul_f32 v5, {f2h(-LOG2E)}, v{a}")
                k.e(f"v_mul_f32 v6, {f2h(-LOG2E)}, v{b}")
                k.e("v_exp_f32 v5, v5")
                k.e("v_exp_f32 v6, v6")
                k.e("s_nop 0")
                k.e("v_add_f32 v5, 1.0, v5")
                k.e("v_add_f32 v6, 1.0, v6")
                k.e("v_rcp_f32 v5, v5")
                k.e("v_rcp_f32 v6, v6")
                k.e("s_nop 0")
                k.e(f"v_mul_f32 v{a}, v{a}, v5")
                k.e(f"v_mul_f32 v{b}, v{b}, v6")
                bf16_round_inplace(k, a, b, 4)
                bf16_round_inplace(k, S + i, S + i + 1, 4)
                k.e(f"v_mul_f32 v{a}, v{a}, v{S+i}")
                k.e(f"v_mul_f32 v{b}, v{b}, v{S+i+1}")
                bf16_round_inplace(k, a, b, 4)
                k.e(f"v_lshlrev_b32 v28, 16, v{24+i//2}")
                k.e(f"v_and_b32 v29, 0xffff0000, v{24+i//2}")
                k.e(f"v_add_f32 v{a}, v{a}, v28")
                k.e(f"v_add_f32 v{b}, v{b}, v29")
                k.e(f"v_cvt_pk_bf16_f32 v{40+p*4+i//2}, v{a}, v{b}")
            k.e(f"buffer_store_dwordx4 v[{40+p*4}:{43+p*4}], v14, s[32:35], s{51 if p==0 else 53} offen")
    k.lab(f"L_{P}_done")
    k.e("s_endpgm")
    lds = 131072 if which == 1 else 65536 + 4 * 64 * 272
    nv = 200 if which == 1 else 256 + 72
    acc_off = 200 if which == 1 else 256
    return k.text(), kernel_desc(name, nv, 64, acc_off), f"; @launch kernel={name} grid=({NWG},1,1) block=(256,1,1) lds={lds}"
```

```python
from common import *

def ln_rows(k, xin, out_pk, tmp):
    s, t, mb, d0, r = tmp, tmp+1, tmp+2, tmp+3, tmp+4
    k.e(f"v_add_f32 v{s}, v{xin[0]}, v{xin[1]}")
    for i in range(2, 8):
        k.e(f"v_add_f32 v{s}, v{s}, v{xin[i]}")
    wave_allreduce_add(k, s, t)
    k.e(f"v_mul_f32 v{s}, 0x3b000000, v{s}")
    k.e(f"v_cvt_pk_bf16_f32 v{mb}, v{s}, v{s}")
    k.e(f"v_lshlrev_b32 v{mb}, 16, v{mb}")
    k.e(f"v_sub_f32 v{d0}, v{xin[0]}, v{s}")
    k.e(f"v_mul_f32 v{r}, v{d0}, v{d0}")
    for i in range(1, 8):
        k.e(f"v_sub_f32 v{d0}, v{xin[i]}, v{s}")
        k.e(f"v_fmac_f32 v{r}, v{d0}, v{d0}")
    wave_allreduce_add(k, r, t)
    k.e(f"v_mul_f32 v{r}, 0x3b000000, v{r}")
    k.e(f"v_cvt_pk_bf16_f32 v{r}, v{r}, v{r}")
    k.e(f"v_lshlrev_b32 v{r}, 16, v{r}")
    k.e(f"v_add_f32 v{r}, 0x3727c5ac, v{r}")
    k.e(f"v_cvt_pk_bf16_f32 v{r}, v{r}, v{r}")
    k.e(f"v_lshlrev_b32 v{r}, 16, v{r}")
    k.e(f"v_sqrt_f32 v{r}, v{r}")
    k.e("s_nop 0")
    k.e(f"v_cvt_pk_bf16_f32 v{r}, v{r}, v{r}")
    k.e(f"v_lshlrev_b32 v{r}, 16, v{r}")
    k.e(f"v_rcp_f32 v{t}, v{r}")
    k.e("s_nop 0")
    k.e(f"v_fma_f32 v{d0}, -v{r}, v{t}, 1.0")
    k.e(f"v_fma_f32 v{t}, v{d0}, v{t}, v{t}")
    for i in range(0, 8, 2):
        a, b = xin[i], xin[i+1]
        k.e(f"v_sub_f32 v{a}, v{a}, v{mb}")
        k.e(f"v_sub_f32 v{b}, v{b}, v{mb}")
        k.e(f"v_cvt_pk_bf16_f32 v{d0}, v{a}, v{b}")
        k.e(f"v_lshlrev_b32 v{a}, 16, v{d0}")
        k.e(f"v_and_b32 v{b}, 0xffff0000, v{d0}")
        k.e(f"v_mul_f32 v{a}, v{a}, v{t}")
        k.e(f"v_mul_f32 v{b}, v{b}, v{t}")
        k.e(f"v_cvt_pk_bf16_f32 v{out_pk + i//2}, v{a}, v{b}")
        k.e(f"v_lshlrev_b32 v{a}, 16, v{out_pk + i//2}")
        k.e(f"v_and_b32 v{b}, 0xffff0000, v{out_pk + i//2}")

def gen_ln(name="ln_kernel"):
    k = Em()
    k.L.append(kernel_header(name))
    k(f"""
    s_cmp_ge_u32 s2, 256
    s_cbranch_scc1 L_ln_done
    s_load_dwordx2 s[4:5], s[0:1], {KA_X}
    s_load_dwordx2 s[6:7], s[0:1], {KA_WS}
    v_lshrrev_b32 v1, 6, v0
    v_and_b32 v2, 63, v0               ; lane
    s_lshl_b32 s3, s2, 13
    v_lshlrev_b32 v3, 4, v0
    s_waitcnt lgkmcnt(0)
    """)
    srd(k, 8, 4, 5, 2097152)
    srd(k, 12, 6, 7, 4 << 20)
    k(f"""
    buffer_load_dwordx4 v[4:7], v3, s[8:11], s3 offen
    s_waitcnt vmcnt(0)
    """)
    X = list(range(8, 16))
    for i in range(4):
        k.e(f"v_lshlrev_b32 v{X[2*i]}, 16, v{4+i}")
        k.e(f"v_and_b32 v{X[2*i+1]}, 0xffff0000, v{4+i}")
    ln_rows(k, X, 16, 24)
    k.e("ds_write_b128 v3, v[16:19]")
    ln_rows(k, X, 20, 24)
    k.e("ds_write_b128 v3, v[20:23] offset:8192")
    k(f"""
    s_waitcnt lgkmcnt(0)
    s_barrier
    v_and_b32 v4, 7, v0
    v_lshrrev_b32 v5, 3, v0
    v_lshlrev_b32 v6, 10, v4
    v_lshl_add_u32 v6, v5, 4, v6
    ds_read_b128 v[8:11], v6
    v_lshlrev_b32 v7, 1, v0
    ds_read_u16 v20, v7 offset:{8192+0*1024}
    ds_read_u16 v21, v7 offset:{8192+1*1024}
    ds_read_u16 v22, v7 offset:{8192+2*1024}
    ds_read_u16 v23, v7 offset:{8192+3*1024}
    ds_read_u16 v24, v7 offset:{8192+4*1024}
    ds_read_u16 v25, v7 offset:{8192+5*1024}
    ds_read_u16 v26, v7 offset:{8192+6*1024}
    ds_read_u16 v27, v7 offset:{8192+7*1024}
    s_lshr_b32 s16, s2, 3
    s_lshl_b32 s16, s16, 16
    s_lshr_b32 s17, s2, 2
    s_and_b32 s17, s17, 1
    s_lshl_b32 s17, s17, 10
    s_add_u32 s16, s16, s17
    s_and_b32 s17, s2, 3
    s_lshl_b32 s17, s17, 7              ; (wg&3)*8*16
    s_add_u32 s16, s16, s17
    v_lshrrev_b32 v16, 1, v5            ; t
    v_lshlrev_b32 v16, 11, v16
    v_and_b32 v17, 1, v5
    v_lshl_add_u32 v16, v17, 9, v16
    v_lshl_add_u32 v16, v4, 4, v16
    s_lshr_b32 s18, s2, 1
    s_lshl_b32 s18, s18, 10
    s_and_b32 s19, s2, 1
    s_lshl_b32 s19, s19, 9
    s_add_u32 s18, s18, s19
    s_add_u32 s18, s18, {HF_OFF}
    v_lshrrev_b32 v17, 5, v0
    v_lshlrev_b32 v17, 17, v17
    v_and_b32 v18, 31, v0
    v_lshl_add_u32 v17, v18, 4, v17
    s_waitcnt lgkmcnt(8)
    buffer_store_dwordx4 v[8:11], v16, s[12:15], s16 offen
    s_waitcnt lgkmcnt(0)
    v_lshl_or_b32 v12, v21, 16, v20
    v_lshl_or_b32 v13, v23, 16, v22
    v_lshl_or_b32 v14, v25, 16, v24
    v_lshl_or_b32 v15, v27, 16, v26
    buffer_store_dwordx4 v[12:15], v17, s[12:15], s18 offen
    L_ln_done:
    s_endpgm
    """)
    return k.text(), kernel_desc(name, 32, 32, 32), f"; @launch kernel={name} grid=(256,1,1) block=(512,1,1) lds=16384"
```

```python
import sys
sys.path.insert(0, 'gen')
from common import *
from k_ln import gen_ln
from k_g import gen_g
from k_attn import gen_attn

HEADER = open('recurrent_scan__gqa_block_cached__mixer_token_mlp__prompt.s.ref').read().split("; Override launch")[0]

def build(kernels, path):
    launches = [x[2] for x in kernels]
    s = HEADER + "\n".join(launches) + "\n"
    s += '.amdgcn_target "amdgcn-amd-amdhsa--gfx950"\n.text\n'
    for t, d, l in kernels:
        s += t + "\n"
    s += '.section .rodata,"a"\n'
    for t, d, l in kernels:
        s += ".p2align 6\n" + d
    open(path, "w").write(s)

if __name__ == "__main__":
    dbg = sys.argv[2] if len(sys.argv) > 2 else None
    out = sys.argv[1] if len(sys.argv) > 1 else 'recurrent_scan__gqa_block_cached__mixer_token_mlp__prompt.s'
    build([gen_ln(), gen_g(1), gen_attn(debug=dbg), gen_g(2)], out)
    print("wrote", out)
```

```python
def vr(a, n=1):
    return f"v{a}" if n == 1 else f"v[{a}:{a+n-1}]"
def ar(a, n=1):
    return f"a{a}" if n == 1 else f"a[{a}:{a+n-1}]"
def sr(a, n=1):
    return f"s{a}" if n == 1 else f"s[{a}:{a+n-1}]"

class Em:
    def __init__(self):
        self.L = []
    def e(self, s):
        self.L.append("    " + s)
    def __call__(self, s):
        for line in s.strip("\n").split("\n"):
            line = line.strip()
            if not line:
                continue
            if line.endswith(":") and " " not in line:
                self.L.append(line)
            else:
                self.L.append("    " + line)
    def lab(self, s):
        self.L.append(s + ":")
    def c(self, s):
        self.L.append("    ; " + s)
    def text(self):
        return "\n".join(self.L) + "\n"

def srd(k, d, base_lo, base_hi, size):
    k.e(f"s_mov_b32 s{d}, s{base_lo}")
    k.e(f"s_mov_b32 s{d+1}, s{base_hi}")
    k.e(f"s_mov_b32 s{d+2}, {size}")
    k.e(f"s_mov_b32 s{d+3}, 0x00020000")

def srd_off(k, d, base_lo, base_hi, off, size):
    k.e(f"s_add_u32 s{d}, s{base_lo}, {off}")
    k.e(f"s_addc_u32 s{d+1}, s{base_hi}, 0")
    k.e(f"s_mov_b32 s{d+2}, {size}")
    k.e(f"s_mov_b32 s{d+3}, 0x00020000")

def kernel_header(name):
    return f""".globl {name}
.p2align 8
.type {name},@function
{name}:
"""

def kernel_desc(name, vgpr, sgpr, accum):
    return f""".amdhsa_kernel {name}
  .amdhsa_next_free_vgpr {vgpr}
  .amdhsa_next_free_sgpr {sgpr}
  .amdhsa_accum_offset {accum}
  .amdhsa_group_segment_fixed_size 0
  .amdhsa_kernarg_size 104
  .amdhsa_user_sgpr_count 2
  .amdhsa_user_sgpr_kernarg_segment_ptr 1
  .amdhsa_system_sgpr_workgroup_id_x 1
.end_amdhsa_kernel
"""

XNF_OFF  = 0
HF_OFF   = 2 << 20
UF_OFF   = 4 << 20
CNT_OFF  = 6 << 20
SLAB_OFF = 8 << 20
WS_SIZE  = 268435456

KA_X, KA_K, KA_V, KA_WQ, KA_WO, KA_BX, KA_W1, KA_B1, KA_W2, KA_B2, KA_OUT, KA_DBG, KA_WS = [8*i for i in range(13)]

class Ctr:
    def __init__(self, maxv):
        self.q = []
        self.maxv = maxv
    def issue(self, tag):
        self.q.append(tag)
    def need(self, pred):
        last = -1
        for i, t in enumerate(self.q):
            if pred(t):
                last = i
        if last < 0:
            return None
        n = len(self.q) - 1 - last
        self.q = self.q[last+1:]
        return min(n, self.maxv)
    def drain(self):
        self.q = []

def bf16_round_pair(k, dst_pk, a, b):
    k.e(f"v_cvt_pk_bf16_f32 v{dst_pk}, v{a}, v{b}")

def wave_allreduce_add(k, x, t):
    k.e("s_nop 1")
    k.e(f"v_add_f32_dpp v{x}, v{x}, v{x} quad_perm:[1,0,3,2] row_mask:0xf bank_mask:0xf")
    k.e("s_nop 1")
    k.e(f"v_add_f32_dpp v{x}, v{x}, v{x} quad_perm:[2,3,0,1] row_mask:0xf bank_mask:0xf")
    k.e("s_nop 1")
    k.e(f"v_add_f32_dpp v{x}, v{x}, v{x} row_half_mirror row_mask:0xf bank_mask:0xf")
    k.e("s_nop 1")
    k.e(f"v_add_f32_dpp v{x}, v{x}, v{x} row_mirror row_mask:0xf bank_mask:0xf")
    k.e(f"v_mov_b32 v{t}, v{x}")
    k.e("s_nop 1")
    k.e(f"v_permlane16_swap_b32 v{t}, v{x}")
    k.e(f"v_add_f32 v{x}, v{x}, v{t}")
    k.e(f"v_mov_b32 v{t}, v{x}")
    k.e("s_nop 1")
    k.e(f"v_permlane32_swap_b32 v{t}, v{x}")
    k.e(f"v_add_f32 v{x}, v{x}, v{t}")


def tl_begin(k, prof):
    if prof:
        k.e("s_memrealtime s[90:91]")

def tl_end(k, prof, kidx):
    if not prof: return
    k.e("s_waitcnt vmcnt(0) lgkmcnt(0)")
    k.e("s_memrealtime s[92:93]")
    k.e(f"s_load_dwordx2 s[94:95], s[0:1], {KA_WS}")
    k.e("s_waitcnt lgkmcnt(0)")
    k.e(f"s_add_u32 s84, s94, {(65 << 20) + kidx * 65536}")
    k.e("s_addc_u32 s85, s95, 0")
    k.e("s_mov_b32 s86, 65536")
    k.e("s_mov_b32 s87, 0x00020000")
    k.e("s_lshl_b32 s88, s2, 4")
    k.e("s_getreg_b32 s89, hwreg(HW_REG_XCC_ID)")
    k.e("s_getreg_b32 s83, hwreg(HW_REG_HW_ID)")
    k.e("v_mov_b32 v2, s90")
    k.e("v_mov_b32 v3, s92")
    k.e("v_mov_b32 v4, s89")
    k.e("v_mov_b32 v5, s83")
    k.e("v_mov_b32 v1, 0")
    k.e("buffer_store_dwordx4 v[2:5], v1, s[84:87], s88 offen")
```

```python
from common import *
import struct, math
def f2h(x):
    return "0x%08x" % struct.unpack("<I", struct.pack("<f", x))[0]

S0, S1 = 16, 48
NEGM = 80
P0, P1 = 112, 128
QF = 144
ET = 208
LS = 216
LL = 220
KA = 222
VA = 230
DK = 234
DV = 238
WA = 240
XA = 244
DW = 245
T0 = 1
PACC = 16
OA = 0
KF = 128
VF = 144
WF = 128
XF = 160
KRING, VRING, SPARE = 0, 65536, 131072
XT = 65536
S_G, S_RB, S_W = 40, 41, 42
S_KOFF, S_VOFF = 43, 44
S_M0K, S_M0V = 45, 46
S_WOFF, S_WRING = 47, 48
S_THR = 49
S_CNT = 50
S_RET = 52
SRD_K, SRD_V, SRD_WQ, SRD_WO, SRD_X, SRD_SL = 16, 20, 24, 28, 32, 36
THR_LOG2 = 60

def Sbuf(p, qb): return (S0 if p == 0 else S1) + 16 * qb
def Pbuf(p, qb, ks): return (P0 if p == 0 else P1) + 8 * qb + 4 * ks

def mfma(d, a, b, c, dfile='v', afile='a', bfile='v'):
    cs = c if isinstance(c, str) else f"{dfile}[{c}:{c+15}]"
    return f"v_mfma_f32_32x32x16_bf16 {dfile}[{d}:{d+15}], {afile}[{a}:{a+3}], {bfile}[{b}:{b+3}], {cs}"

def k_read(unit, t, ring_i):
    tile = unit >> 1
    off = (tile & 3) * 16384 + (unit & 1) * 8192
    d = KF + (ring_i & 3) * 4
    return [f"ds_read_b128 a[{d}:{d+3}], v{KA+t} offset:{off}"]

def v_read(unit, i, ring_i):
    tile = unit >> 1
    db, ks = i >> 1, i & 1
    off = (tile & 3) * 16384 + (unit & 1) * 8192 + ks * 4096
    d = VF + (ring_i & 3) * 4
    return [f"ds_read_b64_tr_b16 a[{d}:{d+1}], v{VA+db} offset:{off}",
            f"ds_read_b64_tr_b16 a[{d+2}:{d+3}], v{VA+db} offset:{off+2048}"]

def softmax_ops(p):
    ex, ad, cv = [], [], []
    for n in range(32):
        qb, r = n >> 4, n & 15
        e = ET + (n & 7)
        ex.append(f"v_exp_f32 v{e}, v{Sbuf(p,qb)+r}")
        ls = LS + 2 * p + qb
        if r == 0:
            ad.append(None)
        elif r == 1:
            ad.append(f"v_add_f32 v{ls}, v{ET+((n-1)&7)}, v{e}")
        else:
            ad.append(f"v_add_f32 v{ls}, v{ls}, v{e}")
        if r & 1:
            cv.append(f"v_cvt_pk_bf16_f32 v{Pbuf(p,qb,r>>3)+((r&7)>>1)}, v{ET+((n-1)&7)}, v{e}")
        else:
            cv.append(None)
    return ex, ad, cv

EXP_GAP = []
def _mk():
    g = 0; n = 0
    while n < 32:
        EXP_GAP.append(g); n += 1
        if g in (3, 7):
            EXP_GAP.append(g); n += 1
        g += 1
_mk()

def gen_step(k, u, do_qk=True, do_pv=True, do_sm=True, look=None, dma=None, pre=None, rare_id=None, prev_l=True, extra=None):
    p = u & 1
    gaps = [[] for _ in range(32)]
    for i in range(8):
        rd = look(i)
        nread = len(rd)
        for j, ins in enumerate(rd):
            gaps[4 * i + min(j, 2)].append(ins)
    if do_sm:
        ex, ad, cv = softmax_ops(p)
        for n in range(32):
            g = EXP_GAP[n]
            gaps[g].append(ex[n])
        for n in range(32):
            g = EXP_GAP[n] + 1
            if ad[n]: gaps[g].append(ad[n])
            if cv[n]: gaps[g].append(cv[n])
        gaps[31].insert(0, f"v_max_f32 v{T0}, v{LS+2*p}, v{LS+2*p+1}")
        gaps[31].append(f"v_cmp_lt_f32 vcc, s{S_THR}, v{T0}")
    if prev_l:
        pp = 1 - p
        gaps[1].append(f"v_add_f32 v{LL}, v{LL}, v{LS+2*pp}")
        gaps[2].append(f"v_add_f32 v{LL+1}, v{LL+1}, v{LS+2*pp+1}")
    if dma:
        for g, lst in dma.items():
            gaps[g] += lst
    if pre:
        for ins in pre: k.e(ins)
    for g in range(32):
        i, sub = g >> 2, g & 3
        if sub == 0:
            k.e(f"s_waitcnt lgkmcnt({look.outstanding(i)})")
        ins = None
        if sub < 2 and do_qk:
            qb = sub
            d = Sbuf(1 - p, qb)
            c = (NEGM + 16 * qb) if i == 0 else d
            ins = mfma(d, KF + (i & 3) * 4, QF + qb * 32 + i * 4, c)
        elif sub >= 2 and do_pv:
            qb = sub - 2
            db, ks = i >> 1, i & 1
            d = OA + (db * 2 + qb) * 16
            ins = mfma(d, VF + (i & 3) * 4, Pbuf(1 - p, qb, ks), d, dfile='a')
        if ins: k.e(ins)
        for f in gaps[g]: k.e(f)
    if do_sm:
        k.e(f"s_cbranch_vccnz L_rare_{rare_id}")
        k.lab(f"L_back_{rare_id}")

class Look:
    def __init__(self, u, qk_this=True, pv_this=True, qk_next=True, pv_next=True):
        self.u = u; self.qk_this = qk_this; self.pv_this = pv_this; self.qk_next = qk_next; self.pv_next = pv_next
        self.prev_counts = None
    def __call__(self, i):
        u = self.u
        out = []
        j = i + 2
        if j < 8:
            if self.qk_this: out += k_read(u + 1, j, j)
            if self.pv_this: out += v_read(u - 1, j, j)
        else:
            if self.qk_next: out += k_read(u + 2, j - 8, j)
            if self.pv_next: out += v_read(u, j - 8, j)
        return out
    def count(self, i):
        return len(self(i))
    def outstanding(self, i):
        if i == 0:
            return self.prev7
        return self.count(i - 1)

def gen_rare(k, p):
    k.lab(f"L_raresub_{p}")
    k.e("s_nop 15")
    k.e("s_nop 7")
    for qb in range(2):
        S = Sbuf(p, qb); SN = Sbuf(1 - p, qb)
        t, t2, f = T0, T0 + 1, T0 + 2
        k.e(f"v_max3_f32 v{t}, v{S}, v{S+1}, v{S+2}")
        for r in range(3, 15, 2):
            k.e(f"v_max3_f32 v{t}, v{t}, v{S+r}, v{S+r+1}")
        k.e(f"v_max_f32 v{t}, v{t}, v{S+15}")
        k.e(f"v_mov_b32 v{t2}, v{t}")
        k.e("s_nop 1")
        k.e(f"v_permlane32_swap_b32 v{t2}, v{t}")
        k.e(f"v_max3_f32 v{t}, v{t}, v{t2}, 0")
        k.e(f"v_exp_f32 v{f}, -v{t}")
        k.e("s_nop 0")
        k.e(f"v_mul_f32 v{LL+qb}, v{LL+qb}, v{f}")
        for db in range(4):
            for r in range(16):
                a = OA + (db * 2 + qb) * 16 + r
                k.e(f"v_accvgpr_read_b32 v{T0+3+(r&3)}, a{a}")
                k.e(f"v_mul_f32 v{T0+3+(r&3)}, v{T0+3+(r&3)}, v{f}")
                k.e(f"v_accvgpr_write_b32 a{a}, v{T0+3+(r&3)}")
        for r in range(16):
            k.e(f"v_sub_f32 v{NEGM+16*qb+r}, v{NEGM+16*qb+r}, v{t}")
            k.e(f"v_sub_f32 v{SN+r}, v{SN+r}, v{t}")
            k.e(f"v_sub_f32 v{S+r}, v{S+r}, v{t}")
        ls = LS + 2 * p + qb
        for r in range(0, 16, 2):
            k.e(f"v_exp_f32 v{ET}, v{S+r}")
            k.e(f"v_exp_f32 v{ET+1}, v{S+r+1}")
            k.e("s_nop 0")
            if r == 0:
                k.e(f"v_add_f32 v{ls}, v{ET}, v{ET+1}")
            else:
                k.e(f"v_add_f32 v{ls}, v{ls}, v{ET}")
                k.e(f"v_add_f32 v{ls}, v{ls}, v{ET+1}")
            k.e(f"v_cvt_pk_bf16_f32 v{Pbuf(p,qb,r>>3)+((r&7)>>1)}, v{ET}, v{ET+1}")
    k.e("s_nop 1")
    k.e(f"s_setpc_b64 s[{S_RET}:{S_RET+1}]")

def gen_proj(k, tag, srd, RS, natural, dma_pre_issued, late=None):
    bp_off = 1024 if natural else 2048
    def dma(t):
        out = [f"s_add_u32 m0, s{S_WRING}, {(t&3)*4096}"]
        for i in range(4):
            if i == 0:
                out.append("s_nop 0")
                out.append(f"buffer_load_dwordx4 v{DW}, s[{srd}:{srd+3}], s{S_WOFF} offen lds")
            else:
                out.append(f"s_add_u32 s{S_WOFF}, s{S_WOFF}, {4*RS-1024}")
                out.append(f"buffer_load_dwordx4 v{DW}, s[{srd}:{srd+3}], s{S_WOFF} offen offset:{1024*i} lds")
        out.append(f"s_add_u32 s{S_WOFF}, s{S_WOFF}, {4*RS+3072}")
        return out
    def reads(t, tt):
        st = t & 1
        out = []
        for qb in range(2):
            d = XF + st * 8 + qb * 4
            out.append(f"ds_read_b128 a[{d}:{d+3}], v{XA} offset:{tt*2048 + qb*1024}")
        for db in range(4):
            for bp in range(2):
                d = WF + st * 16 + db * 4 + bp * 2
                out.append(f"ds_read_b64_tr_b16 a[{d}:{d+1}], v{WA+db} offset:{(t&3)*4096 + bp*bp_off}")
        return out
    def kstep(t_in_body, first, do_read_next, do_dma, vmn):
        t = t_in_body
        st = t & 1
        k.e(f"s_waitcnt vmcnt({vmn}) lgkmcnt(0)")
        rd = reads(t + 1, t + 1) if do_read_next else []
        dm = dma(t) if do_dma else []
        fill = [[] for _ in range(8)]
        for j, ins in enumerate(rd):
            fill[j // 2].append(ins)
        per = [dm[0:3], dm[3:5], dm[5:7], dm[7:]] if dm else [[], [], [], []]
        for j in range(4):
            fill[4 + j] += per[j]
        for db in range(4):
            for qb in range(2):
                d = PACC + (db * 2 + qb) * 16
                c = "0" if first else d
                k.e(mfma(d, WF + st * 16 + db * 4, XF + st * 8 + qb * 4, c, dfile='v', afile='a', bfile='a'))
                for f in fill[db * 2 + qb]: k.e(f)
    if not dma_pre_issued:
        for t in range(4):
            for ins in dma(t): k.e(ins)
    k.e("s_waitcnt vmcnt(12)")
    for ins in reads(0, 0): k.e(ins)
    for t in range(4):
        kstep(t, t == 0, True, True, 8)
    k.e(f"v_add_u32 v{XA}, 8192, v{XA}")
    k.e(f"s_mov_b32 s{S_CNT}, 6")
    k.lab(f"L_proj_{tag}")
    for t in range(4):
        kstep(t, False, True, True, 8)
    k.e(f"v_add_u32 v{XA}, 8192, v{XA}")
    k.e(f"s_sub_u32 s{S_CNT}, s{S_CNT}, 1")
    k.e(f"s_cmp_lg_u32 s{S_CNT}, 0")
    k.e(f"s_cbranch_scc1 L_proj_{tag}")
    nl = 0
    if late:
        for ins in late: k.e(ins)
        nl = sum(1 for x in late if x.startswith("buffer_load"))
    for t in range(4):
        kstep(t, False, t < 3, False, [8 + nl, 4 + nl, nl, nl][t])

def gen_attn(name="attn_kernel", debug=None, prof=False, l2pf=True):
    k = Em()
    nst = [0]
    def stamp():
        if not prof: return
        i = nst[0]; nst[0] += 1
        k.e(f"s_memtime s[{64+2*i}:{65+2*i}]")
        k.e(f"s_memrealtime s[100:101]")
        k.e("s_waitcnt lgkmcnt(0)")
        k.e(f"s_mov_b32 s{65+2*i}, s100")
    k.L.append(kernel_header(name))
    cscale = math.log2(math.e) / math.sqrt(128.0)
    tl_begin(k, prof)
    k(f"""
    s_cmp_ge_u32 s2, 256
    s_cbranch_scc1 L_at_done
    s_load_dwordx2 s[4:5], s[0:1], {KA_K}
    s_load_dwordx2 s[6:7], s[0:1], {KA_V}
    s_load_dwordx2 s[8:9], s[0:1], {KA_WQ}
    s_load_dwordx2 s[10:11], s[0:1], {KA_WO}
    s_load_dwordx2 s[12:13], s[0:1], {KA_WS}
    v_lshrrev_b32 v1, 6, v0
    v_and_b32 v0, 63, v0
    s_and_b32 s{S_G}, s2, 7
    v_readfirstlane_b32 s{S_W}, v1
    s_lshr_b32 s{S_RB}, s2, 3
    s_lshl_b32 s14, s{S_G}, 19          ; g*524288
    s_lshl_b32 s15, s{S_RB}, 16         ; rb*65536
    s_lshl_b32 s3, s{S_G}, 21           ; g*2MB
    s_add_u32 s3, s3, {SLAB_OFF}
    s_waitcnt lgkmcnt(0)
    """)
    stamp()
    srd_off(k, SRD_K, 4, 5, "s14", 524288)
    srd_off(k, SRD_V, 6, 7, "s14", 524288)
    srd(k, SRD_WQ, 8, 9, 4194304)
    srd(k, SRD_WO, 10, 11, 4194304)
    srd_off(k, SRD_X, 12, 13, "s15", 65536)
    srd_off(k, SRD_SL, 12, 13, "s3", 2097152)
    if l2pf:
        k(f"""
        s_lshl_b32 s14, s{S_W}, 6
        v_add_u32 v1, s14, v0               ; tid
        v_lshrrev_b32 v2, 4, v1
        v_and_b32 v3, 15, v1
        v_lshlrev_b32 v2, 13, v2
        v_lshl_add_u32 v250, v3, 6, v2
        s_lshl_b32 s14, s{S_RB}, 17         ; rb*16*8192
        s_lshl_b32 s15, s{S_G}, 10
        s_add_u32 s14, s14, s15
        buffer_load_dword v246, v250, s[{SRD_WQ}:{SRD_WQ+3}], s14 offen
        v_lshlrev_b32 v251, 6, v1           ; tid*64
        """)
    k(f"""
    v_lshrrev_b32 v1, 4, v0             ; l>>4 (0..3)
    v_and_b32 v2, 15, v0                ; p = l&15
    ; DV: (l>>4)*256 + ((p ^ ((l>>4)<<2))*16)
    v_lshlrev_b32 v3, 2, v1
    v_xor_b32 v3, v2, v3
    v_lshlrev_b32 v3, 4, v3
    v_lshl_add_u32 v{DV}, v1, 8, v3
    v_lshl_add_u32 v{DW}, v1, 13, v3
    """)
    for i in range(4):
        k(f"""
        v_add_u32 v4, {4*i}, v1
        v_xor_b32 v4, v2, v4
        v_lshlrev_b32 v4, 4, v4
        v_lshl_add_u32 v{DK+i}, v1, 8, v4
        """)
    k(f"""
    v_and_b32 v4, 31, v0
    v_lshrrev_b32 v5, 5, v0             ; hf
    v_xor_b32 v6, v5, v2
    v_lshlrev_b32 v7, 8, v4
    """)
    for t in range(8):
        k.e(f"v_xor_b32 v8, {2*t}, v6")
        k.e(f"v_lshl_add_u32 v{KA+t}, v8, 4, v7")
    k(f"""
    v_bfe_u32 v8, v0, 2, 2              ; r
    v_bfe_u32 v9, v0, 4, 1              ; csub
    v_and_b32 v10, 3, v0                ; c
    v_lshl_add_u32 v11, v5, 2, v8       ; 4hf + r
    v_lshlrev_b32 v11, 8, v11
    v_lshl_add_u32 v11, v9, 5, v11
    v_lshl_add_u32 v12, v10, 3, v11
    """)
    for db in range(4):
        k.e(f"v_xor_b32 v13, {db}, v8")
        k.e(f"v_lshl_add_u32 v13, v13, 6, v12")
        k.e(f"v_add_u32 v{VA+db}, {VRING}, v13")
    k(f"""
    s_and_b32 s14, s{S_W}, 1
    s_lshl_b32 s14, s14, 14
    s_lshr_b32 s15, s{S_W}, 1
    s_mul_i32 s15, s15, {131072-32768}
    s_add_u32 s{S_WRING}, s14, s15
    s_add_u32 s{S_WRING}, s{S_WRING}, 32768
    v_lshl_add_u32 v11, v5, 3, v8
    v_lshlrev_b32 v11, 8, v11
    v_lshl_add_u32 v11, v9, 5, v11
    v_and_b32 v13, 1, v10
    v_lshrrev_b32 v14, 1, v10
    v_lshl_or_b32 v13, v13, 1, v14      ; sigma(c)
    v_lshl_add_u32 v11, v13, 3, v11
    v_add_u32 v11, s{S_WRING}, v11
    """)
    for db in range(4):
        k.e(f"v_xor_b32 v13, {db}, v8")
        k.e(f"v_lshl_add_u32 v{WA+db}, v13, 6, v11")
    k(f"""
    v_lshlrev_b32 v15, 4, v0            ; lane*16
    v_add_u32 v{XA}, {XT}, v15
    s_lshl_b32 s14, s{S_W}, 14
    s_add_u32 m0, s14, {XT}
    s_nop 0
    """)
    for c4 in range(4):
        for i in range(4):
            so = "s14"
            k.e(f"buffer_load_dwordx4 v15, s[{SRD_X}:{SRD_X+3}], s14 offen offset:{1024*i} lds")
        if c4 < 3:
            k.e("s_add_u32 s14, s14, 4096")
            k.e("s_add_u32 m0, m0, 4096")
            k.e("s_nop 0")
    k(f"""
    s_lshl_b32 s14, s{S_G}, 2
    s_add_u32 s14, s14, s{S_W}
    s_lshl_b32 s{S_WOFF}, s14, 8
    """)
    def wdma(t, srd, RS):
        out = [f"s_add_u32 m0, s{S_WRING}, {(t&3)*4096}"]
        for i in range(4):
            if i == 0:
                out.append("s_nop 0")
                out.append(f"buffer_load_dwordx4 v{DW}, s[{srd}:{srd+3}], s{S_WOFF} offen lds")
            else:
                out.append(f"s_add_u32 s{S_WOFF}, s{S_WOFF}, {4*RS-1024}")
                out.append(f"buffer_load_dwordx4 v{DW}, s[{srd}:{srd+3}], s{S_WOFF} offen offset:{1024*i} lds")
        out.append(f"s_add_u32 s{S_WOFF}, s{S_WOFF}, {4*RS+3072}")
        return out
    k(f"""
    s_lshl_b32 s{S_KOFF}, s{S_W}, 12          ; w*4096
    s_mov_b32 s{S_M0K}, s{S_KOFF}
    s_add_u32 s{S_M0V}, s{S_KOFF}, {VRING}
    s_mov_b32 s{S_VOFF}, s{S_KOFF}
    """)
    def kdma(slot):
        out = [f"s_add_u32 m0, s{S_M0K}, {slot*16384}", "s_nop 0"]
        for i in range(4):
            out.append(f"buffer_load_dwordx4 v{DK+i}, s[{SRD_K}:{SRD_K+3}], s{S_KOFF} offen offset:{1024*i} lds")
        out.append(f"s_add_u32 s{S_KOFF}, s{S_KOFF}, 16384")
        return out
    def vdma(slot):
        out = [f"s_add_u32 m0, s{S_M0V}, {slot*16384}", "s_nop 0"]
        for i in range(4):
            out.append(f"buffer_load_dwordx4 v{DV}, s[{SRD_V}:{SRD_V+3}], s{S_VOFF} offen offset:{1024*i} lds")
        out.append(f"s_add_u32 s{S_VOFF}, s{S_VOFF}, 16384")
        return out
    for ins in kdma(0) + kdma(1): k.e(ins)
    for t in range(4):
        for ins in wdma(t, SRD_WQ, 8192): k.e(ins)
    k.e("s_waitcnt vmcnt(16)")
    k.e("s_barrier")
    stamp()
    late = []
    if l2pf:
        late = [f"s_lshl_b32 s14, s{S_RB}, 14",
                f"buffer_load_dword v247, v251, s[{SRD_K}:{SRD_K+3}], s14 offen",
                f"buffer_load_dword v248, v251, s[{SRD_V}:{SRD_V+3}], s14 offen",
                f"s_lshl_b32 s15, s{S_G}, 19",
                "s_add_u32 s14, s14, s15",
                f"buffer_load_dword v249, v251, s[{SRD_WO}:{SRD_WO+3}], s14 offen"]
    gen_proj(k, "q", SRD_WQ, 8192, True, True, late)
    stamp()
    k(f"""
    s_waitcnt vmcnt({3 if l2pf else 0}) lgkmcnt(0)
    s_barrier
    """)
    for ins in vdma(0) + kdma(2) + vdma(1): k.e(ins)
    k.e(f"s_mov_b32 s14, {f2h(cscale)}")
    k.e(f"s_mov_b32 s15, {f2h(cscale)}")
    k.e("s_nop 7")
    for db in range(4):
        for qb in range(2):
            a = PACC + (db * 2 + qb) * 16
            for r in range(0, 16, 2):
                k.e(f"v_pk_mul_f32 v[{a+r}:{a+r+1}], v[{a+r}:{a+r+1}], s[14:15]")
            for r in range(0, 16, 2):
                q = QF + qb * 32 + (2 * db + (r >> 3)) * 4 + ((r & 7) >> 1)
                k.e(f"v_cvt_pk_bf16_f32 v{q}, v{a+r}, v{a+r+1}")
    if debug == "q":
        k(f"""
        s_lshl_b32 s14, s{S_RB}, 2
        s_add_u32 s14, s14, s{S_W}
        s_mul_i32 s14, s14, 16384
        v_lshlrev_b32 v1, 2, v0
        """)
        for i in range(64):
            k.e(f"buffer_store_dword v{QF+i}, v1, s[{SRD_SL}:{SRD_SL+3}], s14 offen offset:{(i&15)*256}")
            if (i & 15) == 15: k.e("s_add_u32 s14, s14, 4096")
        k.e("s_waitcnt vmcnt(0)")
        k.e("s_endpgm")
    for t in range(4):
        for ins in k_read(0, t, t): k.e(ins)
    for t in range(8):
        k.e(f"s_waitcnt lgkmcnt({min(3, 7-t)})")
        for qb in range(2):
            d = Sbuf(0, qb)
            k.e(mfma(d, KF + (t & 3) * 4, QF + qb * 32 + t * 4, "0" if t == 0 else d))
        if t + 4 < 8:
            for ins in k_read(0, t + 4, t + 4): k.e(ins)
    for i in range(128):
        k.e(f"v_accvgpr_write_b32 a{OA+i}, 0")
    k.e(f"v_mov_b32 v{LL}, 0")
    k.e(f"v_mov_b32 v{LL+1}, 0")
    k.e(f"v_mov_b32 v{LS+2}, 0")
    k.e(f"v_mov_b32 v{LS+3}, 0")
    k.e(f"s_mov_b32 s{S_THR}, {f2h(2.0**THR_LOG2)}")
    for qb in range(2):
        S = Sbuf(0, qb)
        t, t2 = T0, T0 + 1
        k.e(f"v_max3_f32 v{t}, v{S}, v{S+1}, v{S+2}")
        for r in range(3, 15, 2):
            k.e(f"v_max3_f32 v{t}, v{t}, v{S+r}, v{S+r+1}")
        k.e(f"v_max_f32 v{t}, v{t}, v{S+15}")
        k.e(f"v_mov_b32 v{t2}, v{t}")
        k.e("s_nop 1")
        k.e(f"v_permlane32_swap_b32 v{t2}, v{t}")
        k.e(f"v_max_f32 v{t}, v{t}, v{t2}")
        for r in range(16):
            k.e(f"v_sub_f32 v{S+r}, v{S+r}, v{t}")
            k.e(f"v_sub_f32 v{NEGM+16*qb+r}, 0, v{t}")
    k.e("s_waitcnt vmcnt(8)")
    k.e("s_barrier")
    stamp()
    for ins in k_read(1, 0, 0) + k_read(1, 1, 1): k.e(ins)
    rare_sites = []
    def dma_plan(lst):
        return {8: [lst[0]], 11: [lst[2]], 15: [lst[3]], 19: [lst[4]], 23: [lst[5]], 27: [lst[6]]}
    def step(u, rid, **kw):
        S = dict(do_qk=True, do_pv=True, qk_next=True, pv_next=True, dma=None, pre=None, prev7=3)
        S.update(kw)
        lk = Look(u, S['do_qk'], S['do_pv'], S['qk_next'], S['pv_next'])
        lk.prev7 = S['prev7']
        gen_step(k, u, S['do_qk'], S['do_pv'], True, lk, S['dma'], S['pre'], rid)
        rare_sites.append((rid, u & 1))
    step(0, "s0", do_pv=False, dma=dma_plan(kdma(3)), prev7=1)
    k.e(f"s_mov_b32 s{S_CNT}, 7")
    k.lab("L_main")
    for uu in range(1, 9):
        j = uu >> 1
        pre = None
        if uu & 1 == 0:
            pre = ["s_waitcnt vmcnt(8)", "s_barrier"]
            dm = dma_plan(kdma((j + 3) & 3))
        else:
            dm = dma_plan(vdma((j + 2) & 3))
        step(uu, f"m{uu}", dma=dm, pre=pre)
    k.e(f"s_sub_u32 s{S_CNT}, s{S_CNT}, 1")
    k.e(f"s_cmp_lg_u32 s{S_CNT}, 0")
    k.e(f"s_cbranch_scc1 L_main")
    step(57, "t57", dma=dma_plan(vdma((28 + 2) & 3)))
    step(58, "t58", pre=["s_waitcnt vmcnt(8)", "s_barrier"])
    step(59, "t59", dma=dma_plan(vdma((29 + 2) & 3)))
    step(60, "t60", pre=["s_waitcnt vmcnt(4)", "s_barrier"])
    step(61, "t61")
    step(62, "t62", pre=["s_waitcnt vmcnt(0)", "s_barrier"], qk_next=False)
    step(63, "t63", do_qk=False, qk_next=False, prev7=2)
    p = 63 & 1
    k.e(f"v_add_f32 v{LL}, v{LL}, v{LS+2*p}")
    k.e(f"v_add_f32 v{LL+1}, v{LL+1}, v{LS+2*p+1}")
    for i in range(8):
        nxt = v_read(63, i + 2, i + 2) if i + 2 < 8 else []
        prevn = 2 if (i == 0 or i + 1 < 8) else 0
        k.e(f"s_waitcnt lgkmcnt({prevn})")
        db, ks = i >> 1, i & 1
        for qb in range(2):
            d = OA + (db * 2 + qb) * 16
            k.e(mfma(d, VF + (i & 3) * 4, Pbuf(p, qb, ks), d, dfile='a'))
            if qb == 0:
                for ins in nxt: k.e(ins)
    k.e("s_waitcnt lgkmcnt(0)")
    stamp()
    k(f"""
    s_waitcnt lgkmcnt(0)
    s_barrier
    s_lshl_b32 s{S_WRING}, s{S_W}, 14
    v_lshrrev_b32 v1, 4, v0
    v_mul_u32_u24 v1, {1024-256}, v1
    v_add_u32 v{DW}, v{DV}, v1
    ; soffset = g*512*1024 + w*256
    s_lshl_b32 s{S_WOFF}, s{S_G}, 19
    s_lshl_b32 s14, s{S_W}, 8
    s_add_u32 s{S_WOFF}, s{S_WOFF}, s14
    """)
    for t in range(4):
        for ins in wdma(t, SRD_WO, 1024): k.e(ins)
    k.e(f"s_sub_u32 s14, s{S_WRING}, {VRING}")
    for db in range(4):
        k.e(f"v_add_u32 v{WA+db}, s14, v{VA+db}")
    for qb in range(2):
        k.e(f"v_mov_b32 v{T0+qb}, v{LL+qb}")
    k.e("s_nop 1")
    for qb in range(2):
        k.e(f"v_permlane32_swap_b32 v{T0+qb}, v{LL+qb}")
    for qb in range(2):
        k.e(f"v_add_f32 v{LL+qb}, v{LL+qb}, v{T0+qb}")
    for qb in range(2):
        k.e(f"v_rcp_f32 v{LL+qb}, v{LL+qb}")
    k(f"""
    s_lshl_b32 s14, s{S_W}, 14
    s_add_u32 s14, s14, {XT}
    v_lshlrev_b32 v15, 4, v0
    v_add_u32 v14, s14, v15
    v_add_u32 v{XA}, {XT}, v15
    """)
    for db in range(4):
        for qb in range(2):
            for ks in range(2):
                tb = S0 + ((db * 4 + qb * 2 + ks) & 3) * 16
                for r in range(8):
                    k.e(f"v_accvgpr_read_b32 v{tb+r}, a{OA+(db*2+qb)*16+ks*8+r}")
                for r in range(8):
                    k.e(f"v_mul_f32 v{tb+r}, v{tb+r}, v{LL+qb}")
                for r in range(0, 8, 2):
                    k.e(f"v_cvt_pk_bf16_f32 v{tb+8+r//2}, v{tb+r}, v{tb+r+1}")
                k.e(f"ds_write_b128 v14, v[{tb+8}:{tb+11}] offset:{(2*db+ks)*2048 + qb*1024}")
    if debug == "o":
        k("""
        s_waitcnt vmcnt(0) lgkmcnt(0)
        s_barrier
        """)
        k(f"""
        s_lshl_b32 s14, s{S_RB}, 16
        s_lshl_b32 s15, s{S_W}, 14
        s_add_u32 s14, s14, s15
        v_add_u32 v13, s15, v{XA}
        """)
        for i in range(16):
            k.e(f"ds_read_b128 v[16:19], v13 offset:{i*1024}")
            k.e("s_waitcnt lgkmcnt(0)")
            k.e(f"buffer_store_dwordx4 v[16:19], v15, s[{SRD_SL}:{SRD_SL+3}], s14 offen")
            k.e("s_add_u32 s14, s14, 1024")
            k.e("s_waitcnt vmcnt(0)")
        k.e("s_endpgm")
    k("""
    s_waitcnt lgkmcnt(0)
    s_barrier
    """)
    stamp()
    gen_proj(k, "o", SRD_WO, 1024, False, True)
    stamp()
    k(f"""
    s_nop 7
    v_and_b32 v1, 31, v0
    v_lshrrev_b32 v2, 5, v0
    v_lshlrev_b32 v1, 10, v1             ; q*1024
    v_lshl_add_u32 v1, v2, 4, v1         ; + hf*16
    s_lshl_b32 s14, s{S_RB}, 16          ; rb*64*1024
    s_lshl_b32 s15, s{S_W}, 8
    s_add_u32 s14, s14, s15
    s_add_u32 s15, s14, 32768            ; qb=1
    s_nop 7
    """)
    for cb in range(4):
        for qb in range(2):
            a = PACC + (cb * 2 + qb) * 16
            o = QF + (cb * 2 + qb) * 8
            for r in range(0, 16, 2):
                k.e(f"v_cvt_pk_bf16_f32 v{o+r//2}, v{a+r}, v{a+r+1}")
            k.e("s_nop 1")
            for pr in range(2):
                k.e(f"v_permlane32_swap_b32 v{o+4*pr}, v{o+4*pr+2}")
                k.e(f"v_permlane32_swap_b32 v{o+4*pr+1}, v{o+4*pr+3}")
            for pr in range(2):
                k.e(f"buffer_store_dwordx4 v[{o+4*pr}:{o+4*pr+3}], v1, s[{SRD_SL}:{SRD_SL+3}], s{14+qb} offen offset:{cb*64+pr*32}")
    if prof:
        k.e("s_waitcnt vmcnt(0)")
        stamp()
        k.e(f"s_load_dwordx2 s[12:13], s[0:1], {KA_WS}")
        k.e("s_waitcnt lgkmcnt(0)")
        srd_off(k, 4, 12, 13, 64 << 20, 1 << 20)
        k.e(f"s_lshl_b32 s14, s2, 2")
        k.e(f"s_add_u32 s14, s14, s{S_W}")
        k.e(f"s_lshl_b32 s14, s14, 6")
        for i in range(nst[0]):
            k.e(f"v_mov_b32 v2, s{64+2*i}")
            k.e(f"v_mov_b32 v3, s{65+2*i}")
            k.e(f"v_mov_b32 v1, {8*i}")
            k.e(f"buffer_store_dwordx2 v[2:3], v1, s[4:7], s14 offen")
        tl_end(k, prof, 2)
    k.lab("L_at_done")
    k.e("s_endpgm")
    for rid, p in rare_sites:
        k.lab(f"L_rare_{rid}")
        k.e(f"s_call_b64 s[{S_RET}:{S_RET+1}], L_raresub_{p}")
        k.e(f"s_branch L_back_{rid}")
    gen_rare(k, 0)
    gen_rare(k, 1)
    return k.text(), kernel_desc(name, 512, 102, 256), f"; @launch kernel={name} grid=(256,1,1) block=(256,1,1) lds=163840"
```

```python
from common import *
import struct
LOG2E = 1.4426950408889634
def f2h(x):
    return "0x%08x" % struct.unpack("<I", struct.pack("<f", x))[0]

def gen_fin(prof=False, kidx=2, PF=10, pfwave=True):
    name = "fin_kernel"
    RS, NKS, NKST = 4096, 28, 112
    NS, NB = PF + 2, PF + 1
    ACC, AF, BF = 64, 128, 144
    SL = 20
    SUM = 232
    XR = 248
    k = Em()
    k.L.append(kernel_header(name))
    tl_begin(k, prof)
    nst = [0]
    def stamp():
        if not prof: return
        i = nst[0]; nst[0] += 1
        k.e(f"s_memtime s[{64+2*i}:{65+2*i}]")
        k.e(f"s_memrealtime s[100:101]")
        k.e("s_waitcnt lgkmcnt(0)")
        k.e(f"s_mov_b32 s{65+2*i}, s100")
    stamp()
    k(f"""
    s_cmp_ge_u32 s2, 256
    s_cbranch_scc1 L_fi_done
    s_load_dwordx2 s[4:5], s[0:1], {KA_W2}
    s_load_dwordx2 s[6:7], s[0:1], {KA_WS}
    s_load_dwordx2 s[8:9], s[0:1], {KA_B2}
    s_load_dwordx2 s[10:11], s[0:1], {KA_X}
    s_load_dwordx2 s[12:13], s[0:1], {KA_OUT}
    v_lshrrev_b32 v1, 6, v0
    v_and_b32 v2, 63, v0               ; lane
    s_and_b32 s47, s2, 7               ; xcd
    v_readfirstlane_b32 s40, v1
    s_lshr_b32 s48, s2, 3              ; idx
    s_and_b32 s42, s47, 1
    s_lshl_b32 s42, s42, 2
    s_and_b32 s49, s48, 3
    s_add_u32 s42, s42, s49
    s_lshr_b32 s41, s47, 1
    s_lshl_b32 s41, s41, 3
    s_lshr_b32 s49, s48, 2
    s_add_u32 s41, s41, s49
    s_waitcnt lgkmcnt(0)
    """)
    srd(k, 16, 4, 5, 1792 * 4096)
    srd(k, 20, 6, 7, 8 << 20)
    srd(k, 24, 8, 9, 2048 * 2)
    srd(k, 28, 10, 11, 2097152)
    srd(k, 32, 12, 13, 2097152)
    srd_off(k, 36, 6, 7, SLAB_OFF, 16 << 20)
    k(f"""
    s_lshl_b32 s53, s41, 16
    s_lshr_b32 s55, s42, 1
    s_lshl_b32 s55, s55, 14
    s_add_u32 s53, s53, s55
    s_and_b32 s55, s42, 1
    s_lshl_b32 s55, s55, 13
    s_add_u32 s53, s53, s55
    """)
    if pfwave:
        k(f"""
        s_cmp_lt_u32 s40, 4
        s_cbranch_scc1 L_fi_work
        v_lshrrev_b32 v3, 1, v2
        v_lshlrev_b32 v3, 12, v3
        v_and_b32 v4, 1, v2
        v_lshl_add_u32 v16, v4, 6, v3
        s_and_b32 s56, s48, 3
        s_mul_i32 s56, s56, {448*RS}
        s_lshl_b32 s57, s41, 7
        s_add_u32 s56, s56, s57
        v_lshlrev_b32 v17, 6, v2            ; lane*64
        s_lshl_b32 s58, s42, 1
        s_mul_i32 s58, s58, {NKST*1024}
        s_add_u32 s58, s58, {UF_OFF}
        s_lshr_b32 s57, s48, 2
        s_mul_i32 s57, s57, 28672
        s_add_u32 s58, s58, s57
        """)
        for i in range(14):
            k.e(f"buffer_load_dword v{20+i}, v16, s[16:19], s56 offen")
            k.e(f"s_add_u32 s56, s56, {32*RS}")
            if i < 7:
                k.e(f"buffer_load_dword v{40+i}, v17, s[20:23], s58 offen")
                k.e(f"s_add_u32 s58, s58, 4096")
        for g in range(8):
            for hh in range(2):
                k.e(f"s_add_u32 s56, s53, {g*2097152 + hh*4096}")
                k.e(f"buffer_load_dword v{48+(2*g+hh)}, v17, s[36:39], s56 offen")
        k.e("s_waitcnt vmcnt(0)")
        k.e("s_endpgm")
        k.lab("L_fi_work")
    k(f"""
    v_lshrrev_b32 v3, 3, v2
    v_and_b32 v4, 7, v2
    v_lshrrev_b32 v5, 1, v3
    v_and_b32 v5, 1, v5
    v_lshlrev_b32 v5, 2, v5
    v_xor_b32 v4, v4, v5
    v_lshlrev_b32 v3, 12, v3
    v_lshl_add_u32 v10, v4, 4, v3       ; voffA
    v_lshlrev_b32 v11, 4, v2
    v_lshrrev_b32 v3, 5, v2             ; hf
    v_bfe_u32 v4, v2, 4, 1
    v_bfe_u32 v5, v2, 2, 2
    v_and_b32 v6, 3, v2
    v_lshlrev_b32 v7, 2, v3
    v_add_u32 v7, v7, v5
    v_lshlrev_b32 v7, 7, v7
    v_lshl_add_u32 v7, v4, 5, v7
    v_lshl_add_u32 v7, v6, 3, v7
    s_mul_i32 s46, s40, {NS*2048}
    v_add_u32 v7, s46, v7
    v_lshrrev_b32 v8, 1, v5
    v_lshlrev_b32 v9, 6, v8
    v_add_u32 v12, v7, v9
    v_xor_b32 v9, 64, v9
    v_add_u32 v13, v7, v9
    s_mul_i32 s43, s40, {NKS*16*RS}
    s_lshl_b32 s49, s41, 7
    s_add_u32 s43, s43, s49
    s_add_u32 s50, s43, {8*RS-1024}
    s_lshl_b32 s44, s42, 1
    s_mul_i32 s44, s44, {NKST}
    s_mul_i32 s49, s40, {NKS}
    s_add_u32 s44, s44, s49
    s_lshl_b32 s44, s44, 10
    s_add_u32 s44, s44, {UF_OFF}
    s_add_u32 s45, s44, {NKST*1024}
    v_and_b32 v14, 31, v2
    s_lshr_b32 s51, s40, 1
    s_lshl_b32 s51, s51, 5
    v_add_u32 v14, s51, v14             ; row
    v_lshlrev_b32 v15, 1, v14           ; b2 offset
    v_lshlrev_b32 v16, 10, v14
    v_lshl_add_u32 v16, v3, 4, v16
    s_and_b32 s52, s40, 1
    s_lshl_b32 s52, s52, 5
    v_add_u32 v16, s52, v16
    s_lshl_b32 s51, s41, 16
    s_lshl_b32 s52, s42, 7
    s_add_u32 s51, s51, s52
    s_lshl_b32 s54, s41, 7              ; b2 base
    s_lshl_b32 s55, s40, 10
    s_add_u32 s53, s53, s55
    """)
    vm = Ctr(63)
    def issue_loads(ks):
        slot = ks % NS
        k.e(f"s_add_u32 m0, s46, {slot*2048}")
        bs = BF + (ks % NB) * 8
        k.e(f"buffer_load_dwordx4 v[{bs}:{bs+3}], v11, s[20:23], s44 offen")
        vm.issue(("B", ks))
        k.e(f"buffer_load_dwordx4 v10, s[16:19], s43 offen lds")
        vm.issue(("A", ks))
        k.e(f"buffer_load_dwordx4 v10, s[16:19], s50 offen offset:1024 lds")
        vm.issue(("A", ks))
        k.e(f"buffer_load_dwordx4 v[{bs+4}:{bs+7}], v11, s[20:23], s45 offen")
        vm.issue(("B", ks))
        k.e(f"s_add_u32 s43, s43, {16*RS}")
        k.e(f"s_add_u32 s50, s50, {16*RS}")
        k.e(f"s_add_u32 s44, s44, 1024")
        k.e(f"s_add_u32 s45, s45, 1024")
    def tr_reads(ks):
        slot = ks % NS
        out = []
        for mb in range(2):
            for bp in range(2):
                d = AF + (ks & 1) * 8 + mb * 4 + bp * 2
                out.append(f"ds_read_b64_tr_b16 v[{d}:{d+1}], v{12+mb} offset:{slot*2048 + bp*1024}")
        return out
    for ks in range(PF):
        issue_loads(ks)
    k.e("buffer_load_ushort v17, v15, s[24:27], s54 offen"); vm.issue(("E", 0))
    k.e(f"buffer_load_dwordx4 v[{XR}:{XR+3}], v16, s[28:31], s51 offen"); vm.issue(("E", 0))
    k.e(f"buffer_load_dwordx4 v[{XR+4}:{XR+7}], v16, s[28:31], s51 offen offset:64"); vm.issue(("E", 0))
    n = vm.need(lambda t: t == ("A", 0))
    k.e(f"s_waitcnt vmcnt({n})")
    stamp()
    for ins in tr_reads(0): k.e(ins)
    NSL = 11
    def slab_issue(i):
        g, p = i >> 1, i & 1
        r = SL + (i % NSL) * 4
        k.e(f"s_add_u32 s55, s53, {g*2097152 + p*4096}")
        k.e(f"buffer_load_dwordx4 v[{r}:{r+3}], v11, s[36:39], s55 offen")
        vm.issue(("S", i))
    def slab_acc(i):
        g, p = i >> 1, i & 1
        r = SL + (i % NSL) * 4
        out = []
        for j in range(4):
            if g == 0:
                out.append(f"v_lshlrev_b32 v{SUM+p*8+2*j}, 16, v{r+j}")
                out.append(f"v_and_b32 v{SUM+p*8+2*j+1}, 0xffff0000, v{r+j}")
            else:
                out.append(f"v_lshlrev_b32 v{4+2*(j&1)}, 16, v{r+j}")
                out.append(f"v_and_b32 v{5+2*(j&1)}, 0xffff0000, v{r+j}")
                out.append(f"v_pk_add_f32 v[{SUM+p*8+2*j}:{SUM+p*8+2*j+1}], v[{SUM+p*8+2*j}:{SUM+p*8+2*j+1}], v[{4+2*(j&1)}:{5+2*(j&1)}]")
        return out
    for ks in range(NKS):
        sl_do = ks - PF if 0 <= ks - PF < 16 else None
        n = vm.need(lambda t: (t[0] == "A" and t[1] <= ks + 1) or (t[0] == "B" and t[1] <= ks) or (sl_do is not None and t[0] == "S" and t[1] <= sl_do))
        k.e("s_waitcnt lgkmcnt(0)" if n is None else f"s_waitcnt vmcnt({n}) lgkmcnt(0)")
        bs = BF + (ks % NB) * 8
        fill = tr_reads(ks + 1) if ks + 1 < NKS else []
        acc = slab_acc(sl_do) if sl_do is not None else []
        mf = []
        for mb in range(2):
            for nb in range(2):
                a = AF + (ks & 1) * 8 + mb * 4
                b = bs + nb * 4
                d = ACC + (mb * 2 + nb) * 16
                c = "0" if ks == 0 else f"v[{d}:{d+15}]"
                mf.append(f"v_mfma_f32_32x32x16_bf16 v[{d}:{d+15}], v[{b}:{b+3}], v[{a}:{a+3}], {c}")
        k.e(mf[0])
        for ins in fill[:2]: k.e(ins)
        for ins in acc[:4]: k.e(ins)
        k.e(mf[1])
        for ins in fill[2:]: k.e(ins)
        for ins in acc[4:8]: k.e(ins)
        k.e(mf[2])
        if ks + PF < NKS:
            issue_loads(ks + PF)
        if ks < 16:
            slab_issue(ks)
        k.e(mf[3])
        for ins in acc[8:]: k.e(ins)
    rest = [i for i in range(16) if i + PF >= NKS]
    stamp()
    PS = 64 * 272
    k(f"""
    v_and_b32 v3, 31, v2
    s_movk_i32 s56, 272
    v_mul_lo_u32 v3, v3, s56
    v_lshrrev_b32 v4, 5, v2
    v_lshl_add_u32 v3, v4, 4, v3      ; + hf*16
    s_mul_i32 s57, s40, {PS}
    v_add_u32 v3, s57, v3
    v_mul_lo_u32 v8, v14, s56
    v_lshl_add_u32 v8, v4, 5, v8
    s_and_b32 s56, s40, 1
    s_lshl_b32 s56, s56, 6
    v_add_u32 v8, s56, v8             ; + pr*64
    s_barrier
    """)
    for mb in range(2):
        for nb in range(2):
            for b in range(4):
                r = ACC + (mb * 2 + nb) * 16 + b * 4
                k.e(f"ds_write_b128 v3, v[{r}:{r+3}] offset:{mb*32*272 + nb*128 + b*32}")
    if rest:
        n = vm.need(lambda t: t[0] == "S")
        if n is not None: k.e(f"s_waitcnt vmcnt({n})")
        for i in rest:
            for ins in slab_acc(i): k.e(ins)
    k(f"""
    s_waitcnt vmcnt(0) lgkmcnt(0)
    s_barrier
    """)
    for p in range(2):
        for src in range(4):
            r = ACC + p * 32 + src * 8
            k.e(f"ds_read_b128 v[{r}:{r+3}], v8 offset:{src*PS + p*128}")
            k.e(f"ds_read_b128 v[{r+4}:{r+7}], v8 offset:{src*PS + p*128 + 16}")
    for p in range(2):
        for j in range(4):
            k.e(f"v_lshlrev_b32 v{128+p*8+2*j}, 16, v{XR+p*4+j}")
            k.e(f"v_and_b32 v{129+p*8+2*j}, 0xffff0000, v{XR+p*4+j}")
    k.e("v_lshlrev_b32 v18, 16, v17")
    k.e("v_mov_b32 v19, v18")
    k.e(f"s_mov_b32 s56, {f2h(-LOG2E)}")
    k.e(f"s_mov_b32 s57, {f2h(-LOG2E)}")
    k.e("s_waitcnt lgkmcnt(0)")
    for p in range(2):
        Y = ACC + p * 32
        for i in range(0, 8, 2):
            k.e(f"v_pk_add_f32 v[{Y+i}:{Y+i+1}], v[{Y+i}:{Y+i+1}], v[{Y+8+i}:{Y+9+i}]")
            k.e(f"v_pk_add_f32 v[{Y+16+i}:{Y+17+i}], v[{Y+16+i}:{Y+17+i}], v[{Y+24+i}:{Y+25+i}]")
        for i in range(0, 8, 2):
            k.e(f"v_pk_add_f32 v[{Y+i}:{Y+i+1}], v[{Y+i}:{Y+i+1}], v[{Y+16+i}:{Y+17+i}]")
        for i in range(0, 8, 2):
            k.e(f"v_pk_add_f32 v[{Y+i}:{Y+i+1}], v[{Y+i}:{Y+i+1}], v[18:19]")
    for p in range(2):
        Y = ACC + p * 32; T = Y + 8
        for i in range(0, 8, 2):
            k.e(f"v_pk_mul_f32 v[{T+i}:{T+i+1}], v[{Y+i}:{Y+i+1}], s[56:57]")
    for p in range(2):
        T = ACC + p * 32 + 8
        for i in range(8): k.e(f"v_exp_f32 v{T+i}, v{T+i}")
    for p in range(2):
        T = ACC + p * 32 + 8
        for i in range(8): k.e(f"v_add_f32 v{T+i}, 1.0, v{T+i}")
    for p in range(2):
        T = ACC + p * 32 + 8
        for i in range(8): k.e(f"v_rcp_f32 v{T+i}, v{T+i}")
    for p in range(2):
        Y = ACC + p * 32; T = Y + 8
        for i in range(0, 8, 2):
            k.e(f"v_pk_mul_f32 v[{Y+i}:{Y+i+1}], v[{Y+i}:{Y+i+1}], v[{T+i}:{T+i+1}]")
    for p in range(2):
        Y = ACC + p * 32
        for i in range(0, 8, 2):
            k.e(f"v_pk_fma_f32 v[{Y+i}:{Y+i+1}], v[{Y+i}:{Y+i+1}], v[{SUM+p*8+i}:{SUM+p*8+i+1}], v[{128+p*8+i}:{129+p*8+i}]")
    for p in range(2):
        Y = ACC + p * 32
        for i in range(0, 8, 2):
            k.e(f"v_cvt_pk_bf16_f32 v{40+p*4+i//2}, v{Y+i}, v{Y+i+1}")
        k.e(f"buffer_store_dwordx4 v[{40+p*4}:{43+p*4}], v16, s[32:35], s51 offen offset:{64*p}")
    if prof:
        k.e("s_waitcnt vmcnt(0)")
        stamp()
        k.e(f"s_load_dwordx2 s[12:13], s[0:1], {KA_WS}")
        k.e("s_waitcnt lgkmcnt(0)")
        srd_off(k, 4, 12, 13, 68 << 20, 1 << 20)
        k.e(f"s_lshl_b32 s14, s2, 2")
        k.e(f"s_add_u32 s14, s14, s40")
        k.e(f"s_lshl_b32 s14, s14, 6")
        for i in range(nst[0]):
            k.e(f"v_mov_b32 v2, s{64+2*i}")
            k.e(f"v_mov_b32 v3, s{65+2*i}")
            k.e(f"v_mov_b32 v1, {8*i}")
            k.e(f"buffer_store_dwordx2 v[2:3], v1, s[4:7], s14 offen")
    tl_end(k, prof, kidx)
    k.lab("L_fi_done")
    k.e("s_endpgm")
    lds = max(4 * NS * 2048, 4 * 64 * 272)
    nthr = 320 if pfwave else 256
    return k.text(), kernel_desc(name, 256, 102 if prof else 64, 256), f"; @launch kernel={name} grid=(256,1,1) block=({nthr},1,1) lds={lds}"
```

```python
from common import *

LOG2E = 1.4426950408889634
import struct
def f2h(x):
    return "0x%08x" % struct.unpack("<I", struct.pack("<f", x))[0]

def bf16_round_inplace(k, a, b, t):
    k.e(f"v_cvt_pk_bf16_f32 v{t}, v{a}, v{b}")
    k.e(f"v_lshlrev_b32 v{a}, 16, v{t}")
    k.e(f"v_and_b32 v{b}, 0xffff0000, v{t}")

def gen_g(which, prof=False, PFG=10, l2pf=True, kidx=None):
    name = "g1_kernel" if which == 1 else "g2_kernel"
    RS = 3584 if which == 1 else 4096
    NKS = 32 if which == 1 else 28
    NKST = 128 if which == 1 else 112
    BOFF = HF_OFF if which == 1 else UF_OFF
    NWG = 224 if which == 1 else 256
    MT_PER = 7 if which == 1 else 8
    ASIZE = 2048 * 3584 if which == 1 else 1792 * 4096
    PF, NS, NB = PFG, PFG + 2, PFG + 1
    ACC = 64
    AF = 128
    BF = 144
    k = Em()
    k.L.append(kernel_header(name))
    P = name[:2]
    tl_begin(k, prof)
    nst = [0]
    def stamp():
        if not prof: return
        i = nst[0]; nst[0] += 1
        k.e(f"s_memtime s[{64+2*i}:{65+2*i}]")
        k.e(f"s_memrealtime s[100:101]")
        k.e("s_waitcnt lgkmcnt(0)")
        k.e(f"s_mov_b32 s{65+2*i}, s100")
    stamp()
    k(f"""
    s_cmp_ge_u32 s2, {NWG}
    s_cbranch_scc1 L_{P}_done
    s_load_dwordx2 s[4:5], s[0:1], {KA_W1 if which==1 else KA_W2}
    s_load_dwordx2 s[6:7], s[0:1], {KA_WS}
    s_load_dwordx2 s[8:9], s[0:1], {KA_B1 if which==1 else KA_B2}
    s_load_dwordx2 s[10:11], s[0:1], {KA_X}
    s_load_dwordx2 s[12:13], s[0:1], {KA_OUT}
    v_lshrrev_b32 v1, 6, v0
    v_and_b32 v2, 63, v0               ; lane
    s_nop 0
    v_readfirstlane_b32 s40, v1
    s_and_b32 s47, s2, 7               ; xcd
    s_lshr_b32 s48, s2, 3              ; idx
    s_and_b32 s42, s47, 1
    s_lshl_b32 s42, s42, 2
    s_and_b32 s49, s48, 3
    s_add_u32 s42, s42, s49
    s_lshr_b32 s41, s47, 1
    s_mul_i32 s41, s41, {MT_PER}
    s_lshr_b32 s49, s48, 2
    s_add_u32 s41, s41, s49            ; mt
    s_waitcnt lgkmcnt(0)
    """)
    srd(k, 16, 4, 5, ASIZE)
    srd(k, 20, 6, 7, 8 << 20)
    srd(k, 24, 8, 9, 1792*2 if which == 1 else 2048*2)
    if which == 2:
        srd(k, 28, 10, 11, 2097152)
        srd(k, 32, 12, 13, 2097152)
        srd_off(k, 36, 6, 7, SLAB_OFF, 16 << 20)
    k(f"""
    v_lshrrev_b32 v3, 3, v2
    v_and_b32 v4, 7, v2
    v_lshrrev_b32 v5, 1, v3
    v_and_b32 v5, 1, v5
    v_lshlrev_b32 v5, 2, v5
    v_xor_b32 v4, v4, v5
    s_movk_i32 s49, {RS}
    v_mul_lo_u32 v3, v3, s49
    v_lshl_add_u32 v10, v4, 4, v3       ; v10 = voffA
    v_lshlrev_b32 v11, 4, v2
    v_lshrrev_b32 v3, 5, v2             ; hf
    v_bfe_u32 v4, v2, 4, 1              ; csub
    v_bfe_u32 v5, v2, 2, 2              ; r
    v_and_b32 v6, 3, v2                 ; c
    v_lshlrev_b32 v7, {3 if which==1 else 2}, v3
    v_add_u32 v7, v7, v5
    v_lshlrev_b32 v7, 7, v7             ; *128
    v_lshl_add_u32 v7, v4, 5, v7        ; + csub*32
    v_lshl_add_u32 v7, v6, 3, v7        ; + c*8
    s_mul_i32 s46, s40, {NS*2048}
    v_add_u32 v7, s46, v7
    v_lshrrev_b32 v8, 1, v5             ; r>>1
    v_lshlrev_b32 v9, 6, v8             ; (0 ^ (r>>1))*64
    v_add_u32 v12, v7, v9               ; v12 = vA[0]
    v_xor_b32 v9, 64, v9
    v_add_u32 v13, v7, v9               ; v13 = vA[1]
    s_mul_i32 s43, s40, {NKS*16*RS}     ; kw0*RS
    s_lshl_b32 s49, s41, 7
    s_add_u32 s43, s43, s49             ; sA
    s_add_u32 s50, s43, {8*RS-1024}     ; sA2
    s_lshl_b32 s44, s42, 1
    s_mul_i32 s44, s44, {NKST}
    s_mul_i32 s49, s40, {NKS}
    s_add_u32 s44, s44, s49
    s_lshl_b32 s44, s44, 10
    s_add_u32 s44, s44, {BOFF}          ; sB0
    s_add_u32 s45, s44, {NKST*1024}     ; sB1
    """)
    for i in range(64):
        k.e(f"v_mov_b32 v{ACC+i}, 0")
    vm = Ctr(63)
    def issue_loads(ks):
        slot = ks % NS
        k.e(f"s_add_u32 m0, s46, {slot*2048}")
        bs = BF + (ks % NB) * 8
        k.e(f"buffer_load_dwordx4 v[{bs}:{bs+3}], v11, s[20:23], s44 offen")
        vm.issue(("B", ks))
        k.e(f"buffer_load_dwordx4 v10, s[16:19], s43 offen lds")
        vm.issue(("A", ks))
        k.e(f"buffer_load_dwordx4 v10, s[16:19], s50 offen offset:1024 lds")
        vm.issue(("A", ks))
        k.e(f"buffer_load_dwordx4 v[{bs+4}:{bs+7}], v11, s[20:23], s45 offen")
        vm.issue(("B", ks))
        k.e(f"s_add_u32 s43, s43, {16*RS}")
        k.e(f"s_add_u32 s50, s50, {16*RS}")
        k.e(f"s_add_u32 s44, s44, 1024")
        k.e(f"s_add_u32 s45, s45, 1024")
    def tr_reads(ks):
        slot = ks % NS
        out = []
        for mb in range(2):
            for bp in range(2):
                d = AF + (ks & 1) * 8 + mb * 4 + bp * 2
                off = slot * 2048 + bp * (512 if which == 1 else 1024)
                out.append(f"ds_read_b64_tr_b16 v[{d}:{d+1}], v{12+mb} offset:{off}")
        return out
    extra_loads = []
    if which == 1:
        k(f"""
        s_lshr_b32 s51, s40, 1
        s_lshl_b32 s51, s51, 6
        s_lshl_b32 s52, s41, 7          ; mt*64*2
        s_add_u32 s51, s51, s52
        v_lshrrev_b32 v3, 5, v2
        v_lshlrev_b32 v14, 3, v3
        """)
        for b in range(4):
            extra_loads.append((f"buffer_load_dwordx2 v[{20+2*b}:{21+2*b}], v14, s[24:27], s51 offen offset:{16*b}", ("E", 0)))
    else:
        k(f"""
        v_and_b32 v3, 31, v2
        v_lshrrev_b32 v4, 5, v2
        s_lshr_b32 s51, s40, 1              ; qb
        s_and_b32 s52, s40, 1               ; pr
        s_lshl_b32 s53, s51, 5
        v_add_u32 v3, s53, v3
        v_lshlrev_b32 v15, 1, v3
        v_lshlrev_b32 v14, 10, v3           ; row*1024
        v_lshl_add_u32 v14, v4, 4, v14      ; + hf*16
        s_lshl_b32 s53, s52, 5
        v_add_u32 v14, s53, v14
        v_mov_b32 v18, v3
        s_lshl_b32 s51, s41, 16             ; mt*64*1024
        s_lshl_b32 s52, s42, 7
        s_add_u32 s51, s51, s52
        s_lshl_b32 s54, s41, 7              ; mt*64*2 (b2)
        s_lshl_b32 s53, s41, 16
        s_lshr_b32 s55, s42, 1
        s_lshl_b32 s55, s55, 14
        s_add_u32 s53, s53, s55
        s_and_b32 s55, s42, 1
        s_lshl_b32 s55, s55, 13
        s_add_u32 s53, s53, s55
        s_lshl_b32 s55, s40, 10
        s_add_u32 s53, s53, s55
        """)
        for g in range(8):
            for p in range(2):
                extra_loads.append((g, p))
    if l2pf:
        nrows = 512 if which == 1 else 448
        k(f"""
        s_and_b32 s56, s48, 3
        s_mul_i32 s56, s56, {nrows*RS}
        s_lshl_b32 s57, s41, 7
        s_add_u32 s56, s56, s57
        v_lshrrev_b32 v3, 1, v0
        s_movk_i32 s57, {RS}
        v_mul_lo_u32 v3, v3, s57
        v_and_b32 v4, 1, v0
        v_lshl_add_u32 v16, v4, 6, v3
        """)
        for i in range(4):
            k.e(f"buffer_load_dword v{28+i}, v16, s[16:19], s56 offen")
            vm.issue(("P", 0))
            k.e(f"s_add_u32 s56, s56, {128*RS}")
        bpart = (2*NKST*1024) // (4 if which == 1 else 8)
        k(f"""
        s_lshl_b32 s56, s42, 1
        s_mul_i32 s56, s56, {NKST*1024}
        s_add_u32 s56, s56, {BOFF}
        s_lshr_b32 s57, s48, 2
        s_and_b32 s57, s57, {3 if which == 1 else 7}
        s_mul_i32 s57, s57, {bpart}
        s_add_u32 s56, s56, s57
        v_lshlrev_b32 v17, 6, v0            ; tid*64
        """)
        for i in range((bpart + 16383) // 16384):
            k.e(f"buffer_load_dword v{32+i}, v17, s[20:23], s56 offen")
            vm.issue(("P", 0))
            k.e(f"s_add_u32 s56, s56, 16384")
    for ks in range(PF):
        issue_loads(ks)
    if which == 1:
        for ins, tag in extra_loads:
            k.e(ins); vm.issue(tag)
    else:
        k.e("buffer_load_ushort v20, v15, s[24:27], s54 offen"); vm.issue(("E", 0))
        k.e("buffer_load_dwordx4 a[64:67], v14, s[28:31], s51 offen"); vm.issue(("E", 0))
        k.e("buffer_load_dwordx4 a[68:71], v14, s[28:31], s51 offen offset:64"); vm.issue(("E", 0))
    n = vm.need(lambda t: t == ("A", 0))
    k.e(f"s_waitcnt vmcnt({n})")
    stamp()
    for ins in tr_reads(0): k.e(ins)
    slab_i = 0
    for ks in range(NKS):
        n = vm.need(lambda t: (t[0] == "A" and t[1] <= ks + 1) or (t[0] == "B" and t[1] <= ks))
        w = "s_waitcnt lgkmcnt(0)" if n is None else f"s_waitcnt vmcnt({n}) lgkmcnt(0)"
        k.e(w)
        bs = BF + (ks % NB) * 8
        fill = []
        if ks + 1 < NKS:
            fill += tr_reads(ks + 1)
        mf = []
        for mb in range(2):
            for nb in range(2):
                a = AF + (ks & 1) * 8 + mb * 4
                b = bs + nb * 4
                d = ACC + (mb * 2 + nb) * 16
                if which == 1:
                    mf.append(f"v_mfma_f32_32x32x16_bf16 v[{d}:{d+15}], v[{a}:{a+3}], v[{b}:{b+3}], v[{d}:{d+15}]")
                else:
                    mf.append(f"v_mfma_f32_32x32x16_bf16 v[{d}:{d+15}], v[{b}:{b+3}], v[{a}:{a+3}], v[{d}:{d+15}]")
        k.e(mf[0])
        for ins in fill[:2]: k.e(ins)
        k.e(mf[1])
        for ins in fill[2:]: k.e(ins)
        k.e(mf[2])
        if ks + PF < NKS:
            issue_loads(ks + PF)
        if which == 2 and slab_i < 16:
            g, p = extra_loads[slab_i]
            k.e(f"s_add_u32 s55, s53, {g*2097152 + p*4096}")
            k.e(f"buffer_load_dwordx4 a[{slab_i*4}:{slab_i*4+3}], v11, s[36:39], s55 offen")
            vm.issue(("E", 0))
            slab_i += 1
        k.e(mf[3])
    stamp()
    k.e("s_nop 15")
    EX = 0
    k.e("s_barrier")
    if which == 1:
        k(f"""
        s_lshl_b32 s56, s40, 14
        s_add_u32 s56, s56, {EX}
        v_add_u32 v3, s56, v11
        """)
        for blk in range(4):
            for q in range(4):
                r = ACC + blk * 16 + q * 4
                k.e(f"ds_write_b128 v3, v[{r}:{r+3}] offset:{blk*4096 + q*1024}")
        k(f"""
        s_lshl_b32 s56, s40, 12
        s_add_u32 s56, s56, {EX}
        v_add_u32 v3, s56, v11
        s_waitcnt vmcnt(0) lgkmcnt(0)
        s_barrier
        """)
        for src in range(4):
            for q in range(4):
                r = ACC + src * 16 + q * 4
                k.e(f"ds_read_b128 v[{r}:{r+3}], v3 offset:{src*16384 + q*1024}")
        k.e("s_waitcnt lgkmcnt(0)")
        Y = ACC
        for r in range(16):
            k.e(f"v_add_f32 v{Y+r}, v{Y+r}, v{Y+16+r}")
            k.e(f"v_add_f32 v{Y+32+r}, v{Y+32+r}, v{Y+48+r}")
        for r in range(16):
            k.e(f"v_add_f32 v{Y+r}, v{Y+r}, v{Y+32+r}")
        for b in range(4):
            k.e(f"v_lshlrev_b32 v{32+4*b}, 16, v{20+2*b}")
            k.e(f"v_and_b32 v{33+4*b}, 0xffff0000, v{20+2*b}")
            k.e(f"v_lshlrev_b32 v{34+4*b}, 16, v{21+2*b}")
            k.e(f"v_and_b32 v{35+4*b}, 0xffff0000, v{21+2*b}")
        c1 = -2.0 * 0.7978845608028654 * LOG2E
        k.e(f"s_mov_b32 s57, {f2h(c1)}")
        k.e(f"s_mov_b32 s58, {f2h(c1*0.044715)}")
        k.e(f"v_mov_b32 v48, s57")
        for r in range(0, 16, 2):
            a, b = Y + r, Y + r + 1
            bf16_round_inplace(k, a, b, 4)
            k.e(f"v_add_f32 v{a}, v{a}, v{32+r}")
            k.e(f"v_add_f32 v{b}, v{b}, v{33+r}")
            bf16_round_inplace(k, a, b, 4)
            for x, t in ((a, 5), (b, 6)):
                k.e(f"v_mul_f32 v{t}, v{x}, v{x}")
                k.e(f"v_fma_f32 v{t}, v{t}, s58, v48")
                k.e(f"v_mul_f32 v{t}, v{t}, v{x}")
            k.e("v_exp_f32 v5, v5")
            k.e("v_exp_f32 v6, v6")
            k.e("s_nop 0")
            k.e("v_add_f32 v5, 1.0, v5")
            k.e("v_add_f32 v6, 1.0, v6")
            k.e("v_rcp_f32 v5, v5")
            k.e("v_rcp_f32 v6, v6")
            k.e("s_nop 0")
            k.e(f"v_mul_f32 v{a}, v{a}, v5")
            k.e(f"v_mul_f32 v{b}, v{b}, v6")
            k.e(f"v_cvt_pk_bf16_f32 v{52 + r//2}, v{a}, v{b}")
        k(f"""
        s_and_b32 s56, s40, 1
        s_lshl_b32 s57, s42, 1
        s_add_u32 s56, s56, s57
        s_mul_i32 s56, s56, 112
        s_lshl_b32 s57, s41, 2
        s_add_u32 s56, s56, s57
        s_lshr_b32 s57, s40, 1
        s_lshl_b32 s57, s57, 1
        s_add_u32 s56, s56, s57
        s_lshl_b32 s56, s56, 10
        s_add_u32 s56, s56, {UF_OFF}
        buffer_store_dwordx4 v[52:55], v11, s[20:23], s56 offen
        buffer_store_dwordx4 v[56:59], v11, s[20:23], s56 offen offset:1024
        """)
    else:
        PS = 64 * 272
        k(f"""
        v_and_b32 v3, 31, v2
        s_movk_i32 s56, 272
        v_mul_lo_u32 v3, v3, s56
        v_lshrrev_b32 v4, 5, v2
        v_lshl_add_u32 v3, v4, 4, v3      ; + hf*16
        s_mul_i32 s56, s40, {PS}
        s_add_u32 s56, s56, {EX}
        v_add_u32 v3, s56, v3
        """)
        for mb in range(2):
            for nb in range(2):
                for b in range(4):
                    r = ACC + (mb * 2 + nb) * 16 + b * 4
                    k.e(f"ds_write_b128 v3, v[{r}:{r+3}] offset:{mb*32*272 + nb*128 + b*32}")
        k(f"""
        s_movk_i32 s56, 272
        v_mul_lo_u32 v3, v18, s56
        v_lshrrev_b32 v4, 5, v2
        v_lshl_add_u32 v3, v4, 5, v3      ; + hf*32
        s_and_b32 s56, s40, 1
        s_lshl_b32 s56, s56, 6            ; pr*64
        s_add_u32 s56, s56, {EX}
        v_add_u32 v3, s56, v3
        s_waitcnt vmcnt(0) lgkmcnt(0)
        s_barrier
        """)
        for p in range(2):
            for src in range(4):
                r = ACC + p * 32 + src * 8
                k.e(f"ds_read_b128 v[{r}:{r+3}], v3 offset:{src*PS + p*128}")
                k.e(f"ds_read_b128 v[{r+4}:{r+7}], v3 offset:{src*PS + p*128 + 16}")
        k.e("s_waitcnt lgkmcnt(0)")
        for p in range(2):
            Y = ACC + p * 32
            for i in range(8):
                k.e(f"v_add_f32 v{Y+i}, v{Y+i}, v{Y+8+i}")
                k.e(f"v_add_f32 v{Y+16+i}, v{Y+16+i}, v{Y+24+i}")
                k.e(f"v_add_f32 v{Y+i}, v{Y+i}, v{Y+16+i}")
            k.e(f"v_lshlrev_b32 v22, 16, v20")
            S = 32
            for g in range(8):
                for j in range(4):
                    k.e(f"v_accvgpr_read_b32 v{24+j}, a{(g*2+p)*4+j}")
                for j in range(4):
                    if g == 0:
                        k.e(f"v_lshlrev_b32 v{S+2*j}, 16, v{24+j}")
                        k.e(f"v_and_b32 v{S+2*j+1}, 0xffff0000, v{24+j}")
                    else:
                        k.e(f"v_lshlrev_b32 v28, 16, v{24+j}")
                        k.e(f"v_and_b32 v29, 0xffff0000, v{24+j}")
                        k.e(f"v_add_f32 v{S+2*j}, v{S+2*j}, v28")
                        k.e(f"v_add_f32 v{S+2*j+1}, v{S+2*j+1}, v29")
            for j in range(4):
                k.e(f"v_accvgpr_read_b32 v{24+j}, a{64+p*4+j}")
            for i in range(0, 8, 2):
                a, b = Y + i, Y + i + 1
                bf16_round_inplace(k, a, b, 4)
                k.e(f"v_add_f32 v{a}, v{a}, v22")
                k.e(f"v_add_f32 v{b}, v{b}, v22")
                bf16_round_inplace(k, a, b, 4)
                k.e(f"v_mul_f32 v5, {f2h(-LOG2E)}, v{a}")
                k.e(f"v_mul_f32 v6, {f2h(-LOG2E)}, v{b}")
                k.e("v_exp_f32 v5, v5")
                k.e("v_exp_f32 v6, v6")
                k.e("s_nop 0")
                k.e("v_add_f32 v5, 1.0, v5")
                k.e("v_add_f32 v6, 1.0, v6")
                k.e("v_rcp_f32 v5, v5")
                k.e("v_rcp_f32 v6, v6")
                k.e("s_nop 0")
                k.e(f"v_mul_f32 v{a}, v{a}, v5")
                k.e(f"v_mul_f32 v{b}, v{b}, v6")
                bf16_round_inplace(k, a, b, 4)
                bf16_round_inplace(k, S + i, S + i + 1, 4)
                k.e(f"v_mul_f32 v{a}, v{a}, v{S+i}")
                k.e(f"v_mul_f32 v{b}, v{b}, v{S+i+1}")
                bf16_round_inplace(k, a, b, 4)
                k.e(f"v_lshlrev_b32 v28, 16, v{24+i//2}")
                k.e(f"v_and_b32 v29, 0xffff0000, v{24+i//2}")
                k.e(f"v_add_f32 v{a}, v{a}, v28")
                k.e(f"v_add_f32 v{b}, v{b}, v29")
                k.e(f"v_cvt_pk_bf16_f32 v{40+p*4+i//2}, v{a}, v{b}")
            k.e(f"buffer_store_dwordx4 v[{40+p*4}:{43+p*4}], v14, s[32:35], s51 offen offset:{64*p}")
    if prof:
        k.e("s_waitcnt vmcnt(0)")
        stamp()
        k.e(f"s_load_dwordx2 s[12:13], s[0:1], {KA_WS}")
        k.e("s_waitcnt lgkmcnt(0)")
        srd_off(k, 4, 12, 13, (66 + which) << 20, 1 << 20)
        k.e(f"s_lshl_b32 s14, s2, 2")
        k.e(f"s_add_u32 s14, s14, s40")
        k.e(f"s_lshl_b32 s14, s14, 6")
        for i in range(nst[0]):
            k.e(f"v_mov_b32 v2, s{64+2*i}")
            k.e(f"v_mov_b32 v3, s{65+2*i}")
            k.e(f"v_mov_b32 v1, {8*i}")
            k.e(f"buffer_store_dwordx2 v[2:3], v1, s[4:7], s14 offen")
    tl_end(k, prof, kidx if kidx is not None else (1 if which == 1 else 3))
    k.lab(f"L_{P}_done")
    k.e("s_endpgm")
    lds = max(4 * NS * 2048, 65536 if which == 1 else 4 * 64 * 272)
    nvb = (BF + NB * 8 + 3) // 4 * 4
    nv = nvb if which == 1 else 256 + 72
    acc_off = nvb if which == 1 else 256
    return k.text(), kernel_desc(name, nv, 102 if prof else 64, acc_off), f"; @launch kernel={name} grid=({NWG},1,1) block=(256,1,1) lds={lds}"
```

```python
from common import *

def ln_rows(k, xin, out_pk, tmp):
    s, t, mb, d0, r = tmp, tmp+1, tmp+2, tmp+3, tmp+4
    k.e(f"v_add_f32 v{s}, v{xin[0]}, v{xin[1]}")
    for i in range(2, 8):
        k.e(f"v_add_f32 v{s}, v{s}, v{xin[i]}")
    wave_allreduce_add(k, s, t)
    k.e(f"v_mul_f32 v{s}, 0x3b000000, v{s}")
    k.e(f"v_cvt_pk_bf16_f32 v{mb}, v{s}, v{s}")
    k.e(f"v_lshlrev_b32 v{mb}, 16, v{mb}")
    k.e(f"v_sub_f32 v{d0}, v{xin[0]}, v{s}")
    k.e(f"v_mul_f32 v{r}, v{d0}, v{d0}")
    for i in range(1, 8):
        k.e(f"v_sub_f32 v{d0}, v{xin[i]}, v{s}")
        k.e(f"v_fmac_f32 v{r}, v{d0}, v{d0}")
    wave_allreduce_add(k, r, t)
    k.e(f"v_mul_f32 v{r}, 0x3b000000, v{r}")
    k.e(f"v_cvt_pk_bf16_f32 v{r}, v{r}, v{r}")
    k.e(f"v_lshlrev_b32 v{r}, 16, v{r}")
    k.e(f"v_add_f32 v{r}, 0x3727c5ac, v{r}")
    k.e(f"v_cvt_pk_bf16_f32 v{r}, v{r}, v{r}")
    k.e(f"v_lshlrev_b32 v{r}, 16, v{r}")
    k.e(f"v_sqrt_f32 v{r}, v{r}")
    k.e("s_nop 0")
    k.e(f"v_cvt_pk_bf16_f32 v{r}, v{r}, v{r}")
    k.e(f"v_lshlrev_b32 v{r}, 16, v{r}")
    k.e(f"v_rcp_f32 v{t}, v{r}")
    k.e("s_nop 0")
    k.e(f"v_fma_f32 v{d0}, -v{r}, v{t}, 1.0")
    k.e(f"v_fma_f32 v{t}, v{d0}, v{t}, v{t}")
    for i in range(0, 8, 2):
        a, b = xin[i], xin[i+1]
        k.e(f"v_sub_f32 v{a}, v{a}, v{mb}")
        k.e(f"v_sub_f32 v{b}, v{b}, v{mb}")
        k.e(f"v_cvt_pk_bf16_f32 v{d0}, v{a}, v{b}")
        k.e(f"v_lshlrev_b32 v{a}, 16, v{d0}")
        k.e(f"v_and_b32 v{b}, 0xffff0000, v{d0}")
        k.e(f"v_mul_f32 v{a}, v{a}, v{t}")
        k.e(f"v_mul_f32 v{b}, v{b}, v{t}")
        k.e(f"v_cvt_pk_bf16_f32 v{out_pk + i//2}, v{a}, v{b}")
        k.e(f"v_lshlrev_b32 v{a}, 16, v{out_pk + i//2}")
        k.e(f"v_and_b32 v{b}, 0xffff0000, v{out_pk + i//2}")

def gen_ln(name="ln_kernel", prof=False):
    k = Em()
    k.L.append(kernel_header(name))
    tl_begin(k, prof)
    k(f"""
    s_cmp_ge_u32 s2, 256
    s_cbranch_scc1 L_ln_done
    s_load_dwordx2 s[4:5], s[0:1], {KA_X}
    s_load_dwordx2 s[6:7], s[0:1], {KA_WS}
    v_lshrrev_b32 v1, 6, v0
    v_and_b32 v2, 63, v0               ; lane
    s_lshl_b32 s3, s2, 13
    v_lshlrev_b32 v3, 4, v0
    s_waitcnt lgkmcnt(0)
    """)
    srd(k, 8, 4, 5, 2097152)
    srd(k, 12, 6, 7, 8 << 20)
    k(f"""
    buffer_load_dwordx4 v[4:7], v3, s[8:11], s3 offen
    s_cmp_ge_u32 s2, 40
    s_cbranch_scc1 L_ln_nz
    s_lshl_b32 s16, s2, 8
    s_add_u32 s16, s16, {CNT_OFF}
    v_mov_b32 v20, 0
    v_and_b32 v21, 63, v0
    v_lshlrev_b32 v21, 2, v21
    buffer_store_dword v20, v21, s[12:15], s16 offen
    L_ln_nz:
    s_waitcnt vmcnt(0)
    """)
    X = list(range(8, 16))
    for i in range(4):
        k.e(f"v_lshlrev_b32 v{X[2*i]}, 16, v{4+i}")
        k.e(f"v_and_b32 v{X[2*i+1]}, 0xffff0000, v{4+i}")
    ln_rows(k, X, 16, 24)
    k.e("ds_write_b128 v3, v[16:19]")
    ln_rows(k, X, 20, 24)
    k.e("ds_write_b128 v3, v[20:23] offset:8192")
    k(f"""
    s_waitcnt lgkmcnt(0)
    s_barrier
    v_and_b32 v4, 7, v0
    v_lshrrev_b32 v5, 3, v0
    v_lshlrev_b32 v6, 10, v4
    v_lshl_add_u32 v6, v5, 4, v6
    ds_read_b128 v[8:11], v6
    v_lshlrev_b32 v7, 1, v0
    ds_read_u16 v20, v7 offset:{8192+0*1024}
    ds_read_u16 v21, v7 offset:{8192+1*1024}
    ds_read_u16 v22, v7 offset:{8192+2*1024}
    ds_read_u16 v23, v7 offset:{8192+3*1024}
    ds_read_u16 v24, v7 offset:{8192+4*1024}
    ds_read_u16 v25, v7 offset:{8192+5*1024}
    ds_read_u16 v26, v7 offset:{8192+6*1024}
    ds_read_u16 v27, v7 offset:{8192+7*1024}
    s_lshr_b32 s16, s2, 3
    s_lshl_b32 s16, s16, 16
    s_lshr_b32 s17, s2, 2
    s_and_b32 s17, s17, 1
    s_lshl_b32 s17, s17, 10
    s_add_u32 s16, s16, s17
    s_and_b32 s17, s2, 3
    s_lshl_b32 s17, s17, 7              ; (wg&3)*8*16
    s_add_u32 s16, s16, s17
    v_lshrrev_b32 v16, 1, v5            ; t
    v_lshlrev_b32 v16, 11, v16
    v_and_b32 v17, 1, v5
    v_lshl_add_u32 v16, v17, 9, v16
    v_lshl_add_u32 v16, v4, 4, v16
    s_lshr_b32 s18, s2, 1
    s_lshl_b32 s18, s18, 10
    s_and_b32 s19, s2, 1
    s_lshl_b32 s19, s19, 9
    s_add_u32 s18, s18, s19
    s_add_u32 s18, s18, {HF_OFF}
    v_lshrrev_b32 v17, 5, v0
    v_lshlrev_b32 v17, 17, v17
    v_and_b32 v18, 31, v0
    v_lshl_add_u32 v17, v18, 4, v17
    s_waitcnt lgkmcnt(8)
    buffer_store_dwordx4 v[8:11], v16, s[12:15], s16 offen
    s_waitcnt lgkmcnt(0)
    v_lshl_or_b32 v12, v21, 16, v20
    v_lshl_or_b32 v13, v23, 16, v22
    v_lshl_or_b32 v14, v25, 16, v24
    v_lshl_or_b32 v15, v27, 16, v26
    buffer_store_dwordx4 v[12:15], v17, s[12:15], s18 offen
    """)
    tl_end(k, prof, 0)
    k("""
    L_ln_done:
    s_endpgm
    """)
    return k.text(), kernel_desc(name, 32, 102 if prof else 32, 32), f"; @launch kernel={name} grid=(256,1,1) block=(512,1,1) lds=16384"
```

```python
from common import *
import k_main as M
from k_main import *
import math

S_MT2, S_NT2 = 10, 11
S_FLG = 51
SRD_DBG = 60
UCNT_OFF = CNT_OFF + 8192
POLL_MAX = 1 << 20

def poll(k, tag, off_sgpr, target):
    k(f"""
    s_mov_b32 s{S_FLG}, {POLL_MAX}
    v_mov_b32 v1, 0
    L_poll_{tag}:
    buffer_load_dword v2, v1, s[{SRD_DBG}:{SRD_DBG+3}], s{off_sgpr} offen sc1
    s_waitcnt vmcnt(0)
    v_readfirstlane_b32 s3, v2
    s_cmp_ge_u32 s3, {target}
    s_cbranch_scc1 L_polld_{tag}
    s_sleep 16
    s_sub_u32 s{S_FLG}, s{S_FLG}, 1
    s_cmp_lg_u32 s{S_FLG}, 0
    s_cbranch_scc1 L_poll_{tag}
    L_polld_{tag}:
    """)

def signal(k, tag, off_sgpr):
    k(f"""
    s_cmp_lg_u32 s{S_W}, 0
    s_cbranch_scc1 L_sig_{tag}
    v_mov_b32 v1, 0
    v_mov_b32 v2, 1
    v_cmp_eq_u32 vcc, 0, v0
    s_and_saveexec_b64 s[48:49], vcc
    buffer_atomic_add v2, v1, s[{SRD_DBG}:{SRD_DBG+3}], s{off_sgpr} offen
    s_mov_b64 exec, s[48:49]
    L_sig_{tag}:
    """)

def g1_phase(k, stamp, xdma):
    RS, NKS, NKST = 3584, 32, 128
    PF, NS, NB = 6, 8, 7
    ACC, AF, BF = 64, 128, 144
    vm = Ctr(63)
    k(f"""
    s_load_dwordx2 s[8:9], s[0:1], {KA_B1}
    v_lshrrev_b32 v3, 3, v0
    v_and_b32 v4, 7, v0
    v_lshrrev_b32 v5, 1, v3
    v_and_b32 v5, 1, v5
    v_lshlrev_b32 v5, 2, v5
    v_xor_b32 v4, v4, v5
    s_movk_i32 s49, {RS}
    v_mul_lo_u32 v3, v3, s49
    v_lshl_add_u32 v10, v4, 4, v3       ; voffA
    v_lshlrev_b32 v11, 4, v0            ; voffB
    v_lshrrev_b32 v3, 5, v0             ; hf
    v_bfe_u32 v4, v0, 4, 1
    v_bfe_u32 v5, v0, 2, 2
    v_and_b32 v6, 3, v0
    v_lshlrev_b32 v7, 3, v3
    v_add_u32 v7, v7, v5
    v_lshlrev_b32 v7, 7, v7
    v_lshl_add_u32 v7, v4, 5, v7
    v_lshl_add_u32 v7, v6, 3, v7
    s_lshl_b32 s46, s{S_W}, 14
    v_add_u32 v7, s46, v7
    v_lshrrev_b32 v8, 1, v5
    v_lshlrev_b32 v9, 6, v8
    v_add_u32 v12, v7, v9
    v_xor_b32 v9, 64, v9
    v_add_u32 v13, v7, v9
    v_lshlrev_b32 v14, 3, v3            ; hf*8
    s_mul_i32 s43, s{S_W}, {NKS*16*RS}
    s_lshl_b32 s49, s{S_MT}, 7
    s_add_u32 s43, s43, s49
    s_add_u32 s47, s43, {8*RS-1024}
    s_lshl_b32 s44, s{S_NT}, 1
    s_mul_i32 s44, s44, {NKST}
    s_mul_i32 s49, s{S_W}, {NKS}
    s_add_u32 s44, s44, s49
    s_lshl_b32 s44, s44, 10
    s_add_u32 s44, s44, {HF_OFF}
    s_add_u32 s45, s44, {NKST*1024}
    """)
    def issue(ks):
        slot = ks % NS
        k.e(f"s_add_u32 m0, s46, {slot*2048}")
        bs = BF + (ks % NB) * 8
        k.e(f"buffer_load_dwordx4 v[{bs}:{bs+3}], v11, s[{SRD_WS}:{SRD_WS+3}], s44 offen"); vm.issue(("B", ks))
        k.e(f"buffer_load_dwordx4 v10, s[{SRD_W1}:{SRD_W1+3}], s43 offen lds"); vm.issue(("A", ks))
        k.e(f"buffer_load_dwordx4 v10, s[{SRD_W1}:{SRD_W1+3}], s47 offen offset:1024 lds"); vm.issue(("A", ks))
        k.e(f"buffer_load_dwordx4 v[{bs+4}:{bs+7}], v11, s[{SRD_WS}:{SRD_WS+3}], s45 offen"); vm.issue(("B", ks))
        k.e(f"s_add_u32 s43, s43, {16*RS}")
        k.e(f"s_add_u32 s47, s47, {16*RS}")
        k.e(f"s_add_u32 s44, s44, 1024")
        k.e(f"s_add_u32 s45, s45, 1024")
    def tr(ks):
        slot = ks % NS
        out = []
        for mb in range(2):
            for bp in range(2):
                d = AF + (ks & 1) * 8 + mb * 4 + bp * 2
                out.append(f"ds_read_b64_tr_b16 v[{d}:{d+1}], v{12+mb} offset:{slot*2048 + bp*512}")
        return out
    for ks in range(PF):
        issue(ks)
    k(f"""
    s_lshl_b32 s48, s{S_W}, 6
    v_add_u32 v1, s48, v0                       ; tid
    v_lshrrev_b32 v2, 1, v1
    s_movk_i32 s48, {RS}
    v_mul_lo_u32 v2, v2, s48
    v_and_b32 v3, 1, v1
    v_lshl_add_u32 v16, v3, 6, v2
    v_lshlrev_b32 v17, 6, v1                    ; tid*64
    s_and_b32 s48, s{S_RB}, 3
    s_mul_i32 s48, s48, {512*RS}
    s_lshl_b32 s49, s{S_MT}, 7
    s_add_u32 s48, s48, s49
    s_lshl_b32 s49, s{S_NT}, 18
    s_add_u32 s49, s49, {HF_OFF}
    s_lshr_b32 s14, s{S_RB}, 2
    s_and_b32 s14, s14, 3
    s_lshl_b32 s14, s14, 16
    s_add_u32 s49, s49, s14
    """)
    for i in range(4):
        k.e(f"buffer_load_dword v{28+i}, v16, s[{SRD_W1}:{SRD_W1+3}], s48 offen"); vm.issue(("P", 0))
        k.e(f"buffer_load_dword v{32+i}, v17, s[{SRD_WS}:{SRD_WS+3}], s49 offen"); vm.issue(("P", 0))
        k.e(f"s_add_u32 s48, s48, {128*RS}")
        k.e(f"s_add_u32 s49, s49, 16384")
    k(f"""
    s_lshr_b32 s48, s{S_W}, 1
    s_lshl_b32 s48, s48, 6
    s_lshl_b32 s49, s{S_MT}, 7
    s_add_u32 s48, s48, s49
    s_waitcnt lgkmcnt(0)
    s_mov_b32 s12, s8
    s_mov_b32 s13, s9
    s_mov_b32 s14, {1792*2}
    s_mov_b32 s15, 0x00020000
    """)
    for b in range(4):
        k.e(f"buffer_load_dwordx2 v[{20+2*b}:{21+2*b}], v14, s[12:15], s48 offen offset:{16*b}"); vm.issue(("E", 0))
    n = vm.need(lambda t: t == ("A", 0))
    k.e(f"s_waitcnt vmcnt({n})")
    stamp()
    for ins in tr(0): k.e(ins)
    xq = list(xdma)
    for ks in range(NKS):
        n = vm.need(lambda t: (t[0] == "A" and t[1] <= ks + 1) or (t[0] == "B" and t[1] <= ks))
        k.e("s_waitcnt lgkmcnt(0)" if n is None else f"s_waitcnt vmcnt({n}) lgkmcnt(0)")
        bs = BF + (ks % NB) * 8
        fill = tr(ks + 1) if ks + 1 < NKS else []
        mf = []
        for mb in range(2):
            for nb in range(2):
                d = ACC + (mb * 2 + nb) * 16
                mf.append(mfma(d, AF + (ks & 1) * 8 + mb * 4, bs + nb * 4, "0" if ks == 0 else d, dfile='v', afile='v', bfile='v'))
        k.e(mf[0])
        for ins in fill[:2]: k.e(ins)
        k.e(mf[1])
        for ins in fill[2:]: k.e(ins)
        k.e(mf[2])
        if ks + PF < NKS:
            issue(ks + PF)
        if ks >= 6 and xq:
            grp = xq.pop(0)
            for ins in grp:
                k.e(ins)
                if ins.startswith("buffer_load"): vm.issue(("X", 0))
        k.e(mf[3])
    assert not xq
    stamp()
    k.e("s_nop 7")
    k.e("s_barrier")
    k(f"""
    s_lshl_b32 s48, s{S_W}, 14
    v_add_u32 v3, s48, v11
    s_nop 4
    """)
    for blk in range(4):
        for q in range(4):
            r = ACC + blk * 16 + q * 4
            k.e(f"ds_write_b128 v3, v[{r}:{r+3}] offset:{blk*4096 + q*1024}")
    k(f"""
    s_lshl_b32 s48, s{S_W}, 12
    v_add_u32 v3, s48, v11
    s_waitcnt lgkmcnt(0)
    s_barrier
    """)
    for src in range(4):
        for q in range(4):
            r = ACC + src * 16 + q * 4
            k.e(f"ds_read_b128 v[{r}:{r+3}], v3 offset:{src*16384 + q*1024}")
    n = vm.need(lambda t: t[0] == "E")
    if n is not None: k.e(f"s_waitcnt vmcnt({n})")
    for b in range(4):
        k.e(f"v_lshlrev_b32 v{32+4*b}, 16, v{20+2*b}")
        k.e(f"v_and_b32 v{33+4*b}, 0xffff0000, v{20+2*b}")
        k.e(f"v_lshlrev_b32 v{34+4*b}, 16, v{21+2*b}")
        k.e(f"v_and_b32 v{35+4*b}, 0xffff0000, v{21+2*b}")
    k.e("s_waitcnt lgkmcnt(0)")
    k.e("s_barrier")

def g1_finish(k):
    Y = 64
    c1 = -2.0 * 0.7978845608028654 * LOG2E
    k.e(f"s_mov_b32 s12, {f2h(c1)}")
    k.e(f"s_mov_b32 s13, {f2h(c1*0.044715)}")
    k.e(f"v_mov_b32 v48, s12")
    for r in range(0, 16, 2):
        k.e(f"v_pk_add_f32 v[{Y+r}:{Y+r+1}], v[{Y+r}:{Y+r+1}], v[{Y+16+r}:{Y+17+r}]")
        k.e(f"v_pk_add_f32 v[{Y+32+r}:{Y+33+r}], v[{Y+32+r}:{Y+33+r}], v[{Y+48+r}:{Y+49+r}]")
    for r in range(0, 16, 2):
        k.e(f"v_pk_add_f32 v[{Y+r}:{Y+r+1}], v[{Y+r}:{Y+r+1}], v[{Y+32+r}:{Y+33+r}]")
    for r in range(0, 16, 2):
        k.e(f"v_pk_add_f32 v[{Y+r}:{Y+r+1}], v[{Y+r}:{Y+r+1}], v[{32+r}:{33+r}]")
    T = Y + 16
    for r in range(0, 16, 2):
        k.e(f"v_pk_mul_f32 v[{T+r}:{T+r+1}], v[{Y+r}:{Y+r+1}], v[{Y+r}:{Y+r+1}]")
    for r in range(16):
        k.e(f"v_fma_f32 v{T+r}, v{T+r}, s13, v48")
    for r in range(0, 16, 2):
        k.e(f"v_pk_mul_f32 v[{T+r}:{T+r+1}], v[{T+r}:{T+r+1}], v[{Y+r}:{Y+r+1}]")
    for r in range(16):
        k.e(f"v_exp_f32 v{T+r}, v{T+r}")
    for r in range(16):
        k.e(f"v_add_f32 v{T+r}, 1.0, v{T+r}")
    for r in range(16):
        k.e(f"v_rcp_f32 v{T+r}, v{T+r}")
    k.e("s_nop 0")
    for r in range(0, 16, 2):
        k.e(f"v_pk_mul_f32 v[{Y+r}:{Y+r+1}], v[{Y+r}:{Y+r+1}], v[{T+r}:{T+r+1}]")
    for r in range(0, 16, 2):
        k.e(f"v_cvt_pk_bf16_f32 v{52 + r//2}, v{Y+r}, v{Y+r+1}")
    k(f"""
    s_and_b32 s12, s{S_W}, 1
    s_lshl_b32 s13, s{S_NT}, 1
    s_add_u32 s12, s12, s13
    s_mul_i32 s12, s12, 112
    s_lshl_b32 s13, s{S_MT}, 2
    s_add_u32 s12, s12, s13
    s_lshr_b32 s13, s{S_W}, 1
    s_lshl_b32 s13, s13, 1
    s_add_u32 s12, s12, s13
    s_lshl_b32 s12, s12, 10
    s_add_u32 s12, s12, {UF_OFF}
    buffer_store_dwordx4 v[52:55], v11, s[{SRD_WS}:{SRD_WS+3}], s12 offen sc1
    buffer_store_dwordx4 v[56:59], v11, s[{SRD_WS}:{SRD_WS+3}], s12 offen offset:1024 sc1
    """)

G2_PF = 10
def g2_setup(k, vm):
    RS, NKS, NKST = 4096, 28, 112
    PF, NS, NB = G2_PF, G2_PF + 2, G2_PF + 1
    k(f"""
    s_load_dwordx2 s[8:9], s[0:1], {KA_B2}
    s_load_dwordx2 s[12:13], s[0:1], {KA_X}
    s_load_dwordx2 s[14:15], s[0:1], {KA_OUT}
    s_load_dwordx2 s[48:49], s[0:1], {KA_WS}
    v_lshrrev_b32 v3, 3, v0
    v_and_b32 v4, 7, v0
    v_lshrrev_b32 v5, 1, v3
    v_and_b32 v5, 1, v5
    v_lshlrev_b32 v5, 2, v5
    v_xor_b32 v4, v4, v5
    v_lshlrev_b32 v3, 12, v3
    v_lshl_add_u32 v10, v4, 4, v3       ; voffA
    v_lshlrev_b32 v11, 4, v0
    v_lshrrev_b32 v3, 5, v0             ; hf
    v_bfe_u32 v4, v0, 4, 1
    v_bfe_u32 v5, v0, 2, 2
    v_and_b32 v6, 3, v0
    v_lshlrev_b32 v7, 2, v3
    v_add_u32 v7, v7, v5
    v_lshlrev_b32 v7, 7, v7
    v_lshl_add_u32 v7, v4, 5, v7
    v_lshl_add_u32 v7, v6, 3, v7
    s_mul_i32 s46, s{S_W}, {NS*2048}
    v_add_u32 v7, s46, v7
    v_lshrrev_b32 v8, 1, v5
    v_lshlrev_b32 v9, 6, v8
    v_add_u32 v12, v7, v9
    v_xor_b32 v9, 64, v9
    v_add_u32 v13, v7, v9
    s_mul_i32 s43, s{S_W}, {NKS*16*RS}
    s_lshl_b32 s47, s{S_MT2}, 7
    s_add_u32 s43, s43, s47
    s_add_u32 s47, s43, {8*RS-1024}
    s_lshl_b32 s44, s{S_NT2}, 1
    s_mul_i32 s44, s44, {NKST}
    s_mul_i32 s45, s{S_W}, {NKS}
    s_add_u32 s44, s44, s45
    s_lshl_b32 s44, s44, 10
    s_add_u32 s44, s44, {UF_OFF}
    s_add_u32 s45, s44, {NKST*1024}
    v_and_b32 v14, 31, v0
    s_lshr_b32 s54, s{S_W}, 1
    s_lshl_b32 s54, s54, 5
    v_add_u32 v14, s54, v14             ; row
    v_lshlrev_b32 v15, 1, v14           ; b2 offset
    v_lshlrev_b32 v16, 10, v14
    v_lshl_add_u32 v16, v3, 4, v16
    s_and_b32 s54, s{S_W}, 1
    s_lshl_b32 s54, s54, 5
    v_add_u32 v16, s54, v16
    """)
    for ks in range(PF):
        g2_issue(k, vm, ks)
    k("s_waitcnt lgkmcnt(0)")
    srd(k, 16, 8, 9, 2048 * 2)
    srd(k, 20, 12, 13, 2097152)
    srd(k, 28, 14, 15, 2097152)
    srd_off(k, 32, 48, 49, SLAB_OFF, 16 << 20)
    k(f"""
    s_lshl_b32 s54, s{S_MT2}, 16
    s_lshl_b32 s55, s{S_NT2}, 7
    s_add_u32 s54, s54, s55
    s_lshl_b32 s55, s{S_MT2}, 7         ; b2 base
    s_lshl_b32 s53, s{S_MT2}, 16
    s_lshr_b32 s52, s{S_NT2}, 1
    s_lshl_b32 s52, s52, 14
    s_add_u32 s53, s53, s52
    s_and_b32 s52, s{S_NT2}, 1
    s_lshl_b32 s52, s52, 13
    s_add_u32 s53, s53, s52
    s_lshl_b32 s52, s{S_W}, 10
    s_add_u32 s53, s53, s52
    """)
    k.e("buffer_load_ushort v17, v15, s[16:19], s55 offen"); vm.issue(("E", 0))
    k.e(f"buffer_load_dwordx4 v[248:251], v16, s[20:23], s54 offen"); vm.issue(("E", 0))
    k.e(f"buffer_load_dwordx4 v[252:255], v16, s[20:23], s54 offen offset:64"); vm.issue(("E", 0))

def g2_issue(k, vm, ks):
    RS = 4096
    NS, NB = G2_PF + 2, G2_PF + 1
    slot = ks % NS
    k.e(f"s_add_u32 m0, s46, {slot*2048}")
    bs = 144 + (ks % NB) * 8
    k.e(f"buffer_load_dwordx4 v[{bs}:{bs+3}], v11, s[{SRD_WS}:{SRD_WS+3}], s44 offen sc1"); vm.issue(("B", ks))
    k.e(f"buffer_load_dwordx4 v10, s[{SRD_WQ}:{SRD_WQ+3}], s43 offen lds"); vm.issue(("A", ks))
    k.e(f"buffer_load_dwordx4 v10, s[{SRD_WQ}:{SRD_WQ+3}], s47 offen offset:1024 lds"); vm.issue(("A", ks))
    k.e(f"buffer_load_dwordx4 v[{bs+4}:{bs+7}], v11, s[{SRD_WS}:{SRD_WS+3}], s45 offen sc1"); vm.issue(("B", ks))
    k.e(f"s_add_u32 s43, s43, {16*RS}")
    k.e(f"s_add_u32 s47, s47, {16*RS}")
    k.e(f"s_add_u32 s44, s44, 1024")
    k.e(f"s_add_u32 s45, s45, 1024")

def g2_main(k, vm, stamp, POLL_KS=10):
    NKS = 28
    PF, NS, NB = G2_PF, G2_PF + 2, G2_PF + 1
    ACC, AF, BF = 64, 128, 144
    SL = 0
    SUM = 232
    def tr(ks):
        slot = ks % NS
        out = []
        for mb in range(2):
            for bp in range(2):
                d = AF + (ks & 1) * 8 + mb * 4 + bp * 2
                out.append(f"ds_read_b64_tr_b16 v[{d}:{d+1}], v{12+mb} offset:{slot*2048 + bp*1024}")
        return out
    n = vm.need(lambda t: t == ("A", 0))
    k.e(f"s_waitcnt vmcnt({n})")
    for ins in tr(0): k.e(ins)
    si = 0
    for ks in range(NKS):
        n = vm.need(lambda t: (t[0] == "A" and t[1] <= ks + 1) or (t[0] == "B" and t[1] <= ks))
        k.e("s_waitcnt lgkmcnt(0)" if n is None else f"s_waitcnt vmcnt({n}) lgkmcnt(0)")
        bs = BF + (ks % NB) * 8
        fill = tr(ks + 1) if ks + 1 < NKS else []
        mf = []
        for mb in range(2):
            for nb in range(2):
                a = AF + (ks & 1) * 8 + mb * 4
                b = bs + nb * 4
                d = ACC + (mb * 2 + nb) * 16
                c = "0" if ks == 0 else f"v[{d}:{d+15}]"
                mf.append(f"v_mfma_f32_32x32x16_bf16 v[{d}:{d+15}], v[{b}:{b+3}], v[{a}:{a+3}], {c}")
        k.e(mf[0])
        for ins in fill[:2]: k.e(ins)
        k.e(mf[1])
        for ins in fill[2:]: k.e(ins)
        k.e(mf[2])
        if ks + PF < NKS:
            g2_issue(k, vm, ks + PF)
        if ks == POLL_KS:
            k.e(f"s_lshl_b32 s52, s{S_MT2}, 8")
            k.e(f"s_add_u32 s52, s52, {CNT_OFF}")
            k.e(f"s_cmp_lg_u32 s{S_W}, 0")
            k.e("s_cbranch_scc1 L_slab_nopoll")
            poll(k, "slab", 52, 8)
            k.lab("L_slab_nopoll")
            k.e("s_barrier")
        if ks >= POLL_KS and si < 16:
            for rep in range(1 if ks < 26 else 2):
                if si < 16:
                    g, p = si >> 1, si & 1
                    k.e(f"s_add_u32 s52, s53, {g*2097152 + p*4096}")
                    k.e(f"buffer_load_dwordx4 a[{si*4}:{si*4+3}], v11, s[32:35], s52 offen sc1"); vm.issue(("S", si))
                    si += 1
        k.e(mf[3])
    assert si == 16
    stamp()
    PS = 64 * 272
    k(f"""
    v_and_b32 v3, 31, v0
    s_movk_i32 s52, 272
    v_mul_lo_u32 v3, v3, s52
    v_lshrrev_b32 v4, 5, v0
    v_lshl_add_u32 v3, v4, 4, v3
    s_mul_i32 s55, s{S_W}, {PS}
    v_add_u32 v3, s55, v3
    v_mul_lo_u32 v8, v14, s52
    v_lshl_add_u32 v8, v4, 5, v8
    s_and_b32 s52, s{S_W}, 1
    s_lshl_b32 s52, s52, 6
    v_add_u32 v8, s52, v8
    s_barrier
    """)
    for mb in range(2):
        for nb in range(2):
            for b in range(4):
                r = ACC + (mb * 2 + nb) * 16 + b * 4
                k.e(f"ds_write_b128 v3, v[{r}:{r+3}] offset:{mb*32*272 + nb*128 + b*32}")
    k(f"""
    s_waitcnt lgkmcnt(0)
    s_barrier
    """)
    for p in range(2):
        for src in range(4):
            r = ACC + p * 32 + src * 8
            k.e(f"ds_read_b128 v[{r}:{r+3}], v8 offset:{src*PS + p*128}")
            k.e(f"ds_read_b128 v[{r+4}:{r+7}], v8 offset:{src*PS + p*128 + 16}")
    for i in range(16):
        g, p = i >> 1, i & 1
        n = vm.need(lambda t: t[0] == "S" and t[1] <= i)
        if n is not None: k.e(f"s_waitcnt vmcnt({n})")
        for j in range(4):
            k.e(f"v_accvgpr_read_b32 v{20+j}, a{i*4+j}")
        for j in range(4):
            if g == 0:
                k.e(f"v_lshlrev_b32 v{SUM+p*8+2*j}, 16, v{20+j}")
                k.e(f"v_and_b32 v{SUM+p*8+2*j+1}, 0xffff0000, v{20+j}")
            else:
                k.e(f"v_lshlrev_b32 v{24+2*j}, 16, v{20+j}")
                k.e(f"v_and_b32 v{25+2*j}, 0xffff0000, v{20+j}")
        if g > 0:
            for j in range(4):
                k.e(f"v_pk_add_f32 v[{SUM+p*8+2*j}:{SUM+p*8+2*j+1}], v[{SUM+p*8+2*j}:{SUM+p*8+2*j+1}], v[{24+2*j}:{25+2*j}]")
    for p in range(2):
        for j in range(4):
            k.e(f"v_lshlrev_b32 v{128+p*8+2*j}, 16, v{248+p*4+j}")
            k.e(f"v_and_b32 v{129+p*8+2*j}, 0xffff0000, v{248+p*4+j}")
    k.e("v_lshlrev_b32 v18, 16, v17")
    k.e("v_mov_b32 v19, v18")
    k.e(f"s_mov_b32 s48, {f2h(-LOG2E)}")
    k.e(f"s_mov_b32 s49, {f2h(-LOG2E)}")
    k.e("s_waitcnt lgkmcnt(0)")
    for p in range(2):
        Y = ACC + p * 32
        for i in range(0, 8, 2):
            k.e(f"v_pk_add_f32 v[{Y+i}:{Y+i+1}], v[{Y+i}:{Y+i+1}], v[{Y+8+i}:{Y+9+i}]")
            k.e(f"v_pk_add_f32 v[{Y+16+i}:{Y+17+i}], v[{Y+16+i}:{Y+17+i}], v[{Y+24+i}:{Y+25+i}]")
        for i in range(0, 8, 2):
            k.e(f"v_pk_add_f32 v[{Y+i}:{Y+i+1}], v[{Y+i}:{Y+i+1}], v[{Y+16+i}:{Y+17+i}]")
        for i in range(0, 8, 2):
            k.e(f"v_pk_add_f32 v[{Y+i}:{Y+i+1}], v[{Y+i}:{Y+i+1}], v[18:19]")
    for p in range(2):
        Y = ACC + p * 32; T = Y + 8
        for i in range(0, 8, 2):
            k.e(f"v_pk_mul_f32 v[{T+i}:{T+i+1}], v[{Y+i}:{Y+i+1}], s[48:49]")
    for p in range(2):
        T = ACC + p * 32 + 8
        for i in range(8): k.e(f"v_exp_f32 v{T+i}, v{T+i}")
    for p in range(2):
        T = ACC + p * 32 + 8
        for i in range(8): k.e(f"v_add_f32 v{T+i}, 1.0, v{T+i}")
    for p in range(2):
        T = ACC + p * 32 + 8
        for i in range(8): k.e(f"v_rcp_f32 v{T+i}, v{T+i}")
    k.e("s_nop 0")
    for p in range(2):
        Y = ACC + p * 32; T = Y + 8
        for i in range(0, 8, 2):
            k.e(f"v_pk_mul_f32 v[{Y+i}:{Y+i+1}], v[{Y+i}:{Y+i+1}], v[{T+i}:{T+i+1}]")
    for p in range(2):
        Y = ACC + p * 32
        for i in range(0, 8, 2):
            k.e(f"v_pk_fma_f32 v[{Y+i}:{Y+i+1}], v[{Y+i}:{Y+i+1}], v[{SUM+p*8+i}:{SUM+p*8+i+1}], v[{128+p*8+i}:{129+p*8+i}]")
    for p in range(2):
        Y = ACC + p * 32
        for i in range(0, 8, 2):
            k.e(f"v_cvt_pk_bf16_f32 v{40+p*4+i//2}, v{Y+i}, v{Y+i+1}")
        k.e(f"buffer_store_dwordx4 v[{40+p*4}:{43+p*4}], v16, s[28:31], s54 offen offset:{64*p}")

XSRC = 239
UFL = 252

def gen_m2(name="main_kernel", debug=None, prof=False, l2pf=True, kidx=1):
    k = Em()
    M.PRE_HOOK = lambda kk: poll(kk, 'u', 14, 28)
    nst = [0]
    def stamp():
        if not prof: return
        i = nst[0]; nst[0] += 1
        k.e(f"s_memtime s[{64+2*i}:{65+2*i}]")
        k.e(f"s_memrealtime s[100:101]")
        k.e("s_waitcnt lgkmcnt(0)")
        k.e(f"s_mov_b32 s{65+2*i}, s100")
    k.L.append(kernel_header(name))
    cscale = math.log2(math.e) / math.sqrt(128.0)
    tl_begin(k, prof)
    k(f"""
    s_cmp_ge_u32 s2, 256
    s_cbranch_scc1 L_at_done
    s_load_dwordx2 s[4:5], s[0:1], {KA_K}
    s_load_dwordx2 s[6:7], s[0:1], {KA_V}
    s_load_dwordx2 s[8:9], s[0:1], {KA_WQ}
    s_load_dwordx2 s[10:11], s[0:1], {KA_WO}
    s_load_dwordx2 s[12:13], s[0:1], {KA_WS}
    v_lshrrev_b32 v1, 6, v0
    v_and_b32 v0, 63, v0
    s_and_b32 s{S_G}, s2, 7
    v_readfirstlane_b32 s{S_W}, v1
    s_lshr_b32 s{S_RB}, s2, 3
    s_lshl_b32 s14, s{S_G}, 19          ; g*524288
    s_lshl_b32 s15, s{S_RB}, 16         ; rb*65536
    s_lshl_b32 s3, s{S_G}, 21           ; g*2MB
    s_add_u32 s3, s3, {SLAB_OFF}
    s_waitcnt lgkmcnt(0)
    """)
    stamp()
    srd_off(k, SRD_K, 4, 5, "s14", 524288)
    srd_off(k, SRD_V, 6, 7, "s14", 524288)
    srd(k, SRD_WQ, 8, 9, 4194304)
    srd(k, SRD_WO, 10, 11, 4194304)
    srd_off(k, SRD_X, 12, 13, "s15", 65536)
    srd_off(k, SRD_SL, 12, 13, "s3", 2097152)
    srd(k, SRD_WS, 12, 13, 8 << 20)
    k(f"""
    s_load_dwordx2 s[12:13], s[0:1], {KA_W1}
    s_and_b32 s{S_NT}, s{S_G}, 1
    s_lshl_b32 s{S_NT}, s{S_NT}, 2
    s_and_b32 s3, s{S_RB}, 3
    s_add_u32 s{S_NT}, s{S_NT}, s3
    s_mov_b32 s{S_NT2}, s{S_NT}
    s_lshr_b32 s{S_MT}, s{S_G}, 1
    s_lshl_b32 s{S_MT2}, s{S_MT}, 3
    s_mul_i32 s{S_MT}, s{S_MT}, 7
    s_lshr_b32 s3, s{S_RB}, 2
    s_add_u32 s{S_MT}, s{S_MT}, s3
    s_add_u32 s{S_MT2}, s{S_MT2}, s3
    s_waitcnt lgkmcnt(0)
    """)
    srd(k, SRD_W1, 12, 13, 2048 * 3584)
    if l2pf:
        k(f"""
        s_lshl_b32 s14, s{S_W}, 6
        v_add_u32 v1, s14, v0               ; tid
        v_lshrrev_b32 v2, 4, v1
        v_and_b32 v3, 15, v1
        v_lshlrev_b32 v2, 13, v2
        v_lshl_add_u32 v250, v3, 6, v2
        s_lshl_b32 s14, s{S_RB}, 17         ; rb*16*8192
        s_lshl_b32 s15, s{S_G}, 10
        s_add_u32 s14, s14, s15
        buffer_load_dword v246, v250, s[{SRD_WQ}:{SRD_WQ+3}], s14 offen
        v_lshlrev_b32 v251, 6, v1           ; tid*64
        """)
    k(f"""
    v_lshrrev_b32 v1, 4, v0             ; l>>4 (0..3)
    v_and_b32 v2, 15, v0                ; p = l&15
    ; DV: (l>>4)*256 + ((p ^ ((l>>4)<<2))*16)
    v_lshlrev_b32 v3, 2, v1
    v_xor_b32 v3, v2, v3
    v_lshlrev_b32 v3, 4, v3
    v_lshl_add_u32 v{DV}, v1, 8, v3
    v_lshl_add_u32 v{DW}, v1, 13, v3
    """)
    for i in range(4):
        k(f"""
        v_add_u32 v4, {4*i}, v1
        v_xor_b32 v4, v2, v4
        v_lshlrev_b32 v4, 4, v4
        v_lshl_add_u32 v{DK+i}, v1, 8, v4
        """)
    k(f"""
    v_and_b32 v4, 31, v0
    v_lshrrev_b32 v5, 5, v0             ; hf
    v_xor_b32 v6, v5, v2
    v_lshlrev_b32 v7, 8, v4
    """)
    for t in range(8):
        k.e(f"v_xor_b32 v8, {2*t}, v6")
        k.e(f"v_lshl_add_u32 v{KA+t}, v8, 4, v7")
    k(f"""
    v_bfe_u32 v8, v0, 2, 2              ; r
    v_bfe_u32 v9, v0, 4, 1              ; csub
    v_and_b32 v10, 3, v0                ; c
    v_lshl_add_u32 v11, v5, 2, v8       ; 4hf + r
    v_lshlrev_b32 v11, 8, v11
    v_lshl_add_u32 v11, v9, 5, v11
    v_lshl_add_u32 v12, v10, 3, v11
    """)
    for db in range(4):
        k.e(f"v_xor_b32 v13, {db}, v8")
        k.e(f"v_lshl_add_u32 v13, v13, 6, v12")
        k.e(f"v_add_u32 v{VA+db}, {VRING}, v13")
    k(f"""
    s_and_b32 s14, s{S_W}, 1
    s_lshl_b32 s14, s14, 14
    s_lshr_b32 s15, s{S_W}, 1
    s_mul_i32 s15, s15, {131072-32768}
    s_add_u32 s{S_WRING}, s14, s15
    s_add_u32 s{S_WRING}, s{S_WRING}, 32768
    v_lshl_add_u32 v11, v5, 3, v8
    v_lshlrev_b32 v11, 8, v11
    v_lshl_add_u32 v11, v9, 5, v11
    v_and_b32 v13, 1, v10
    v_lshrrev_b32 v14, 1, v10
    v_lshl_or_b32 v13, v13, 1, v14      ; sigma(c)
    v_lshl_add_u32 v11, v13, 3, v11
    v_add_u32 v11, s{S_WRING}, v11
    """)
    for db in range(4):
        k.e(f"v_xor_b32 v13, {db}, v8")
        k.e(f"v_lshl_add_u32 v{WA+db}, v13, 6, v11")
    k(f"""
    v_lshlrev_b32 v15, 4, v0            ; lane*16
    v_add_u32 v{XA}, {XT}, v15
    v_mov_b32 v{XSRC}, v15
    """)
    xg = []
    for i in range(16):
        xg.append([f"s_lshl_b32 s3, s{S_W}, 14",
                   f"s_add_u32 s3, s3, {i*1024}",
                   f"s_add_u32 m0, s3, {XT}",
                   "s_nop 0",
                   f"buffer_load_dwordx4 v{XSRC}, s[{SRD_X}:{SRD_X+3}], s3 offen lds"])
    k.e(f"s_cmp_ge_u32 s{S_RB}, 28")
    k.e("s_cbranch_scc1 L_no_g1")
    g1_phase(k, stamp, xg)
    k.e("s_branch L_g1_done")
    k.lab("L_no_g1")
    for grp in xg:
        for ins in grp: k.e(ins)
    nst[0] -= 2
    stamp(); stamp()
    k.lab("L_g1_done")
    k(f"""
    s_and_b32 s14, s{S_W}, 1
    s_lshl_b32 s14, s14, 14
    s_lshr_b32 s15, s{S_W}, 1
    s_mul_i32 s15, s15, {131072-32768}
    s_add_u32 s{S_WRING}, s14, s15
    s_add_u32 s{S_WRING}, s{S_WRING}, 32768
    """)
    k(f"""
    s_lshl_b32 s14, s{S_G}, 2
    s_add_u32 s14, s14, s{S_W}
    s_lshl_b32 s{S_WOFF}, s14, 8
    """)
    def wdma(t, srd, RS):
        out = [f"s_add_u32 m0, s{S_WRING}, {(t&3)*4096}"]
        for i in range(4):
            if i == 0:
                out.append("s_nop 0")
                out.append(f"buffer_load_dwordx4 v{DW}, s[{srd}:{srd+3}], s{S_WOFF} offen lds")
            else:
                out.append(f"s_add_u32 s{S_WOFF}, s{S_WOFF}, {4*RS-1024}")
                out.append(f"buffer_load_dwordx4 v{DW}, s[{srd}:{srd+3}], s{S_WOFF} offen offset:{1024*i} lds")
        out.append(f"s_add_u32 s{S_WOFF}, s{S_WOFF}, {4*RS+3072}")
        return out
    k(f"""
    s_lshl_b32 s{S_KOFF}, s{S_W}, 12          ; w*4096
    s_mov_b32 s{S_M0K}, s{S_KOFF}
    s_add_u32 s{S_M0V}, s{S_KOFF}, {VRING}
    s_mov_b32 s{S_VOFF}, s{S_KOFF}
    """)
    def kdma(slot):
        out = [f"s_add_u32 m0, s{S_M0K}, {slot*16384}", "s_nop 0"]
        for i in range(4):
            out.append(f"buffer_load_dwordx4 v{DK+i}, s[{SRD_K}:{SRD_K+3}], s{S_KOFF} offen offset:{1024*i} {POL()} lds")
        out.append(f"s_add_u32 s{S_KOFF}, s{S_KOFF}, 16384")
        return out
    def vdma(slot):
        out = [f"s_add_u32 m0, s{S_M0V}, {slot*16384}", "s_nop 0"]
        for i in range(4):
            out.append(f"buffer_load_dwordx4 v{DV}, s[{SRD_V}:{SRD_V+3}], s{S_VOFF} offen offset:{1024*i} {POL()} lds")
        out.append(f"s_add_u32 s{S_VOFF}, s{S_VOFF}, 16384")
        return out
    for ins in kdma(0) + kdma(1): k.e(ins)
    for t in range(4):
        for ins in wdma(t, SRD_WQ, 8192): k.e(ins)
    k.e(f"s_cmp_ge_u32 s{S_RB}, 28")
    k.e("s_cbranch_scc1 L_no_g1f")
    g1_finish(k)
    k.e("s_waitcnt vmcnt(18)")
    k.e("s_branch L_g1f_done")
    k.lab("L_no_g1f")
    k.e("s_waitcnt vmcnt(16)")
    k.lab("L_g1f_done")
    k.e("s_barrier")
    stamp()
    late = []
    if l2pf:
        late = [f"s_lshl_b32 s14, s{S_RB}, 14",
                f"buffer_load_dword v247, v251, s[{SRD_K}:{SRD_K+3}], s14 offen",
                f"buffer_load_dword v248, v251, s[{SRD_V}:{SRD_V+3}], s14 offen",
                f"s_lshl_b32 s15, s{S_G}, 19",
                "s_add_u32 s14, s14, s15",
                f"buffer_load_dword v249, v251, s[{SRD_WO}:{SRD_WO+3}], s14 offen"]
    gen_proj(k, "q", SRD_WQ, 8192, True, True, late)
    stamp()
    k(f"""
    s_waitcnt vmcnt({3 if l2pf else 0}) lgkmcnt(0)
    s_barrier
    """)
    for ins in vdma(0) + kdma(2) + vdma(1): k.e(ins)
    k.e(f"s_cmp_ge_u32 s{S_RB}, 28")
    k.e("s_cbranch_scc1 L_no_usig")
    k.e(f"s_lshl_b32 s14, s{S_NT}, 8")
    k.e(f"s_add_u32 s14, s14, {UCNT_OFF}")
    signal(k, "u", 14)
    k.lab("L_no_usig")
    k.e(f"s_load_dwordx2 s[8:9], s[0:1], {KA_W2}")
    k(f"""
    s_lshl_b32 s14, s{S_W}, 6
    v_add_u32 v1, s14, v0                       ; tid
    v_lshrrev_b32 v2, 1, v1
    v_lshlrev_b32 v2, 12, v2
    v_and_b32 v3, 1, v1
    v_lshl_add_u32 v250, v3, 6, v2
    s_waitcnt lgkmcnt(0)
    """)
    srd(k, SRD_WQ, 8, 9, 1792 * 4096)
    k.e(f"s_mov_b32 s14, {f2h(cscale)}")
    k.e(f"s_mov_b32 s15, {f2h(cscale)}")
    k.e("s_nop 7")
    for db in range(4):
        for qb in range(2):
            a = PACC + (db * 2 + qb) * 16
            for r in range(0, 16, 2):
                k.e(f"v_pk_mul_f32 v[{a+r}:{a+r+1}], v[{a+r}:{a+r+1}], s[14:15]")
            for r in range(0, 16, 2):
                q = QF + qb * 32 + (2 * db + (r >> 3)) * 4 + ((r & 7) >> 1)
                k.e(f"v_cvt_pk_bf16_f32 v{q}, v{a+r}, v{a+r+1}")
    if debug == "q":
        k(f"""
        s_lshl_b32 s14, s{S_RB}, 2
        s_add_u32 s14, s14, s{S_W}
        s_mul_i32 s14, s14, 16384
        v_lshlrev_b32 v1, 2, v0
        """)
        for i in range(64):
            k.e(f"buffer_store_dword v{QF+i}, v1, s[{SRD_SL}:{SRD_SL+3}], s14 offen offset:{(i&15)*256}")
            if (i & 15) == 15: k.e("s_add_u32 s14, s14, 4096")
        k.e("s_waitcnt vmcnt(0)")
        k.e("s_endpgm")
    for t in range(4):
        for ins in k_read(0, t, t): k.e(ins)
    for t in range(8):
        k.e(f"s_waitcnt lgkmcnt({min(3, 7-t)})")
        for qb in range(2):
            d = Sbuf(0, qb)
            k.e(mfma(d, KF + (t & 3) * 4, QF + qb * 32 + t * 4, "0" if t == 0 else d))
        if t + 4 < 8:
            for ins in k_read(0, t + 4, t + 4): k.e(ins)
    for i in range(128):
        k.e(f"v_accvgpr_write_b32 a{OA+i}, 0")
    k.e(f"v_mov_b32 v{LL}, 0")
    k.e(f"v_mov_b32 v{LL+1}, 0")
    k.e(f"v_mov_b32 v{LS+2}, 0")
    k.e(f"v_mov_b32 v{LS+3}, 0")
    k.e(f"s_mov_b32 s{S_THR}, {f2h(2.0**THR_LOG2)}")
    for qb in range(2):
        S = Sbuf(0, qb)
        t, t2 = T0, T0 + 1
        k.e(f"v_max3_f32 v{t}, v{S}, v{S+1}, v{S+2}")
        for r in range(3, 15, 2):
            k.e(f"v_max3_f32 v{t}, v{t}, v{S+r}, v{S+r+1}")
        k.e(f"v_max_f32 v{t}, v{t}, v{S+15}")
        k.e(f"v_mov_b32 v{t2}, v{t}")
        k.e("s_nop 1")
        k.e(f"v_permlane32_swap_b32 v{t2}, v{t}")
        k.e(f"v_max_f32 v{t}, v{t}, v{t2}")
        for r in range(16):
            k.e(f"v_sub_f32 v{S+r}, v{S+r}, v{t}")
            k.e(f"v_sub_f32 v{NEGM+16*qb+r}, 0, v{t}")
    k.e("s_waitcnt vmcnt(8)")
    k.e("s_barrier")
    stamp()
    for ins in k_read(1, 0, 0) + k_read(1, 1, 1): k.e(ins)
    rare_sites = []
    def dma_plan(lst):
        return {8: [lst[0]], 11: [lst[2]], 15: [lst[3]], 19: [lst[4]], 23: [lst[5]], 27: [lst[6]]}
    def step(u, rid, **kw):
        S = dict(do_qk=True, do_pv=True, qk_next=True, pv_next=True, dma=None, pre=None, prev7=3)
        S.update(kw)
        lk = Look(u, S['do_qk'], S['do_pv'], S['qk_next'], S['pv_next'])
        lk.prev7 = S['prev7']
        gen_step(k, u, S['do_qk'], S['do_pv'], True, lk, S['dma'], S['pre'], rid)
        rare_sites.append((rid, u & 1))
    step(0, "s0", do_pv=False, dma=dma_plan(kdma(3)), prev7=1)
    k.e(f"s_mov_b32 s{S_CNT}, 7")
    k.lab("L_main")
    for uu in range(1, 9):
        j = uu >> 1
        pre = None
        if uu & 1 == 0:
            pre = ["s_waitcnt vmcnt(8)", "s_barrier"]
            dm = dma_plan(kdma((j + 3) & 3))
        else:
            dm = dma_plan(vdma((j + 2) & 3))
        step(uu, f"m{uu}", dma=dm, pre=pre)
    k.e(f"s_sub_u32 s{S_CNT}, s{S_CNT}, 1")
    k.e(f"s_cmp_lg_u32 s{S_CNT}, 0")
    k.e(f"s_cbranch_scc1 L_main")
    def tw(i):
        return [f"s_and_b32 s14, s{S_RB}, 3", f"s_mul_i32 s14, s14, {448*4096}", f"s_lshl_b32 s15, s{S_MT2}, 7",
                f"s_add_u32 s14, s14, s15", f"s_add_u32 s14, s14, {i*128*4096}",
                f"buffer_load_dword v{246+(i&1)}, v250, s[{SRD_WQ}:{SRD_WQ+3}], s14 offen"]
    def tu(i):
        return [f"s_lshl_b32 s14, s{S_NT2}, 1", f"s_mul_i32 s14, s14, {112*1024}", f"s_lshr_b32 s15, s{S_RB}, 2",
                f"s_mul_i32 s15, s15, 28672", f"s_add_u32 s14, s14, s15", f"s_add_u32 s14, s14, {UF_OFF + i*16384}",
                f"buffer_load_dword v{248+(i&1)}, v251, s[{SRD_WS}:{SRD_WS+3}], s14 offen sc1"]
    def merge(d, g, lst):
        d = dict(d) if d else {}
        d[g] = d.get(g, []) + lst
        return d
    k(f"""
    s_lshl_b32 s14, s{S_NT2}, 8
    s_add_u32 s14, s14, {UCNT_OFF}
    v_mov_b32 v{UFL}, 0
    buffer_load_dword v{UFL}, v{UFL}, s[{SRD_DBG}:{SRD_DBG+3}], s14 offen sc1
    """)
    step(57, "t57", dma=dma_plan(vdma((28 + 2) & 3)))
    step(58, "t58", pre=["s_waitcnt vmcnt(4)", "s_barrier",
                         f"v_readfirstlane_b32 s14, v{UFL}", "s_cmp_ge_u32 s14, 28", "s_cbranch_scc1 L_uok"] +
                        [f"s_lshl_b32 s14, s{S_NT2}, 8", f"s_add_u32 s14, s14, {UCNT_OFF}", "UPOLL", "L_uok:"],
         dma=merge(merge(None, 3, tw(0)), 19, tw(1)))
    step(59, "t59", dma=merge(merge(dma_plan(vdma((29 + 2) & 3)), 29, tu(0)), 30, tu(1)))
    step(60, "t60", pre=["s_waitcnt vmcnt(8)", "s_barrier"], dma=merge(merge(None, 3, tw(2)), 19, tw(3)))
    step(61, "t61")
    step(62, "t62", pre=["s_waitcnt vmcnt(4)", "s_barrier"], qk_next=False)
    step(63, "t63", do_qk=False, qk_next=False, prev7=2)
    p = 63 & 1
    k.e(f"v_add_f32 v{LL}, v{LL}, v{LS+2*p}")
    k.e(f"v_add_f32 v{LL+1}, v{LL+1}, v{LS+2*p+1}")
    for i in range(8):
        nxt = v_read(63, i + 2, i + 2) if i + 2 < 8 else []
        prevn = 2 if (i == 0 or i + 1 < 8) else 0
        k.e(f"s_waitcnt lgkmcnt({prevn})")
        db, ks = i >> 1, i & 1
        for qb in range(2):
            d = OA + (db * 2 + qb) * 16
            k.e(mfma(d, VF + (i & 3) * 4, Pbuf(p, qb, ks), d, dfile='a'))
            if qb == 0:
                for ins in nxt: k.e(ins)
    k.e("s_waitcnt lgkmcnt(0)")
    stamp()
    k(f"""
    s_waitcnt lgkmcnt(0)
    s_barrier
    s_lshl_b32 s{S_WRING}, s{S_W}, 14
    v_lshrrev_b32 v1, 4, v0
    v_mul_u32_u24 v1, {1024-256}, v1
    v_add_u32 v{DW}, v{DV}, v1
    ; soffset = g*512*1024 + w*256
    s_lshl_b32 s{S_WOFF}, s{S_G}, 19
    s_lshl_b32 s14, s{S_W}, 8
    s_add_u32 s{S_WOFF}, s{S_WOFF}, s14
    """)
    for t in range(4):
        for ins in wdma(t, SRD_WO, 1024): k.e(ins)
    k.e(f"s_sub_u32 s14, s{S_WRING}, {VRING}")
    for db in range(4):
        k.e(f"v_add_u32 v{WA+db}, s14, v{VA+db}")
    for qb in range(2):
        k.e(f"v_mov_b32 v{T0+qb}, v{LL+qb}")
    k.e("s_nop 1")
    for qb in range(2):
        k.e(f"v_permlane32_swap_b32 v{T0+qb}, v{LL+qb}")
    for qb in range(2):
        k.e(f"v_add_f32 v{LL+qb}, v{LL+qb}, v{T0+qb}")
    for qb in range(2):
        k.e(f"v_rcp_f32 v{LL+qb}, v{LL+qb}")
    k(f"""
    s_lshl_b32 s14, s{S_W}, 14
    s_add_u32 s14, s14, {XT}
    v_lshlrev_b32 v15, 4, v0
    v_add_u32 v14, s14, v15
    v_add_u32 v{XA}, {XT}, v15
    """)
    for db in range(4):
        for qb in range(2):
            for ks in range(2):
                tb = S0 + ((db * 4 + qb * 2 + ks) & 3) * 16
                for r in range(8):
                    k.e(f"v_accvgpr_read_b32 v{tb+r}, a{OA+(db*2+qb)*16+ks*8+r}")
                for r in range(8):
                    k.e(f"v_mul_f32 v{tb+r}, v{tb+r}, v{LL+qb}")
                for r in range(0, 8, 2):
                    k.e(f"v_cvt_pk_bf16_f32 v{tb+8+r//2}, v{tb+r}, v{tb+r+1}")
                k.e(f"ds_write_b128 v14, v[{tb+8}:{tb+11}] offset:{(2*db+ks)*2048 + qb*1024}")
    if debug == "o":
        k("""
        s_waitcnt vmcnt(0) lgkmcnt(0)
        s_barrier
        """)
        k(f"""
        s_lshl_b32 s14, s{S_RB}, 16
        s_lshl_b32 s15, s{S_W}, 14
        s_add_u32 s14, s14, s15
        v_add_u32 v13, s15, v{XA}
        """)
        for i in range(16):
            k.e(f"ds_read_b128 v[16:19], v13 offset:{i*1024}")
            k.e("s_waitcnt lgkmcnt(0)")
            k.e(f"buffer_store_dwordx4 v[16:19], v15, s[{SRD_SL}:{SRD_SL+3}], s14 offen")
            k.e("s_add_u32 s14, s14, 1024")
            k.e("s_waitcnt vmcnt(0)")
        k.e("s_endpgm")
    k("""
    s_waitcnt lgkmcnt(0)
    s_barrier
    """)
    stamp()
    gen_proj(k, "o", SRD_WO, 1024, False, True)
    stamp()
    vm1 = Ctr(63)
    k.e("s_waitcnt lgkmcnt(0)")
    k.e("s_barrier")
    k(f"""
    v_lshlrev_b32 v1, 4, v0
    s_lshl_b32 s14, s{S_RB}, 16          ; rb*65536
    s_lshl_b32 s15, s{S_W}, 14           ; w*16384
    s_add_u32 s14, s14, s15
    s_nop 7
    """)
    for cb in range(4):
        for qb in range(2):
            a = PACC + (cb * 2 + qb) * 16
            o = QF + (cb * 2 + qb) * 8
            for r in range(0, 16, 2):
                k.e(f"v_cvt_pk_bf16_f32 v{o+r//2}, v{a+r}, v{a+r+1}")
            k.e("s_nop 1")
            for pr in range(2):
                k.e(f"v_permlane32_swap_b32 v{o+4*pr}, v{o+4*pr+2}")
                k.e(f"v_permlane32_swap_b32 v{o+4*pr+1}, v{o+4*pr+3}")
            for pr in range(2):
                idx = cb * 4 + qb * 2 + pr
                k.e(f"buffer_store_dwordx4 v[{o+4*pr}:{o+4*pr+3}], v1, s[{SRD_SL}:{SRD_SL+3}], s14 offen offset:{(idx&3)*1024} sc1")
                vm1.issue(("ST", 0))
                if (idx & 3) == 3: k.e("s_add_u32 s14, s14, 4096")
    g2_setup(k, vm1)
    n = vm1.need(lambda t: t[0] == "ST")
    k.e(f"s_waitcnt vmcnt({n})")
    k.e("s_barrier")
    k.e(f"s_lshl_b32 s52, s{S_RB}, 8")
    k.e(f"s_add_u32 s52, s52, {CNT_OFF}")
    signal(k, "slab", 52)
    stamp()
    g2_main(k, vm1, stamp)
    if prof:
        k.e("s_waitcnt vmcnt(0)")
        stamp()
        k.e(f"s_load_dwordx2 s[12:13], s[0:1], {KA_WS}")
        k.e("s_waitcnt lgkmcnt(0)")
        srd_off(k, 4, 12, 13, 64 << 20, 1 << 20)
        k.e(f"s_lshl_b32 s14, s2, 2")
        k.e(f"s_add_u32 s14, s14, s{S_W}")
        k.e(f"s_lshl_b32 s14, s14, 7")
        for i in range(nst[0]):
            k.e(f"v_mov_b32 v2, s{64+2*i}")
            k.e(f"v_mov_b32 v3, s{65+2*i}")
            k.e(f"v_mov_b32 v1, {8*i}")
            k.e(f"buffer_store_dwordx2 v[2:3], v1, s[4:7], s14 offen")
        tl_end(k, prof, kidx)
    k.lab("L_at_done")
    k.e("s_endpgm")
    for rid, p in rare_sites:
        k.lab(f"L_rare_{rid}")
        k.e(f"s_call_b64 s[{S_RET}:{S_RET+1}], L_raresub_{p}")
        k.e(f"s_branch L_back_{rid}")
    gen_rare(k, 0)
    gen_rare(k, 1)
    return k.text(), kernel_desc(name, 512, 102, 256), f"; @launch kernel={name} grid=(256,1,1) block=(256,1,1) lds=163840"
```

```python
from common import *
import struct, math
def f2h(x):
    return "0x%08x" % struct.unpack("<I", struct.pack("<f", x))[0]

S0, S1 = 16, 48
NEGM = 80
P0, P1 = 112, 128
QF = 144
ET = 208
LS = 216
LL = 220
KA = 222
VA = 230
DK = 234
DV = 238
WA = 240
XA = 244
DW = 245
T0 = 1
PACC = 16
OA = 0
KF = 128
VF = 144
WF = 128
XF = 160
KRING, VRING, SPARE = 0, 65536, 131072
XT = 65536
S_G, S_RB, S_W = 40, 41, 42
S_KOFF, S_VOFF = 43, 44
S_M0K, S_M0V = 45, 46
S_WOFF, S_WRING = 47, 48
S_THR = 49
S_CNT = 50
S_RET = 52
SRD_K, SRD_V, SRD_WQ, SRD_WO, SRD_X, SRD_SL = 16, 20, 24, 28, 32, 36
THR_LOG2 = 60
EXPF = set()
PRE_HOOK = None
def POL():
    for x, y in (('nt','nt'),('sc1','sc1'),('sc01','sc0 sc1'),('sc0','sc0')):
        if x in EXPF: return y
    return ''

def Sbuf(p, qb): return (S0 if p == 0 else S1) + 16 * qb
def Pbuf(p, qb, ks): return (P0 if p == 0 else P1) + 8 * qb + 4 * ks

def mfma(d, a, b, c, dfile='v', afile='a', bfile='v'):
    cs = c if isinstance(c, str) else f"{dfile}[{c}:{c+15}]"
    return f"v_mfma_f32_32x32x16_bf16 {dfile}[{d}:{d+15}], {afile}[{a}:{a+3}], {bfile}[{b}:{b+3}], {cs}"

def k_read(unit, t, ring_i):
    tile = unit >> 1
    off = (tile & 3) * 16384 + (unit & 1) * 8192
    d = KF + (ring_i & 3) * 4
    return [f"ds_read_b128 a[{d}:{d+3}], v{KA+t} offset:{off}"]

def v_read(unit, i, ring_i):
    tile = unit >> 1
    db, ks = i >> 1, i & 1
    off = (tile & 3) * 16384 + (unit & 1) * 8192 + ks * 4096
    d = VF + (ring_i & 3) * 4
    return [f"ds_read_b64_tr_b16 a[{d}:{d+1}], v{VA+db} offset:{off}",
            f"ds_read_b64_tr_b16 a[{d+2}:{d+3}], v{VA+db} offset:{off+2048}"]

LSP = {(0,0):216, (0,1):218, (1,0):252, (1,1):254}
def softmax_ops(p):
    ex, ad, cv = [], [], []
    for n in range(32):
        qb, r = n >> 4, n & 15
        e = ET + (n & 7)
        ex.append(f"v_exp_f32 v{e}, v{Sbuf(p,qb)+r}")
        ls = LS + 2 * p + qb
        pk = Pbuf(p,qb,r>>3)+((r&7)>>1)
        if 'pkadd' in EXPF:
            lp = LSP[(p, qb)]
            if r & 1 == 0: ad.append(None)
            elif r == 1: ad.append(f"v_mov_b32 v{lp}, v{e-1}\nv_mov_b32 v{lp+1}, v{e}")
            else: ad.append(f"v_pk_add_f32 v[{lp}:{lp+1}], v[{lp}:{lp+1}], v[{e-1}:{e}]")
        elif 'dot2' in EXPF:
            ad.append(None)
        elif r == 0:
            ad.append(None)
        elif r == 1:
            ad.append(f"v_add_f32 v{ls}, v{ET+((n-1)&7)}, v{e}")
        else:
            ad.append(f"v_add_f32 v{ls}, v{ls}, v{e}")
        if r & 1:
            c = f"v_cvt_pk_bf16_f32 v{pk}, v{ET+((n-1)&7)}, v{e}"
            cv.append(c)
        else:
            cv.append(None)
    return ex, ad, cv

EXP_GAP = []
def _mk():
    g = 0; n = 0
    while n < 32:
        EXP_GAP.append(g); n += 1
        if g in (3, 7):
            EXP_GAP.append(g); n += 1
        g += 1
_mk()

def gen_step(k, u, do_qk=True, do_pv=True, do_sm=True, look=None, dma=None, pre=None, rare_id=None, prev_l=True, extra=None):
    p = u & 1
    gaps = [[] for _ in range(32)]
    for i in range(8):
        rd = look(i)
        nread = len(rd)
        if 'nolds' in EXPF: rd = []
        if 'nokread' in EXPF: rd = [x for x in rd if 'tr_b16' in x]
        if 'novread' in EXPF: rd = [x for x in rd if 'tr_b16' not in x]
        for j, ins in enumerate(rd):
            gaps[4 * i + min(j, 2)].append(ins)
    if do_sm and 'nosm' in EXPF:
        gaps[31].append(f"v_cmp_lt_f32 vcc, s{S_THR}, v{LL}")
    elif do_sm:
        ex, ad, cv = softmax_ops(p)
        for n in range(32):
            g = EXP_GAP[n]
            if 'noexp' not in EXPF: gaps[g].append(ex[n])
        for n in range(32):
            g = EXP_GAP[n] + 1
            if ad[n] and 'noadd' not in EXPF: gaps[g] += ad[n].split("\n")
            if cv[n] and 'nocvt' not in EXPF: gaps[g].append(cv[n])
            if 'dot2' in EXPF and cv[n] and g + 1 < 32:
                qb, r = n >> 4, n & 15
                pk = Pbuf(p,qb,r>>3)+((r&7)>>1)
                ls = LS + 2 * p + qb
                if r == 1: gaps[g+1].append(f"v_dot2_f32_bf16 v{ls}, v{pk}, v239, 0")
                else: gaps[g+1].append(f"v_dot2_f32_bf16 v{ls}, v{pk}, v239, v{ls}")
        if 'pkadd' in EXPF:
            gaps[30].append(f"v_add_f32 v{LS+2*p}, v{LSP[(p,0)]}, v{LSP[(p,0)]+1}") if False else None
        gaps[31].insert(0, f"v_max_f32 v{T0}, v{LS+2*p}, v{LS+2*p+1}")
        gaps[31].append(f"v_cmp_lt_f32 vcc, s{S_THR}, v{T0}")
    if prev_l:
        pp = 1 - p
        gaps[1].append(f"v_add_f32 v{LL}, v{LL}, v{LS+2*pp}")
        gaps[2].append(f"v_add_f32 v{LL+1}, v{LL+1}, v{LS+2*pp+1}")
    if dma and 'nodma' not in EXPF:
        for g, lst in dma.items():
            gaps[g] += lst
    if pre:
        for ins in pre:
            if ins == "UPOLL":
                PRE_HOOK(k)
            elif ins.endswith(":"):
                k.lab(ins[:-1])
            else:
                k.e(ins)
    for g in range(32):
        i, sub = g >> 2, g & 3
        if sub == 0:
            k.e(f"s_waitcnt lgkmcnt({look.outstanding(i)})" if not (EXPF & {'nolds','nokread','novread'}) else "s_waitcnt lgkmcnt(2)")
        ins = None
        if sub < 2 and do_qk:
            qb = sub
            d = Sbuf(1 - p, qb)
            c = (NEGM + 16 * qb) if i == 0 else d
            ins = mfma(d, KF + (i & 3) * 4, QF + qb * 32 + i * 4, c)
        elif sub >= 2 and do_pv:
            qb = sub - 2
            db, ks = i >> 1, i & 1
            d = OA + (db * 2 + qb) * 16
            ins = mfma(d, VF + (i & 3) * 4, Pbuf(1 - p, qb, ks), d, dfile='a')
        if ins and 'noqk' in EXPF and sub < 2: ins = None
        if ins and 'nopv' in EXPF and sub >= 2: ins = None
        if ins: k.e(ins)
        for f in gaps[g]: k.e(f)
    if do_sm:
        k.e(f"s_cbranch_vccnz L_rare_{rare_id}")
        k.lab(f"L_back_{rare_id}")

class Look:
    def __init__(self, u, qk_this=True, pv_this=True, qk_next=True, pv_next=True):
        self.u = u; self.qk_this = qk_this; self.pv_this = pv_this; self.qk_next = qk_next; self.pv_next = pv_next
        self.prev_counts = None
    def __call__(self, i):
        u = self.u
        out = []
        j = i + 2
        if j < 8:
            if self.qk_this: out += k_read(u + 1, j, j)
            if self.pv_this: out += v_read(u - 1, j, j)
        else:
            if self.qk_next: out += k_read(u + 2, j - 8, j)
            if self.pv_next: out += v_read(u, j - 8, j)
        return out
    def count(self, i):
        return len(self(i))
    def outstanding(self, i):
        if i == 0:
            return self.prev7
        return self.count(i - 1)

def gen_rare(k, p):
    k.lab(f"L_raresub_{p}")
    k.e("s_nop 15")
    k.e("s_nop 7")
    for qb in range(2):
        S = Sbuf(p, qb); SN = Sbuf(1 - p, qb)
        t, t2, f = T0, T0 + 1, T0 + 2
        k.e(f"v_max3_f32 v{t}, v{S}, v{S+1}, v{S+2}")
        for r in range(3, 15, 2):
            k.e(f"v_max3_f32 v{t}, v{t}, v{S+r}, v{S+r+1}")
        k.e(f"v_max_f32 v{t}, v{t}, v{S+15}")
        k.e(f"v_mov_b32 v{t2}, v{t}")
        k.e("s_nop 1")
        k.e(f"v_permlane32_swap_b32 v{t2}, v{t}")
        k.e(f"v_max3_f32 v{t}, v{t}, v{t2}, 0")
        k.e(f"v_exp_f32 v{f}, -v{t}")
        k.e("s_nop 0")
        k.e(f"v_mul_f32 v{LL+qb}, v{LL+qb}, v{f}")
        for db in range(4):
            for r in range(16):
                a = OA + (db * 2 + qb) * 16 + r
                k.e(f"v_accvgpr_read_b32 v{T0+3+(r&3)}, a{a}")
                k.e(f"v_mul_f32 v{T0+3+(r&3)}, v{T0+3+(r&3)}, v{f}")
                k.e(f"v_accvgpr_write_b32 a{a}, v{T0+3+(r&3)}")
        for r in range(16):
            k.e(f"v_sub_f32 v{NEGM+16*qb+r}, v{NEGM+16*qb+r}, v{t}")
            k.e(f"v_sub_f32 v{SN+r}, v{SN+r}, v{t}")
            k.e(f"v_sub_f32 v{S+r}, v{S+r}, v{t}")
        ls = LS + 2 * p + qb
        for r in range(0, 16, 2):
            k.e(f"v_exp_f32 v{ET}, v{S+r}")
            k.e(f"v_exp_f32 v{ET+1}, v{S+r+1}")
            k.e("s_nop 0")
            if r == 0:
                k.e(f"v_add_f32 v{ls}, v{ET}, v{ET+1}")
            else:
                k.e(f"v_add_f32 v{ls}, v{ls}, v{ET}")
                k.e(f"v_add_f32 v{ls}, v{ls}, v{ET+1}")
            k.e(f"v_cvt_pk_bf16_f32 v{Pbuf(p,qb,r>>3)+((r&7)>>1)}, v{ET}, v{ET+1}")
    k.e("s_nop 1")
    k.e(f"s_setpc_b64 s[{S_RET}:{S_RET+1}]")

def gen_proj(k, tag, srd, RS, natural, dma_pre_issued, late=None):
    bp_off = 1024 if natural else 2048
    def dma(t):
        out = [f"s_add_u32 m0, s{S_WRING}, {(t&3)*4096}"]
        for i in range(4):
            if i == 0:
                out.append("s_nop 0")
                out.append(f"buffer_load_dwordx4 v{DW}, s[{srd}:{srd+3}], s{S_WOFF} offen lds")
            else:
                out.append(f"s_add_u32 s{S_WOFF}, s{S_WOFF}, {4*RS-1024}")
                out.append(f"buffer_load_dwordx4 v{DW}, s[{srd}:{srd+3}], s{S_WOFF} offen offset:{1024*i} lds")
        out.append(f"s_add_u32 s{S_WOFF}, s{S_WOFF}, {4*RS+3072}")
        return out
    def reads(t, tt):
        st = t & 1
        out = []
        for qb in range(2):
            d = XF + st * 8 + qb * 4
            out.append(f"ds_read_b128 a[{d}:{d+3}], v{XA} offset:{tt*2048 + qb*1024}")
        for db in range(4):
            for bp in range(2):
                d = WF + st * 16 + db * 4 + bp * 2
                out.append(f"ds_read_b64_tr_b16 a[{d}:{d+1}], v{WA+db} offset:{(t&3)*4096 + bp*bp_off}")
        return out
    def kstep(t_in_body, first, do_read_next, do_dma, vmn):
        t = t_in_body
        st = t & 1
        k.e(f"s_waitcnt vmcnt({vmn}) lgkmcnt(0)")
        rd = reads(t + 1, t + 1) if do_read_next else []
        dm = dma(t) if do_dma else []
        fill = [[] for _ in range(8)]
        for j, ins in enumerate(rd):
            fill[j // 2].append(ins)
        per = [dm[0:3], dm[3:5], dm[5:7], dm[7:]] if dm else [[], [], [], []]
        for j in range(4):
            fill[4 + j] += per[j]
        for db in range(4):
            for qb in range(2):
                d = PACC + (db * 2 + qb) * 16
                c = "0" if first else d
                k.e(mfma(d, WF + st * 16 + db * 4, XF + st * 8 + qb * 4, c, dfile='v', afile='a', bfile='a'))
                for f in fill[db * 2 + qb]: k.e(f)
    if not dma_pre_issued:
        for t in range(4):
            for ins in dma(t): k.e(ins)
    k.e("s_waitcnt vmcnt(12)")
    for ins in reads(0, 0): k.e(ins)
    for t in range(4):
        kstep(t, t == 0, True, True, 8)
    k.e(f"v_add_u32 v{XA}, 8192, v{XA}")
    k.e(f"s_mov_b32 s{S_CNT}, 6")
    k.lab(f"L_proj_{tag}")
    for t in range(4):
        kstep(t, False, True, True, 8)
    k.e(f"v_add_u32 v{XA}, 8192, v{XA}")
    k.e(f"s_sub_u32 s{S_CNT}, s{S_CNT}, 1")
    k.e(f"s_cmp_lg_u32 s{S_CNT}, 0")
    k.e(f"s_cbranch_scc1 L_proj_{tag}")
    nl = 0
    if late:
        for ins in late: k.e(ins)
        nl = sum(1 for x in late if x.startswith("buffer_load"))
    for t in range(4):
        kstep(t, False, t < 3, False, [8 + nl, 4 + nl, nl, nl][t])


LOG2E = 1.4426950408889634
SRD_W1, SRD_WS = 56, 60
S_MT, S_NT = 54, 55
S_TA, S_TB, S_TW = 51, 10, 11

def bf16r(k, a, b, t):
    k.e(f"v_cvt_pk_bf16_f32 v{t}, v{a}, v{b}")
    k.e(f"v_lshlrev_b32 v{a}, 16, v{t}")
    k.e(f"v_and_b32 v{b}, 0xffff0000, v{t}")

G1_PF = 10
def g1_prologue(k, vm):
    RS, NKS, NKST = 3584, 32, 128
    PF, NS, NB = G1_PF, G1_PF + 2, G1_PF + 1
    k(f"""
    s_load_dwordx2 s[8:9], s[0:1], {KA_B1}
    v_lshrrev_b32 v3, 3, v0
    v_and_b32 v4, 7, v0
    v_lshrrev_b32 v5, 1, v3
    v_and_b32 v5, 1, v5
    v_lshlrev_b32 v5, 2, v5
    v_xor_b32 v4, v4, v5
    s_movk_i32 s49, {RS}
    v_mul_lo_u32 v3, v3, s49
    v_lshl_add_u32 v208, v4, 4, v3       ; voffA
    v_lshlrev_b32 v209, 4, v0            ; voffB
    v_lshrrev_b32 v3, 5, v0             ; hf
    v_bfe_u32 v4, v0, 4, 1              ; csub
    v_bfe_u32 v5, v0, 2, 2              ; r
    v_and_b32 v6, 3, v0                 ; c
    v_lshlrev_b32 v7, 3, v3
    v_add_u32 v7, v7, v5
    v_lshlrev_b32 v7, 7, v7
    v_lshl_add_u32 v7, v4, 5, v7
    v_lshl_add_u32 v7, v6, 3, v7
    s_mul_i32 s46, s{S_W}, {NS*2048}
    v_add_u32 v7, s46, v7
    v_lshrrev_b32 v8, 1, v5
    v_lshlrev_b32 v9, 6, v8
    v_add_u32 v210, v7, v9
    v_xor_b32 v9, 64, v9
    v_add_u32 v211, v7, v9
    v_lshlrev_b32 v212, 3, v3            ; hf*8
    s_mul_i32 s43, s{S_W}, {NKS*16*RS}
    s_lshl_b32 s49, s{S_MT}, 7
    s_add_u32 s43, s43, s49
    s_add_u32 s47, s43, {8*RS-1024}
    s_lshl_b32 s44, s{S_NT}, 1
    s_mul_i32 s44, s44, {NKST}
    s_mul_i32 s49, s{S_W}, {NKS}
    s_add_u32 s44, s44, s49
    s_lshl_b32 s44, s44, 10
    s_add_u32 s44, s44, {HF_OFF}
    s_add_u32 s45, s44, {NKST*1024}
    """)
    for ks in range(PF):
        g1_issue(k, vm, ks)
    k(f"""
    s_lshr_b32 s48, s{S_W}, 1
    s_lshl_b32 s48, s48, 6
    s_lshl_b32 s49, s{S_MT}, 7
    s_add_u32 s48, s48, s49
    s_waitcnt lgkmcnt(0)
    s_mov_b32 s4, s8
    s_mov_b32 s5, s9
    s_mov_b32 s6, {1792*2}
    s_mov_b32 s7, 0x00020000
    """)
    for b in range(4):
        k.e(f"buffer_load_dwordx2 v[{214+2*b}:{215+2*b}], v212, s[4:7], s48 offen offset:{16*b}")
        vm.issue(("E", 0))

def g1_issue(k, vm, ks):
    RS = 3584
    NS, NB = G1_PF + 2, G1_PF + 1
    slot = ks % NS
    k.e(f"s_add_u32 m0, s46, {slot*2048}")
    bs = (ks % NB) * 8
    k.e(f"buffer_load_dwordx4 a[{bs}:{bs+3}], v209, s[{SRD_WS}:{SRD_WS+3}], s44 offen")
    vm.issue(("B", ks))
    k.e(f"buffer_load_dwordx4 v208, s[{SRD_W1}:{SRD_W1+3}], s43 offen lds")
    vm.issue(("A", ks))
    k.e(f"buffer_load_dwordx4 v208, s[{SRD_W1}:{SRD_W1+3}], s47 offen offset:1024 lds")
    vm.issue(("A", ks))
    k.e(f"buffer_load_dwordx4 a[{bs+4}:{bs+7}], v209, s[{SRD_WS}:{SRD_WS+3}], s45 offen")
    vm.issue(("B", ks))
    k.e(f"s_add_u32 s43, s43, {16*RS}")
    k.e(f"s_add_u32 s47, s47, {16*RS}")
    k.e(f"s_add_u32 s44, s44, 1024")
    k.e(f"s_add_u32 s45, s45, 1024")

def g1_main(k, vm):
    NKS = 32
    PF, NS, NB = G1_PF, G1_PF + 2, G1_PF + 1
    ACC, AF = 16, 96
    def tr(ks):
        slot = ks % NS
        out = []
        for mb in range(2):
            for bp in range(2):
                d = AF + (ks & 1) * 8 + mb * 4 + bp * 2
                out.append(f"ds_read_b64_tr_b16 a[{d}:{d+1}], v{210+mb} offset:{slot*2048 + bp*512}")
        return out
    n = vm.need(lambda t: t == ("A", 0))
    k.e(f"s_waitcnt vmcnt({n})")
    for ins in tr(0): k.e(ins)
    for ks in range(NKS):
        n = vm.need(lambda t: (t[0] == "A" and t[1] <= ks + 1) or (t[0] == "B" and t[1] <= ks))
        k.e("s_waitcnt lgkmcnt(0)" if n is None else f"s_waitcnt vmcnt({n}) lgkmcnt(0)")
        bs = (ks % NB) * 8
        fill = tr(ks + 1) if ks + 1 < NKS else []
        mf = []
        for mb in range(2):
            for nb in range(2):
                d = ACC + (mb * 2 + nb) * 16
                mf.append(mfma(d, AF + (ks & 1) * 8 + mb * 4, bs + nb * 4, "0" if ks == 0 else d, dfile='v', afile='a', bfile='a'))
        k.e(mf[0])
        for ins in fill[:2]: k.e(ins)
        k.e(mf[1])
        for ins in fill[2:]: k.e(ins)
        k.e(mf[2])
        if ks + PF < NKS:
            g1_issue(k, vm, ks + PF)
        k.e(mf[3])
    k.e("s_nop 7")
    k.e("s_barrier")
    k(f"""
    s_lshl_b32 s48, s{S_W}, 14
    v_add_u32 v3, s48, v209
    s_nop 4
    """)
    for blk in range(4):
        for q in range(4):
            r = ACC + blk * 16 + q * 4
            k.e(f"ds_write_b128 v3, v[{r}:{r+3}] offset:{blk*4096 + q*1024}")
    k(f"""
    s_lshl_b32 s48, s{S_W}, 12
    v_add_u32 v3, s48, v209
    s_waitcnt vmcnt(0) lgkmcnt(0)
    s_barrier
    """)
    for src in range(4):
        for q in range(4):
            r = ACC + src * 16 + q * 4
            k.e(f"ds_read_b128 v[{r}:{r+3}], v3 offset:{src*16384 + q*1024}")
    for b in range(4):
        k.e(f"v_lshlrev_b32 v{80+4*b}, 16, v{214+2*b}")
        k.e(f"v_and_b32 v{81+4*b}, 0xffff0000, v{214+2*b}")
        k.e(f"v_lshlrev_b32 v{82+4*b}, 16, v{215+2*b}")
        k.e(f"v_and_b32 v{83+4*b}, 0xffff0000, v{215+2*b}")
    c1 = -2.0 * 0.7978845608028654 * LOG2E
    k.e(f"s_mov_b32 s48, {f2h(c1)}")
    k.e(f"s_mov_b32 s49, {f2h(c1*0.044715)}")
    k.e(f"v_mov_b32 v96, s48")
    k.e("s_waitcnt lgkmcnt(0)")
    Y = ACC
    for r in range(16):
        k.e(f"v_add_f32 v{Y+r}, v{Y+r}, v{Y+16+r}")
        k.e(f"v_add_f32 v{Y+32+r}, v{Y+32+r}, v{Y+48+r}")
    for r in range(16):
        k.e(f"v_add_f32 v{Y+r}, v{Y+r}, v{Y+32+r}")
    for r in range(0, 16, 2):
        bf16r(k, Y + r, Y + r + 1, 4 + (r & 2))
    for r in range(16):
        k.e(f"v_add_f32 v{Y+r}, v{Y+r}, v{80+r}")
    for r in range(0, 16, 2):
        bf16r(k, Y + r, Y + r + 1, 4 + (r & 2))
    T = Y + 16
    for r in range(16):
        k.e(f"v_mul_f32 v{T+r}, v{Y+r}, v{Y+r}")
    for r in range(16):
        k.e(f"v_fma_f32 v{T+r}, v{T+r}, s49, v96")
    for r in range(16):
        k.e(f"v_mul_f32 v{T+r}, v{T+r}, v{Y+r}")
    for r in range(16):
        k.e(f"v_exp_f32 v{T+r}, v{T+r}")
    for r in range(16):
        k.e(f"v_add_f32 v{T+r}, 1.0, v{T+r}")
    for r in range(16):
        k.e(f"v_rcp_f32 v{T+r}, v{T+r}")
    for r in range(16):
        k.e(f"v_mul_f32 v{Y+r}, v{Y+r}, v{T+r}")
    for r in range(0, 16, 2):
        k.e(f"v_cvt_pk_bf16_f32 v{100 + r//2}, v{Y+r}, v{Y+r+1}")
    k(f"""
    s_and_b32 s48, s{S_W}, 1
    s_lshl_b32 s49, s{S_NT}, 1
    s_add_u32 s48, s48, s49
    s_mul_i32 s48, s48, 112
    s_lshl_b32 s49, s{S_MT}, 2
    s_add_u32 s48, s48, s49
    s_lshr_b32 s49, s{S_W}, 1
    s_lshl_b32 s49, s49, 1
    s_add_u32 s48, s48, s49
    s_lshl_b32 s48, s48, 10
    s_add_u32 s48, s48, {UF_OFF}
    buffer_store_dwordx4 v[100:103], v209, s[{SRD_WS}:{SRD_WS+3}], s48 offen
    buffer_store_dwordx4 v[104:107], v209, s[{SRD_WS}:{SRD_WS+3}], s48 offen offset:1024
    """)

def gen_main(name="main_kernel", debug=None, prof=False, l2pf=True, kidx=1):
    k = Em()
    nst = [0]
    def stamp():
        if not prof: return
        i = nst[0]; nst[0] += 1
        k.e(f"s_memtime s[{64+2*i}:{65+2*i}]")
        k.e(f"s_memrealtime s[100:101]")
        k.e("s_waitcnt lgkmcnt(0)")
        k.e(f"s_mov_b32 s{65+2*i}, s100")
    k.L.append(kernel_header(name))
    cscale = math.log2(math.e) / math.sqrt(128.0)
    tl_begin(k, prof)
    k(f"""
    s_cmp_ge_u32 s2, 256
    s_cbranch_scc1 L_at_done
    s_load_dwordx2 s[4:5], s[0:1], {KA_K}
    s_load_dwordx2 s[6:7], s[0:1], {KA_V}
    s_load_dwordx2 s[8:9], s[0:1], {KA_WQ}
    s_load_dwordx2 s[10:11], s[0:1], {KA_WO}
    s_load_dwordx2 s[12:13], s[0:1], {KA_WS}
    v_lshrrev_b32 v1, 6, v0
    v_and_b32 v0, 63, v0
    s_and_b32 s{S_G}, s2, 7
    v_readfirstlane_b32 s{S_W}, v1
    s_lshr_b32 s{S_RB}, s2, 3
    s_lshl_b32 s14, s{S_G}, 19          ; g*524288
    s_lshl_b32 s15, s{S_RB}, 16         ; rb*65536
    s_lshl_b32 s3, s{S_G}, 21           ; g*2MB
    s_add_u32 s3, s3, {SLAB_OFF}
    s_waitcnt lgkmcnt(0)
    """)
    stamp()
    srd_off(k, SRD_K, 4, 5, "s14", 524288)
    srd_off(k, SRD_V, 6, 7, "s14", 524288)
    srd(k, SRD_WQ, 8, 9, 4194304)
    srd(k, SRD_WO, 10, 11, 4194304)
    srd_off(k, SRD_X, 12, 13, "s15", 65536)
    srd_off(k, SRD_SL, 12, 13, "s3", 2097152)
    srd(k, SRD_WS, 12, 13, 8 << 20)
    k(f"""
    s_load_dwordx2 s[4:5], s[0:1], {KA_W1}
    s_load_dwordx2 s[6:7], s[0:1], {KA_W2}
    s_and_b32 s{S_NT}, s{S_G}, 1
    s_lshl_b32 s{S_NT}, s{S_NT}, 2
    s_and_b32 s14, s{S_RB}, 3
    s_add_u32 s{S_NT}, s{S_NT}, s14
    s_lshr_b32 s{S_MT}, s{S_G}, 1
    s_mul_i32 s{S_MT}, s{S_MT}, 7
    s_lshr_b32 s14, s{S_RB}, 2
    s_add_u32 s{S_MT}, s{S_MT}, s14
    s_waitcnt lgkmcnt(0)
    """)
    srd(k, SRD_W1, 4, 5, 2048 * 3584)
    k.e("s_mov_b32 s8, s6")
    k.e("s_mov_b32 s9, s7")
    if l2pf:
        k(f"""
        s_lshl_b32 s14, s{S_W}, 6
        v_add_u32 v1, s14, v0               ; tid
        v_lshrrev_b32 v2, 4, v1
        v_and_b32 v3, 15, v1
        v_lshlrev_b32 v2, 13, v2
        v_lshl_add_u32 v250, v3, 6, v2
        s_lshl_b32 s14, s{S_RB}, 17         ; rb*16*8192
        s_lshl_b32 s15, s{S_G}, 10
        s_add_u32 s14, s14, s15
        buffer_load_dword v246, v250, s[{SRD_WQ}:{SRD_WQ+3}], s14 offen
        v_lshlrev_b32 v251, 6, v1           ; tid*64
        """)
    k(f"""
    v_lshrrev_b32 v1, 4, v0             ; l>>4 (0..3)
    v_and_b32 v2, 15, v0                ; p = l&15
    ; DV: (l>>4)*256 + ((p ^ ((l>>4)<<2))*16)
    v_lshlrev_b32 v3, 2, v1
    v_xor_b32 v3, v2, v3
    v_lshlrev_b32 v3, 4, v3
    v_lshl_add_u32 v{DV}, v1, 8, v3
    v_lshl_add_u32 v{DW}, v1, 13, v3
    """)
    for i in range(4):
        k(f"""
        v_add_u32 v4, {4*i}, v1
        v_xor_b32 v4, v2, v4
        v_lshlrev_b32 v4, 4, v4
        v_lshl_add_u32 v{DK+i}, v1, 8, v4
        """)
    k(f"""
    v_and_b32 v4, 31, v0
    v_lshrrev_b32 v5, 5, v0             ; hf
    v_xor_b32 v6, v5, v2
    v_lshlrev_b32 v7, 8, v4
    """)
    for t in range(8):
        k.e(f"v_xor_b32 v8, {2*t}, v6")
        k.e(f"v_lshl_add_u32 v{KA+t}, v8, 4, v7")
    k(f"""
    v_bfe_u32 v8, v0, 2, 2              ; r
    v_bfe_u32 v9, v0, 4, 1              ; csub
    v_and_b32 v10, 3, v0                ; c
    v_lshl_add_u32 v11, v5, 2, v8       ; 4hf + r
    v_lshlrev_b32 v11, 8, v11
    v_lshl_add_u32 v11, v9, 5, v11
    v_lshl_add_u32 v12, v10, 3, v11
    """)
    for db in range(4):
        k.e(f"v_xor_b32 v13, {db}, v8")
        k.e(f"v_lshl_add_u32 v13, v13, 6, v12")
        k.e(f"v_add_u32 v{VA+db}, {VRING}, v13")
    k(f"""
    s_and_b32 s14, s{S_W}, 1
    s_lshl_b32 s14, s14, 14
    s_lshr_b32 s15, s{S_W}, 1
    s_mul_i32 s15, s15, {131072-32768}
    s_add_u32 s{S_WRING}, s14, s15
    s_add_u32 s{S_WRING}, s{S_WRING}, 32768
    v_lshl_add_u32 v11, v5, 3, v8
    v_lshlrev_b32 v11, 8, v11
    v_lshl_add_u32 v11, v9, 5, v11
    v_and_b32 v13, 1, v10
    v_lshrrev_b32 v14, 1, v10
    v_lshl_or_b32 v13, v13, 1, v14      ; sigma(c)
    v_lshl_add_u32 v11, v13, 3, v11
    v_add_u32 v11, s{S_WRING}, v11
    """)
    for db in range(4):
        k.e(f"v_xor_b32 v13, {db}, v8")
        k.e(f"v_lshl_add_u32 v{WA+db}, v13, 6, v11")
    k(f"""
    v_lshlrev_b32 v15, 4, v0            ; lane*16
    v_add_u32 v{XA}, {XT}, v15
    s_lshl_b32 s14, s{S_W}, 14
    s_add_u32 m0, s14, {XT}
    s_nop 0
    """)
    for c4 in range(4):
        for i in range(4):
            so = "s14"
            k.e(f"buffer_load_dwordx4 v15, s[{SRD_X}:{SRD_X+3}], s14 offen offset:{1024*i} lds")
        if c4 < 3:
            k.e("s_add_u32 s14, s14, 4096")
            k.e("s_add_u32 m0, m0, 4096")
            k.e("s_nop 0")
    k(f"""
    s_lshl_b32 s14, s{S_G}, 2
    s_add_u32 s14, s14, s{S_W}
    s_lshl_b32 s{S_WOFF}, s14, 8
    """)
    def wdma(t, srd, RS):
        out = [f"s_add_u32 m0, s{S_WRING}, {(t&3)*4096}"]
        for i in range(4):
            if i == 0:
                out.append("s_nop 0")
                out.append(f"buffer_load_dwordx4 v{DW}, s[{srd}:{srd+3}], s{S_WOFF} offen lds")
            else:
                out.append(f"s_add_u32 s{S_WOFF}, s{S_WOFF}, {4*RS-1024}")
                out.append(f"buffer_load_dwordx4 v{DW}, s[{srd}:{srd+3}], s{S_WOFF} offen offset:{1024*i} lds")
        out.append(f"s_add_u32 s{S_WOFF}, s{S_WOFF}, {4*RS+3072}")
        return out
    k(f"""
    s_lshl_b32 s{S_KOFF}, s{S_W}, 12          ; w*4096
    s_mov_b32 s{S_M0K}, s{S_KOFF}
    s_add_u32 s{S_M0V}, s{S_KOFF}, {VRING}
    s_mov_b32 s{S_VOFF}, s{S_KOFF}
    """)
    def kdma(slot):
        out = [f"s_add_u32 m0, s{S_M0K}, {slot*16384}", "s_nop 0"]
        for i in range(4):
            out.append(f"buffer_load_dwordx4 v{DK+i}, s[{SRD_K}:{SRD_K+3}], s{S_KOFF} offen offset:{1024*i} {POL()} lds")
        out.append(f"s_add_u32 s{S_KOFF}, s{S_KOFF}, 16384")
        return out
    def vdma(slot):
        out = [f"s_add_u32 m0, s{S_M0V}, {slot*16384}", "s_nop 0"]
        for i in range(4):
            out.append(f"buffer_load_dwordx4 v{DV}, s[{SRD_V}:{SRD_V+3}], s{S_VOFF} offen offset:{1024*i} {POL()} lds")
        out.append(f"s_add_u32 s{S_VOFF}, s{S_VOFF}, 16384")
        return out
    for ins in kdma(0) + kdma(1): k.e(ins)
    for t in range(4):
        for ins in wdma(t, SRD_WQ, 8192): k.e(ins)
    k.e("s_waitcnt vmcnt(16)")
    k.e("s_barrier")
    stamp()
    late = []
    if l2pf:
        late = [f"s_lshl_b32 s14, s{S_RB}, 14",
                f"buffer_load_dword v247, v251, s[{SRD_K}:{SRD_K+3}], s14 offen",
                f"buffer_load_dword v248, v251, s[{SRD_V}:{SRD_V+3}], s14 offen",
                f"s_lshl_b32 s15, s{S_G}, 19",
                "s_add_u32 s14, s14, s15",
                f"buffer_load_dword v249, v251, s[{SRD_WO}:{SRD_WO+3}], s14 offen"]
    gen_proj(k, "q", SRD_WQ, 8192, True, True, late)
    stamp()
    k(f"""
    s_waitcnt vmcnt({3 if l2pf else 0}) lgkmcnt(0)
    s_barrier
    """)
    for ins in vdma(0) + kdma(2) + vdma(1): k.e(ins)
    srd(k, SRD_WQ, 8, 9, 1792 * 4096)
    k(f"""
    s_lshl_b32 s14, s{S_W}, 6
    v_add_u32 v1, s14, v0                       ; tid
    v_lshrrev_b32 v2, 1, v1
    s_movk_i32 s14, 3584
    v_mul_lo_u32 v2, v2, s14
    v_and_b32 v3, 1, v1
    v_lshl_add_u32 v250, v3, 6, v2
    s_and_b32 s14, s{S_RB}, 3
    s_mul_i32 s{S_TA}, s14, {512*3584}
    s_lshl_b32 s14, s{S_MT}, 7
    s_add_u32 s{S_TA}, s{S_TA}, s14
    s_lshl_b32 s{S_TB}, s{S_NT}, 18             ; nt*2*128*1024
    s_add_u32 s{S_TB}, s{S_TB}, {HF_OFF}
    s_lshr_b32 s14, s{S_RB}, 2
    s_and_b32 s14, s14, 3
    s_lshl_b32 s14, s14, 16
    s_add_u32 s{S_TB}, s{S_TB}, s14
    s_lshl_b32 s{S_TW}, s2, 15                  ; wg*32768
    """)
    k.e(f"s_mov_b32 s14, {f2h(cscale)}")
    k.e(f"s_mov_b32 s15, {f2h(cscale)}")
    k.e("s_nop 7")
    for db in range(4):
        for qb in range(2):
            a = PACC + (db * 2 + qb) * 16
            for r in range(0, 16, 2):
                k.e(f"v_pk_mul_f32 v[{a+r}:{a+r+1}], v[{a+r}:{a+r+1}], s[14:15]")
            for r in range(0, 16, 2):
                q = QF + qb * 32 + (2 * db + (r >> 3)) * 4 + ((r & 7) >> 1)
                k.e(f"v_cvt_pk_bf16_f32 v{q}, v{a+r}, v{a+r+1}")
    if debug == "q":
        k(f"""
        s_lshl_b32 s14, s{S_RB}, 2
        s_add_u32 s14, s14, s{S_W}
        s_mul_i32 s14, s14, 16384
        v_lshlrev_b32 v1, 2, v0
        """)
        for i in range(64):
            k.e(f"buffer_store_dword v{QF+i}, v1, s[{SRD_SL}:{SRD_SL+3}], s14 offen offset:{(i&15)*256}")
            if (i & 15) == 15: k.e("s_add_u32 s14, s14, 4096")
        k.e("s_waitcnt vmcnt(0)")
        k.e("s_endpgm")
    for t in range(4):
        for ins in k_read(0, t, t): k.e(ins)
    for t in range(8):
        k.e(f"s_waitcnt lgkmcnt({min(3, 7-t)})")
        for qb in range(2):
            d = Sbuf(0, qb)
            k.e(mfma(d, KF + (t & 3) * 4, QF + qb * 32 + t * 4, "0" if t == 0 else d))
        if t + 4 < 8:
            for ins in k_read(0, t + 4, t + 4): k.e(ins)
    for i in range(128):
        k.e(f"v_accvgpr_write_b32 a{OA+i}, 0")
    k.e(f"v_mov_b32 v{LL}, 0")
    k.e(f"v_mov_b32 v{LL+1}, 0")
    k.e(f"v_mov_b32 v{LS+2}, 0")
    k.e(f"v_mov_b32 v{LS+3}, 0")
    k.e(f"s_mov_b32 s{S_THR}, {f2h(2.0**THR_LOG2)}")
    k.e("v_mov_b32 v239, 0x3f803f80")
    for qb in range(2):
        S = Sbuf(0, qb)
        t, t2 = T0, T0 + 1
        k.e(f"v_max3_f32 v{t}, v{S}, v{S+1}, v{S+2}")
        for r in range(3, 15, 2):
            k.e(f"v_max3_f32 v{t}, v{t}, v{S+r}, v{S+r+1}")
        k.e(f"v_max_f32 v{t}, v{t}, v{S+15}")
        k.e(f"v_mov_b32 v{t2}, v{t}")
        k.e("s_nop 1")
        k.e(f"v_permlane32_swap_b32 v{t2}, v{t}")
        k.e(f"v_max_f32 v{t}, v{t}, v{t2}")
        for r in range(16):
            k.e(f"v_sub_f32 v{S+r}, v{S+r}, v{t}")
            k.e(f"v_sub_f32 v{NEGM+16*qb+r}, 0, v{t}")
    k.e("s_waitcnt vmcnt(8)")
    k.e("s_barrier")
    stamp()
    for ins in k_read(1, 0, 0) + k_read(1, 1, 1): k.e(ins)
    rare_sites = []
    def dma_plan(lst):
        return {8: [lst[0]], 11: [lst[2]], 15: [lst[3]], 19: [lst[4]], 23: [lst[5]], 27: [lst[6]]}
    def step(u, rid, **kw):
        S = dict(do_qk=True, do_pv=True, qk_next=True, pv_next=True, dma=None, pre=None, prev7=3)
        S.update(kw)
        lk = Look(u, S['do_qk'], S['do_pv'], S['qk_next'], S['pv_next'])
        lk.prev7 = S['prev7']
        gen_step(k, u, S['do_qk'], S['do_pv'], True, lk, S['dma'], S['pre'], rid)
        rare_sites.append((rid, u & 1))
    step(0, "s0", do_pv=False, dma=dma_plan(kdma(3)), prev7=1)
    k.e(f"s_mov_b32 s{S_CNT}, 7")
    k.lab("L_main")
    for uu in range(1, 9):
        j = uu >> 1
        pre = None
        if uu & 1 == 0:
            pre = ["s_waitcnt vmcnt(8)", "s_barrier"]
            dm = dma_plan(kdma((j + 3) & 3))
        else:
            dm = dma_plan(vdma((j + 2) & 3))
        step(uu, f"m{uu}", dma=dm, pre=pre)
        if l2pf and uu == 3:
            k(f"""
            s_cmp_gt_u32 s{S_CNT}, 4
            s_cbranch_scc1 L_notA
            s_cmp_ge_u32 s{S_RB}, 28
            s_cbranch_scc1 L_notA
            buffer_load_dword v246, v250, s[{SRD_W1}:{SRD_W1+3}], s{S_TA} offen
            buffer_load_dword v247, v251, s[{SRD_WS}:{SRD_WS+3}], s{S_TB} offen
            s_add_u32 s{S_TA}, s{S_TA}, {128*3584}
            s_add_u32 s{S_TB}, s{S_TB}, 16384
            L_notA:
            """)
        if l2pf and uu == 7:
            k(f"""
            s_cmp_gt_u32 s{S_CNT}, 2
            s_cbranch_scc1 L_notW
            s_cmp_ge_u32 s2, 224
            s_cbranch_scc1 L_notW
            buffer_load_dword v248, v251, s[{SRD_WQ}:{SRD_WQ+3}], s{S_TW} offen
            s_add_u32 s{S_TW}, s{S_TW}, 16384
            L_notW:
            """)
    k.e(f"s_sub_u32 s{S_CNT}, s{S_CNT}, 1")
    k.e(f"s_cmp_lg_u32 s{S_CNT}, 0")
    k.e(f"s_cbranch_scc1 L_main")
    step(57, "t57", dma=dma_plan(vdma((28 + 2) & 3)))
    step(58, "t58", pre=["s_waitcnt vmcnt(8)", "s_barrier"])
    step(59, "t59", dma=dma_plan(vdma((29 + 2) & 3)))
    step(60, "t60", pre=["s_waitcnt vmcnt(4)", "s_barrier"])
    step(61, "t61")
    step(62, "t62", pre=["s_waitcnt vmcnt(0)", "s_barrier"], qk_next=False)
    step(63, "t63", do_qk=False, qk_next=False, prev7=2)
    p = 63 & 1
    k.e(f"v_add_f32 v{LL}, v{LL}, v{LS+2*p}")
    k.e(f"v_add_f32 v{LL+1}, v{LL+1}, v{LS+2*p+1}")
    for i in range(8):
        nxt = v_read(63, i + 2, i + 2) if i + 2 < 8 else []
        prevn = 2 if (i == 0 or i + 1 < 8) else 0
        k.e(f"s_waitcnt lgkmcnt({prevn})")
        db, ks = i >> 1, i & 1
        for qb in range(2):
            d = OA + (db * 2 + qb) * 16
            k.e(mfma(d, VF + (i & 3) * 4, Pbuf(p, qb, ks), d, dfile='a'))
            if qb == 0:
                for ins in nxt: k.e(ins)
    k.e("s_waitcnt lgkmcnt(0)")
    stamp()
    k(f"""
    s_waitcnt lgkmcnt(0)
    s_barrier
    s_lshl_b32 s{S_WRING}, s{S_W}, 14
    v_lshrrev_b32 v1, 4, v0
    v_mul_u32_u24 v1, {1024-256}, v1
    v_add_u32 v{DW}, v{DV}, v1
    ; soffset = g*512*1024 + w*256
    s_lshl_b32 s{S_WOFF}, s{S_G}, 19
    s_lshl_b32 s14, s{S_W}, 8
    s_add_u32 s{S_WOFF}, s{S_WOFF}, s14
    """)
    for t in range(4):
        for ins in wdma(t, SRD_WO, 1024): k.e(ins)
    k.e(f"s_sub_u32 s14, s{S_WRING}, {VRING}")
    for db in range(4):
        k.e(f"v_add_u32 v{WA+db}, s14, v{VA+db}")
    for qb in range(2):
        k.e(f"v_mov_b32 v{T0+qb}, v{LL+qb}")
    k.e("s_nop 1")
    for qb in range(2):
        k.e(f"v_permlane32_swap_b32 v{T0+qb}, v{LL+qb}")
    for qb in range(2):
        k.e(f"v_add_f32 v{LL+qb}, v{LL+qb}, v{T0+qb}")
    for qb in range(2):
        k.e(f"v_rcp_f32 v{LL+qb}, v{LL+qb}")
    k(f"""
    s_lshl_b32 s14, s{S_W}, 14
    s_add_u32 s14, s14, {XT}
    v_lshlrev_b32 v15, 4, v0
    v_add_u32 v14, s14, v15
    v_add_u32 v{XA}, {XT}, v15
    """)
    for db in range(4):
        for qb in range(2):
            for ks in range(2):
                tb = S0 + ((db * 4 + qb * 2 + ks) & 3) * 16
                for r in range(8):
                    k.e(f"v_accvgpr_read_b32 v{tb+r}, a{OA+(db*2+qb)*16+ks*8+r}")
                for r in range(8):
                    k.e(f"v_mul_f32 v{tb+r}, v{tb+r}, v{LL+qb}")
                for r in range(0, 8, 2):
                    k.e(f"v_cvt_pk_bf16_f32 v{tb+8+r//2}, v{tb+r}, v{tb+r+1}")
                k.e(f"ds_write_b128 v14, v[{tb+8}:{tb+11}] offset:{(2*db+ks)*2048 + qb*1024}")
    if debug == "o":
        k("""
        s_waitcnt vmcnt(0) lgkmcnt(0)
        s_barrier
        """)
        k(f"""
        s_lshl_b32 s14, s{S_RB}, 16
        s_lshl_b32 s15, s{S_W}, 14
        s_add_u32 s14, s14, s15
        v_add_u32 v13, s15, v{XA}
        """)
        for i in range(16):
            k.e(f"ds_read_b128 v[16:19], v13 offset:{i*1024}")
            k.e("s_waitcnt lgkmcnt(0)")
            k.e(f"buffer_store_dwordx4 v[16:19], v15, s[{SRD_SL}:{SRD_SL+3}], s14 offen")
            k.e("s_add_u32 s14, s14, 1024")
            k.e("s_waitcnt vmcnt(0)")
        k.e("s_endpgm")
    k("""
    s_waitcnt lgkmcnt(0)
    s_barrier
    """)
    stamp()
    gen_proj(k, "o", SRD_WO, 1024, False, True)
    stamp()
    vm1 = Ctr(63)
    k.e("s_waitcnt lgkmcnt(0)")
    k.e("s_barrier")
    k.e(f"s_cmp_ge_u32 s{S_RB}, 28")
    k.e(f"s_cbranch_scc1 L_skip_g1p")
    g1_prologue(k, vm1)
    k.lab("L_skip_g1p")
    k(f"""
    v_lshlrev_b32 v1, 4, v0
    s_lshl_b32 s14, s{S_RB}, 16          ; rb*65536
    s_lshl_b32 s15, s{S_W}, 14           ; w*16384
    s_add_u32 s14, s14, s15
    s_nop 7
    """)
    for cb in range(4):
        for qb in range(2):
            a = PACC + (cb * 2 + qb) * 16
            o = QF + (cb * 2 + qb) * 8
            for r in range(0, 16, 2):
                k.e(f"v_cvt_pk_bf16_f32 v{o+r//2}, v{a+r}, v{a+r+1}")
            k.e("s_nop 1")
            for pr in range(2):
                k.e(f"v_permlane32_swap_b32 v{o+4*pr}, v{o+4*pr+2}")
                k.e(f"v_permlane32_swap_b32 v{o+4*pr+1}, v{o+4*pr+3}")
            for pr in range(2):
                idx = cb * 4 + qb * 2 + pr
                k.e(f"buffer_store_dwordx4 v[{o+4*pr}:{o+4*pr+3}], v1, s[{SRD_SL}:{SRD_SL+3}], s14 offen offset:{(idx&3)*1024}")
                vm1.issue(("S", 0))
                if (idx & 3) == 3: k.e("s_add_u32 s14, s14, 4096")
    stamp()
    k.e(f"s_cmp_ge_u32 s{S_RB}, 28")
    k.e(f"s_cbranch_scc1 L_skip_g1")
    g1_main(k, vm1)
    k.lab("L_skip_g1")
    if prof:
        k.e("s_waitcnt vmcnt(0)")
        stamp()
        k.e(f"s_load_dwordx2 s[12:13], s[0:1], {KA_WS}")
        k.e("s_waitcnt lgkmcnt(0)")
        srd_off(k, 4, 12, 13, 64 << 20, 1 << 20)
        k.e(f"s_lshl_b32 s14, s2, 2")
        k.e(f"s_add_u32 s14, s14, s{S_W}")
        k.e(f"s_lshl_b32 s14, s14, 7")
        for i in range(nst[0]):
            k.e(f"v_mov_b32 v2, s{64+2*i}")
            k.e(f"v_mov_b32 v3, s{65+2*i}")
            k.e(f"v_mov_b32 v1, {8*i}")
            k.e(f"buffer_store_dwordx2 v[2:3], v1, s[4:7], s14 offen")
        tl_end(k, prof, kidx)
    k.lab("L_at_done")
    k.e("s_endpgm")
    for rid, p in rare_sites:
        k.lab(f"L_rare_{rid}")
        k.e(f"s_call_b64 s[{S_RET}:{S_RET+1}], L_raresub_{p}")
        k.e(f"s_branch L_back_{rid}")
    gen_rare(k, 0)
    gen_rare(k, 1)
    return k.text(), kernel_desc(name, 512, 102, 256), f"; @launch kernel={name} grid=(256,1,1) block=(256,1,1) lds=163840"
```

```python
import sys
sys.path.insert(0, 'gen')
from common import *
from k_ln import gen_ln
from k_g import gen_g
from k_attn import gen_attn
from k_main import gen_main
from k_fin import gen_fin
from k_m2 import gen_m2
from k_m3 import gen_m3
from k_m4 import gen_m4

HEADER = open('recurrent_scan__gqa_block_cached__mixer_token_mlp__prompt.s.ref').read().split("; Override launch")[0]

def build(kernels, path):
    launches = [x[2] for x in kernels]
    s = HEADER + "\n".join(launches) + "\n"
    s += '.amdgcn_target "amdgcn-amd-amdhsa--gfx950"\n.text\n'
    for t, d, l in kernels:
        s += t + "\n"
    s += '.section .rodata,"a"\n'
    for t, d, l in kernels:
        s += ".p2align 6\n" + d
    open(path, "w").write(s)

if __name__ == "__main__":
    dbg = sys.argv[2] if len(sys.argv) > 2 else None
    out = sys.argv[1] if len(sys.argv) > 1 else 'recurrent_scan__gqa_block_cached__mixer_token_mlp__prompt.s'
    pf = (dbg=='prof')
    build([gen_ln(prof=pf), gen_m4(debug=(None if pf else dbg), prof=pf)], out)
    print("wrote", out)
```

```python
from common import *
import k_main as M
from k_main import *
from k_ln import ln_rows
import math

S_MT2, S_NT2 = 10, 11
S_FLG = 51
SRD_DBG = 60
UCNT_OFF = CNT_OFF + 8192
POLL_MAX = 1 << 20

def poll(k, tag, off_sgpr, target):
    k(f"""
    s_mov_b32 s{S_FLG}, {POLL_MAX}
    v_mov_b32 v1, 0
    L_poll_{tag}:
    buffer_load_dword v2, v1, s[{SRD_DBG}:{SRD_DBG+3}], s{off_sgpr} offen sc1
    s_waitcnt vmcnt(0)
    v_readfirstlane_b32 s3, v2
    s_cmp_ge_u32 s3, {target}
    s_cbranch_scc1 L_polld_{tag}
    s_sleep 16
    s_sub_u32 s{S_FLG}, s{S_FLG}, 1
    s_cmp_lg_u32 s{S_FLG}, 0
    s_cbranch_scc1 L_poll_{tag}
    L_polld_{tag}:
    """)

def signal(k, tag, off_sgpr):
    k(f"""
    s_cmp_lg_u32 s{S_W}, 0
    s_cbranch_scc1 L_sig_{tag}
    v_mov_b32 v1, 0
    v_mov_b32 v2, 1
    v_cmp_eq_u32 vcc, 0, v0
    s_and_saveexec_b64 s[48:49], vcc
    buffer_atomic_add v2, v1, s[{SRD_DBG}:{SRD_DBG+3}], s{off_sgpr} offen
    s_mov_b64 exec, s[48:49]
    L_sig_{tag}:
    """)


LNC_OFF = CNT_OFF + 16384
LN_LDS = 131072
KA_DBG_SRD = 4

def zip_streams(k, a, b):
    def clean(x):
        return x
    out = []
    ia = ib = 0
    A = [l.strip() for l in a]; B = [l.strip() for l in b]
    assert len(A) == len(B)
    for x, y in zip(A, B):
        if x.startswith("s_nop"):
            if x == "s_nop 1": out.append("s_nop 0")
            continue
        out.append(x); out.append(y)
    for ins in out: k.e(ins)

def ln_phase(k):
    streams = []
    for r in range(2):
        kk = Em()
        base = 72 + r * 32
        X = list(range(base, base + 8))
        src = 64 + 4 * r
        for i in range(4):
            kk.e(f"v_lshlrev_b32 v{X[2*i]}, 16, v{src+i}")
            kk.e(f"v_and_b32 v{X[2*i+1]}, 0xffff0000, v{src+i}")
        ln_rows(kk, X, base + 8, base + 16)
        kk.e(f"ds_write_b128 v{60+r}, v[{base+8}:{base+11}]")
        ln_rows(kk, X, base + 12, base + 16)
        kk.e(f"ds_write_b128 v{60+r}, v[{base+12}:{base+15}] offset:8192")
        streams.append(kk.L)
    k(f"""
    v_lshlrev_b32 v60, 4, v0
    s_lshl_b32 s3, s{S_W}, 11
    s_add_u32 s3, s3, {LN_LDS}
    v_add_u32 v60, s3, v60
    v_add_u32 v61, 1024, v60              ; row 2w+1
    """)
    zip_streams(k, streams[0], streams[1])
    k(f"""
    s_lshl_b32 s3, s{S_W}, 6
    v_add_u32 v62, s3, v0                 ; tid
    s_waitcnt lgkmcnt(0)
    s_barrier
    v_and_b32 v4, 7, v62                  ; r
    v_lshrrev_b32 v5, 3, v62
    v_lshlrev_b32 v6, 10, v4
    v_lshl_add_u32 v6, v5, 4, v6
    v_add_u32 v6, {LN_LDS}, v6
    ds_read_b128 v[64:67], v6
    ds_read_b128 v[68:71], v6 offset:512
    v_lshlrev_b32 v7, 1, v62
    v_add_u32 v7, {LN_LDS + 8192}, v7
    """)
    for p in range(2):
        for r in range(8):
            k.e(f"ds_read_u16 v{72+p*8+r}, v7 offset:{r*1024 + p*512}")
    k(f"""
    s_lshr_b32 s12, s2, 3
    s_lshl_b32 s12, s12, 16
    s_lshr_b32 s13, s2, 2
    s_and_b32 s13, s13, 1
    s_lshl_b32 s13, s13, 10
    s_add_u32 s12, s12, s13
    s_and_b32 s13, s2, 3
    s_lshl_b32 s13, s13, 7
    s_add_u32 s12, s12, s13
    v_lshrrev_b32 v8, 1, v5
    v_lshlrev_b32 v8, 11, v8
    v_and_b32 v9, 1, v5
    v_lshl_add_u32 v8, v9, 9, v8
    v_lshl_add_u32 v8, v4, 4, v8          ; t*2048 + hf*512 + r*16
    s_lshr_b32 s13, s2, 1
    s_lshl_b32 s13, s13, 10
    s_and_b32 s14, s2, 1
    s_lshl_b32 s14, s14, 9
    s_add_u32 s13, s13, s14
    s_add_u32 s13, s13, {HF_OFF}
    v_lshrrev_b32 v9, 5, v62
    v_lshlrev_b32 v9, 17, v9
    v_and_b32 v10, 31, v62
    v_lshl_add_u32 v9, v10, 4, v9
    s_add_u32 s14, s12, {16*2048}
    s_add_u32 s15, s13, {8*131072}
    s_waitcnt lgkmcnt(15)
    """)
    k.e("s_waitcnt lgkmcnt(15)")
    k.e(f"s_waitcnt lgkmcnt(0)")
    k.e(f"buffer_store_dwordx4 v[64:67], v8, s[{SRD_WS}:{SRD_WS+3}], s12 offen sc1")
    k.e(f"buffer_store_dwordx4 v[68:71], v8, s[{SRD_WS}:{SRD_WS+3}], s14 offen sc1")
    for p in range(2):
        for j in range(4):
            k.e(f"v_lshl_or_b32 v{88+p*4+j}, v{72+p*8+2*j+1}, 16, v{72+p*8+2*j}")
    k.e(f"buffer_store_dwordx4 v[88:91], v9, s[{SRD_WS}:{SRD_WS+3}], s13 offen sc1")
    k.e(f"buffer_store_dwordx4 v[92:95], v9, s[{SRD_WS}:{SRD_WS+3}], s15 offen sc1")

def ln_barrier(k, nyoung):
    k(f"""
    s_waitcnt vmcnt({nyoung})
    s_barrier
    s_cmp_lg_u32 s{S_W}, 0
    s_cbranch_scc1 L_lnb_wait
    s_mov_b32 s{S_FLG}, {POLL_MAX}
    v_mov_b32 v1, 0
    L_lnb_rdy:
    buffer_load_dword v2, v1, s[{KA_DBG_SRD}:{KA_DBG_SRD+3}], 0 offen sc1
    s_waitcnt vmcnt(0)
    v_readfirstlane_b32 s3, v2
    s_cmp_ge_u32 s3, 48
    s_cbranch_scc1 L_lnb_rdyd
    s_sleep 4
    s_sub_u32 s{S_FLG}, s{S_FLG}, 1
    s_cmp_lg_u32 s{S_FLG}, 0
    s_cbranch_scc1 L_lnb_rdy
    L_lnb_rdyd:
    s_and_b32 s3, s2, 7
    s_lshl_b32 s3, s3, 8
    s_add_u32 s3, s3, {LNC_OFF}
    v_mov_b32 v2, 1
    v_cmp_eq_u32 vcc, 0, v0
    s_and_saveexec_b64 s[12:13], vcc
    buffer_atomic_add v2, v1, s[{SRD_WS}:{SRD_WS+3}], s3 offen
    s_mov_b64 exec, s[12:13]
    v_and_b32 v1, 7, v0
    v_lshlrev_b32 v1, 8, v1
    s_mov_b32 s3, {LNC_OFF}
    s_mov_b32 s{S_FLG}, {POLL_MAX}
    L_lnb_poll:
    buffer_load_dword v2, v1, s[{SRD_WS}:{SRD_WS+3}], s3 offen sc1
    s_waitcnt vmcnt(0)
    v_cmp_le_u32 vcc, 32, v2
    s_cmp_eq_u64 vcc, -1
    s_cbranch_scc1 L_lnb_wait
    s_sleep 4
    s_sub_u32 s{S_FLG}, s{S_FLG}, 1
    s_cmp_lg_u32 s{S_FLG}, 0
    s_cbranch_scc1 L_lnb_poll
    L_lnb_wait:
    s_barrier
    """)

G1_PF, G1_NS, G1_NB = 6, 8, 7
def g1_addr(k):
    RS, NKS, NKST = 3584, 32, 128
    k(f"""
    s_load_dwordx2 s[8:9], s[0:1], {KA_B1}
    v_lshrrev_b32 v3, 3, v0
    v_and_b32 v4, 7, v0
    v_lshrrev_b32 v5, 1, v3
    v_and_b32 v5, 1, v5
    v_lshlrev_b32 v5, 2, v5
    v_xor_b32 v4, v4, v5
    s_movk_i32 s49, {RS}
    v_mul_lo_u32 v3, v3, s49
    v_lshl_add_u32 v18, v4, 4, v3       ; voffA
    v_lshlrev_b32 v11, 4, v0            ; voffB
    v_lshrrev_b32 v3, 5, v0             ; hf
    v_bfe_u32 v4, v0, 4, 1
    v_bfe_u32 v5, v0, 2, 2
    v_and_b32 v6, 3, v0
    v_lshlrev_b32 v7, 3, v3
    v_add_u32 v7, v7, v5
    v_lshlrev_b32 v7, 7, v7
    v_lshl_add_u32 v7, v4, 5, v7
    v_lshl_add_u32 v7, v6, 3, v7
    s_lshl_b32 s46, s{S_W}, 14
    v_add_u32 v7, s46, v7
    v_lshrrev_b32 v8, 1, v5
    v_lshlrev_b32 v9, 6, v8
    v_add_u32 v12, v7, v9
    v_xor_b32 v9, 64, v9
    v_add_u32 v13, v7, v9
    v_lshlrev_b32 v14, 3, v3            ; hf*8
    s_mul_i32 s43, s{S_W}, {NKS*16*RS}
    s_lshl_b32 s49, s{S_MT}, 7
    s_add_u32 s43, s43, s49
    s_lshl_b32 s44, s{S_NT}, 1
    s_mul_i32 s44, s44, {NKST}
    s_mul_i32 s49, s{S_W}, {NKS}
    s_add_u32 s44, s44, s49
    s_lshl_b32 s44, s44, 10
    s_add_u32 s44, s44, {HF_OFF}
    s_add_u32 s45, s44, {NKST*1024}
    s_lshl_b32 s48, s{S_W}, 6
    v_add_u32 v1, s48, v0                       ; tid
    v_lshlrev_b32 v17, 6, v1                    ; tid*64
    v_subrev_u32 v1, 64, v1                     ; tid'
    v_lshrrev_b32 v2, 1, v1
    s_movk_i32 s48, {RS}
    v_mul_lo_u32 v2, v2, s48
    v_and_b32 v3, 1, v1
    v_lshl_add_u32 v16, v3, 6, v2
    v_lshrrev_b32 v2, 4, v1
    v_and_b32 v3, 15, v1
    v_lshlrev_b32 v2, 13, v2
    v_lshl_add_u32 v250, v3, 6, v2
    v_mov_b32 v251, v17
    s_waitcnt lgkmcnt(0)
    """)

def g1_loadsA(k, vm):
    for ks in range(G1_PF):
        g1_issueA(k, vm, ks)
    k(f"""
    s_lshr_b32 s48, s{S_W}, 1
    s_lshl_b32 s48, s48, 6
    s_lshl_b32 s49, s{S_MT}, 7
    s_add_u32 s48, s48, s49
    s_mov_b32 s12, s8
    s_mov_b32 s13, s9
    s_mov_b32 s14, {1792*2}
    s_mov_b32 s15, 0x00020000
    """)
    for b in range(4):
        k.e(f"buffer_load_dwordx2 v[{20+2*b}:{21+2*b}], v14, s[12:15], s48 offen offset:{16*b}"); vm.issue(("E", 0))

def touches_w1(k):
    RS = 3584
    k(f"""
    s_and_b32 s48, s{S_RB}, 3
    s_mul_i32 s48, s48, {512*RS}
    s_lshl_b32 s49, s{S_MT}, 7
    s_add_u32 s48, s48, s49
    """)
    for i in range(6):
        k.e(f"buffer_load_dword v{28+(i&3)}, v16, s[{SRD_W1}:{SRD_W1+3}], s48 offen")
        k.e(f"s_add_u32 s48, s48, {96*RS}")

def touches_wq(k):
    k(f"""
    s_lshl_b32 s48, s{S_RB}, 17
    s_lshl_b32 s49, s{S_G}, 10
    s_add_u32 s48, s48, s49
    buffer_load_dword v246, v250, s[{SRD_WQ}:{SRD_WQ+3}], s48 offen
    s_add_u32 s48, s48, {12*8192}
    buffer_load_dword v247, v250, s[{SRD_WQ}:{SRD_WQ+3}], s48 offen
    """)

def g1_issueA(k, vm, ks):
    RS = 3584
    k.e(f"s_add_u32 m0, s46, {(ks % G1_NS)*2048}")
    k.e(f"s_add_u32 s47, s43, {8*RS-1024}")
    k.e(f"buffer_load_dwordx4 v18, s[{SRD_W1}:{SRD_W1+3}], s43 offen lds"); vm.issue(("A", ks))
    k.e(f"buffer_load_dwordx4 v18, s[{SRD_W1}:{SRD_W1+3}], s47 offen offset:1024 lds"); vm.issue(("A", ks))
    k.e(f"s_add_u32 s43, s43, {16*RS}")

def g1_issueB(k, vm, ks):
    bs = 144 + (ks % G1_NB) * 8
    k.e(f"buffer_load_dwordx4 v[{bs}:{bs+3}], v11, s[{SRD_WS}:{SRD_WS+3}], s44 offen sc1"); vm.issue(("B", ks))
    k.e(f"buffer_load_dwordx4 v[{bs+4}:{bs+7}], v11, s[{SRD_WS}:{SRD_WS+3}], s45 offen sc1"); vm.issue(("B", ks))
    k.e(f"s_add_u32 s44, s44, 1024")
    k.e(f"s_add_u32 s45, s45, 1024")

def g1_phase(k, vm, stamp, xdma, XSTART):
    NKS = 32
    PF, NS, NB = G1_PF, G1_NS, G1_NB
    ACC, AF, BF = 64, 128, 144
    def tr(ks):
        slot = ks % NS
        out = []
        for mb in range(2):
            for bp in range(2):
                d = AF + (ks & 1) * 8 + mb * 4 + bp * 2
                out.append(f"ds_read_b64_tr_b16 v[{d}:{d+1}], v{12+mb} offset:{slot*2048 + bp*512}")
        return out
    for ks in range(PF):
        g1_issueB(k, vm, ks)
    k(f"""
    s_lshl_b32 s49, s{S_NT}, 18
    s_add_u32 s49, s49, {HF_OFF}
    s_lshr_b32 s48, s{S_RB}, 2
    s_and_b32 s48, s48, 3
    s_lshl_b32 s48, s48, 16
    s_add_u32 s49, s49, s48
    """)
    for i in range(4):
        k.e(f"buffer_load_dword v{32+i}, v17, s[{SRD_WS}:{SRD_WS+3}], s49 offen sc1"); vm.issue(("P", 0))
        k.e(f"s_add_u32 s49, s49, 16384")
    n = vm.need(lambda t: t == ("A", 0))
    if n is not None: k.e(f"s_waitcnt vmcnt({n})")
    stamp()
    for ins in tr(0): k.e(ins)
    xq = list(xdma)
    for ks in range(NKS):
        n = vm.need(lambda t: (t[0] == "A" and t[1] <= ks + 1) or (t[0] == "B" and t[1] <= ks))
        k.e("s_waitcnt lgkmcnt(0)" if n is None else f"s_waitcnt vmcnt({n}) lgkmcnt(0)")
        bs = BF + (ks % NB) * 8
        fill = tr(ks + 1) if ks + 1 < NKS else []
        mf = []
        for mb in range(2):
            for nb in range(2):
                d = ACC + (mb * 2 + nb) * 16
                mf.append(mfma(d, AF + (ks & 1) * 8 + mb * 4, bs + nb * 4, "0" if ks == 0 else d, dfile='v', afile='v', bfile='v'))
        k.e(mf[0])
        for ins in fill[:2]: k.e(ins)
        k.e(mf[1])
        for ins in fill[2:]: k.e(ins)
        k.e(mf[2])
        if ks + PF < NKS:
            g1_issueB(k, vm, ks + PF)
            g1_issueA(k, vm, ks + PF)
        if ks >= XSTART:
            for rep in range(3):
                if xq:
                    grp = xq.pop(0)
                    for ins in grp:
                        k.e(ins)
                        if ins.startswith("buffer_load"): vm.issue(("X", 0))
        k.e(mf[3])
    assert not xq
    stamp()
    k.e("s_nop 7")
    k.e("s_barrier")
    k(f"""
    s_lshl_b32 s48, s{S_W}, 14
    v_add_u32 v3, s48, v11
    s_nop 4
    """)
    for blk in range(4):
        for q in range(4):
            r = ACC + blk * 16 + q * 4
            k.e(f"ds_write_b128 v3, v[{r}:{r+3}] offset:{blk*4096 + q*1024}")
    k(f"""
    s_lshl_b32 s48, s{S_W}, 12
    v_add_u32 v3, s48, v11
    s_waitcnt lgkmcnt(0)
    s_barrier
    """)
    for src in range(4):
        for q in range(4):
            r = ACC + src * 16 + q * 4
            k.e(f"ds_read_b128 v[{r}:{r+3}], v3 offset:{src*16384 + q*1024}")
    n = vm.need(lambda t: t[0] == "E")
    if n is not None: k.e(f"s_waitcnt vmcnt({n})")
    for b in range(4):
        k.e(f"v_lshlrev_b32 v{32+4*b}, 16, v{20+2*b}")
        k.e(f"v_and_b32 v{33+4*b}, 0xffff0000, v{20+2*b}")
        k.e(f"v_lshlrev_b32 v{34+4*b}, 16, v{21+2*b}")
        k.e(f"v_and_b32 v{35+4*b}, 0xffff0000, v{21+2*b}")
    k.e("s_waitcnt lgkmcnt(0)")
    k.e("s_barrier")

def g1_finish(k):
    Y = 64
    c1 = -2.0 * 0.7978845608028654 * LOG2E
    k.e(f"s_mov_b32 s12, {f2h(c1)}")
    k.e(f"s_mov_b32 s13, {f2h(c1*0.044715)}")
    k.e(f"v_mov_b32 v48, s12")
    for r in range(0, 16, 2):
        k.e(f"v_pk_add_f32 v[{Y+r}:{Y+r+1}], v[{Y+r}:{Y+r+1}], v[{Y+16+r}:{Y+17+r}]")
        k.e(f"v_pk_add_f32 v[{Y+32+r}:{Y+33+r}], v[{Y+32+r}:{Y+33+r}], v[{Y+48+r}:{Y+49+r}]")
    for r in range(0, 16, 2):
        k.e(f"v_pk_add_f32 v[{Y+r}:{Y+r+1}], v[{Y+r}:{Y+r+1}], v[{Y+32+r}:{Y+33+r}]")
    for r in range(0, 16, 2):
        k.e(f"v_pk_add_f32 v[{Y+r}:{Y+r+1}], v[{Y+r}:{Y+r+1}], v[{32+r}:{33+r}]")
    T = Y + 16
    for r in range(0, 16, 2):
        k.e(f"v_pk_mul_f32 v[{T+r}:{T+r+1}], v[{Y+r}:{Y+r+1}], v[{Y+r}:{Y+r+1}]")
    for r in range(16):
        k.e(f"v_fma_f32 v{T+r}, v{T+r}, s13, v48")
    for r in range(0, 16, 2):
        k.e(f"v_pk_mul_f32 v[{T+r}:{T+r+1}], v[{T+r}:{T+r+1}], v[{Y+r}:{Y+r+1}]")
    for r in range(16):
        k.e(f"v_exp_f32 v{T+r}, v{T+r}")
    for r in range(16):
        k.e(f"v_add_f32 v{T+r}, 1.0, v{T+r}")
    for r in range(16):
        k.e(f"v_rcp_f32 v{T+r}, v{T+r}")
    k.e("s_nop 0")
    for r in range(0, 16, 2):
        k.e(f"v_pk_mul_f32 v[{Y+r}:{Y+r+1}], v[{Y+r}:{Y+r+1}], v[{T+r}:{T+r+1}]")
    for r in range(0, 16, 2):
        k.e(f"v_cvt_pk_bf16_f32 v{52 + r//2}, v{Y+r}, v{Y+r+1}")
    k(f"""
    s_and_b32 s12, s{S_W}, 1
    s_lshl_b32 s13, s{S_NT}, 1
    s_add_u32 s12, s12, s13
    s_mul_i32 s12, s12, 112
    s_lshl_b32 s13, s{S_MT}, 2
    s_add_u32 s12, s12, s13
    s_lshr_b32 s13, s{S_W}, 1
    s_lshl_b32 s13, s13, 1
    s_add_u32 s12, s12, s13
    s_lshl_b32 s12, s12, 10
    s_add_u32 s12, s12, {UF_OFF}
    buffer_store_dwordx4 v[52:55], v11, s[{SRD_WS}:{SRD_WS+3}], s12 offen sc1
    buffer_store_dwordx4 v[56:59], v11, s[{SRD_WS}:{SRD_WS+3}], s12 offen offset:1024 sc1
    """)

G2_PF = 10
def g2_setup(k, vm):
    RS, NKS, NKST = 4096, 28, 112
    PF, NS, NB = G2_PF, G2_PF + 2, G2_PF + 1
    k(f"""
    s_load_dwordx2 s[8:9], s[0:1], {KA_B2}
    s_load_dwordx2 s[12:13], s[0:1], {KA_X}
    s_load_dwordx2 s[14:15], s[0:1], {KA_OUT}
    s_load_dwordx2 s[48:49], s[0:1], {KA_WS}
    v_lshrrev_b32 v3, 3, v0
    v_and_b32 v4, 7, v0
    v_lshrrev_b32 v5, 1, v3
    v_and_b32 v5, 1, v5
    v_lshlrev_b32 v5, 2, v5
    v_xor_b32 v4, v4, v5
    v_lshlrev_b32 v3, 12, v3
    v_lshl_add_u32 v10, v4, 4, v3       ; voffA
    v_lshlrev_b32 v11, 4, v0
    v_lshrrev_b32 v3, 5, v0             ; hf
    v_bfe_u32 v4, v0, 4, 1
    v_bfe_u32 v5, v0, 2, 2
    v_and_b32 v6, 3, v0
    v_lshlrev_b32 v7, 2, v3
    v_add_u32 v7, v7, v5
    v_lshlrev_b32 v7, 7, v7
    v_lshl_add_u32 v7, v4, 5, v7
    v_lshl_add_u32 v7, v6, 3, v7
    s_mul_i32 s46, s{S_W}, {NS*2048}
    v_add_u32 v7, s46, v7
    v_lshrrev_b32 v8, 1, v5
    v_lshlrev_b32 v9, 6, v8
    v_add_u32 v12, v7, v9
    v_xor_b32 v9, 64, v9
    v_add_u32 v13, v7, v9
    s_mul_i32 s43, s{S_W}, {NKS*16*RS}
    s_lshl_b32 s47, s{S_MT2}, 7
    s_add_u32 s43, s43, s47
    s_add_u32 s47, s43, {8*RS-1024}
    s_lshl_b32 s44, s{S_NT2}, 1
    s_mul_i32 s44, s44, {NKST}
    s_mul_i32 s45, s{S_W}, {NKS}
    s_add_u32 s44, s44, s45
    s_lshl_b32 s44, s44, 10
    s_add_u32 s44, s44, {UF_OFF}
    s_add_u32 s45, s44, {NKST*1024}
    v_and_b32 v14, 31, v0
    s_lshr_b32 s54, s{S_W}, 1
    s_lshl_b32 s54, s54, 5
    v_add_u32 v14, s54, v14             ; row
    v_lshlrev_b32 v15, 1, v14           ; b2 offset
    v_lshlrev_b32 v16, 10, v14
    v_lshl_add_u32 v16, v3, 4, v16
    s_and_b32 s54, s{S_W}, 1
    s_lshl_b32 s54, s54, 5
    v_add_u32 v16, s54, v16
    """)
    for ks in range(PF):
        g2_issue(k, vm, ks)
    k("s_waitcnt lgkmcnt(0)")
    srd(k, 16, 8, 9, 2048 * 2)
    srd(k, 20, 12, 13, 2097152)
    srd(k, 28, 14, 15, 2097152)
    srd_off(k, 32, 48, 49, SLAB_OFF, 16 << 20)
    k(f"""
    s_lshl_b32 s54, s{S_MT2}, 16
    s_lshl_b32 s55, s{S_NT2}, 7
    s_add_u32 s54, s54, s55
    s_lshl_b32 s55, s{S_MT2}, 7         ; b2 base
    s_lshl_b32 s53, s{S_MT2}, 16
    s_lshr_b32 s52, s{S_NT2}, 1
    s_lshl_b32 s52, s52, 14
    s_add_u32 s53, s53, s52
    s_and_b32 s52, s{S_NT2}, 1
    s_lshl_b32 s52, s52, 13
    s_add_u32 s53, s53, s52
    s_lshl_b32 s52, s{S_W}, 10
    s_add_u32 s53, s53, s52
    """)
    k.e("buffer_load_ushort v17, v15, s[16:19], s55 offen"); vm.issue(("E", 0))
    k.e(f"buffer_load_dwordx4 v[248:251], v16, s[20:23], s54 offen"); vm.issue(("E", 0))
    k.e(f"buffer_load_dwordx4 v[252:255], v16, s[20:23], s54 offen offset:64"); vm.issue(("E", 0))

def g2_issue(k, vm, ks):
    RS = 4096
    NS, NB = G2_PF + 2, G2_PF + 1
    slot = ks % NS
    k.e(f"s_add_u32 m0, s46, {slot*2048}")
    bs = 144 + (ks % NB) * 8
    k.e(f"buffer_load_dwordx4 v[{bs}:{bs+3}], v11, s[{SRD_WS}:{SRD_WS+3}], s44 offen sc1"); vm.issue(("B", ks))
    k.e(f"buffer_load_dwordx4 v10, s[{SRD_WQ}:{SRD_WQ+3}], s43 offen lds"); vm.issue(("A", ks))
    k.e(f"buffer_load_dwordx4 v10, s[{SRD_WQ}:{SRD_WQ+3}], s47 offen offset:1024 lds"); vm.issue(("A", ks))
    k.e(f"buffer_load_dwordx4 v[{bs+4}:{bs+7}], v11, s[{SRD_WS}:{SRD_WS+3}], s45 offen sc1"); vm.issue(("B", ks))
    k.e(f"s_add_u32 s43, s43, {16*RS}")
    k.e(f"s_add_u32 s47, s47, {16*RS}")
    k.e(f"s_add_u32 s44, s44, 1024")
    k.e(f"s_add_u32 s45, s45, 1024")

def g2_main(k, vm, stamp, POLL_KS=10):
    NKS = 28
    PF, NS, NB = G2_PF, G2_PF + 2, G2_PF + 1
    ACC, AF, BF = 64, 128, 144
    SL = 0
    SUM = 232
    def tr(ks):
        slot = ks % NS
        out = []
        for mb in range(2):
            for bp in range(2):
                d = AF + (ks & 1) * 8 + mb * 4 + bp * 2
                out.append(f"ds_read_b64_tr_b16 v[{d}:{d+1}], v{12+mb} offset:{slot*2048 + bp*1024}")
        return out
    n = vm.need(lambda t: t == ("A", 0))
    k.e(f"s_waitcnt vmcnt({n})")
    for ins in tr(0): k.e(ins)
    si = 0
    for ks in range(NKS):
        n = vm.need(lambda t: (t[0] == "A" and t[1] <= ks + 1) or (t[0] == "B" and t[1] <= ks))
        k.e("s_waitcnt lgkmcnt(0)" if n is None else f"s_waitcnt vmcnt({n}) lgkmcnt(0)")
        bs = BF + (ks % NB) * 8
        fill = tr(ks + 1) if ks + 1 < NKS else []
        mf = []
        for mb in range(2):
            for nb in range(2):
                a = AF + (ks & 1) * 8 + mb * 4
                b = bs + nb * 4
                d = ACC + (mb * 2 + nb) * 16
                c = "0" if ks == 0 else f"v[{d}:{d+15}]"
                mf.append(f"v_mfma_f32_32x32x16_bf16 v[{d}:{d+15}], v[{b}:{b+3}], v[{a}:{a+3}], {c}")
        k.e(mf[0])
        for ins in fill[:2]: k.e(ins)
        k.e(mf[1])
        for ins in fill[2:]: k.e(ins)
        k.e(mf[2])
        if ks + PF < NKS:
            g2_issue(k, vm, ks + PF)
        if ks == POLL_KS:
            k.e(f"s_lshl_b32 s52, s{S_MT2}, 8")
            k.e(f"s_add_u32 s52, s52, {CNT_OFF}")
            k.e(f"s_cmp_lg_u32 s{S_W}, 0")
            k.e("s_cbranch_scc1 L_slab_nopoll")
            poll(k, "slab", 52, 8)
            k.lab("L_slab_nopoll")
            k.e("s_barrier")
        if ks >= POLL_KS and si < 16:
            for rep in range(1 if ks < 26 else 2):
                if si < 16:
                    g, p = si >> 1, si & 1
                    k.e(f"s_add_u32 s52, s53, {g*2097152 + p*4096}")
                    k.e(f"buffer_load_dwordx4 a[{si*4}:{si*4+3}], v11, s[32:35], s52 offen sc1"); vm.issue(("S", si))
                    si += 1
        k.e(mf[3])
    assert si == 16
    stamp()
    PS = 64 * 272
    k(f"""
    v_and_b32 v3, 31, v0
    s_movk_i32 s52, 272
    v_mul_lo_u32 v3, v3, s52
    v_lshrrev_b32 v4, 5, v0
    v_lshl_add_u32 v3, v4, 4, v3
    s_mul_i32 s55, s{S_W}, {PS}
    v_add_u32 v3, s55, v3
    v_mul_lo_u32 v8, v14, s52
    v_lshl_add_u32 v8, v4, 5, v8
    s_and_b32 s52, s{S_W}, 1
    s_lshl_b32 s52, s52, 6
    v_add_u32 v8, s52, v8
    s_barrier
    """)
    for mb in range(2):
        for nb in range(2):
            for b in range(4):
                r = ACC + (mb * 2 + nb) * 16 + b * 4
                k.e(f"ds_write_b128 v3, v[{r}:{r+3}] offset:{mb*32*272 + nb*128 + b*32}")
    k(f"""
    s_waitcnt lgkmcnt(0)
    s_barrier
    """)
    for p in range(2):
        for src in range(4):
            r = ACC + p * 32 + src * 8
            k.e(f"ds_read_b128 v[{r}:{r+3}], v8 offset:{src*PS + p*128}")
            k.e(f"ds_read_b128 v[{r+4}:{r+7}], v8 offset:{src*PS + p*128 + 16}")
    for i in range(16):
        g, p = i >> 1, i & 1
        n = vm.need(lambda t: t[0] == "S" and t[1] <= i)
        if n is not None: k.e(f"s_waitcnt vmcnt({n})")
        for j in range(4):
            k.e(f"v_accvgpr_read_b32 v{20+j}, a{i*4+j}")
        for j in range(4):
            if g == 0:
                k.e(f"v_lshlrev_b32 v{SUM+p*8+2*j}, 16, v{20+j}")
                k.e(f"v_and_b32 v{SUM+p*8+2*j+1}, 0xffff0000, v{20+j}")
            else:
                k.e(f"v_lshlrev_b32 v{24+2*j}, 16, v{20+j}")
                k.e(f"v_and_b32 v{25+2*j}, 0xffff0000, v{20+j}")
        if g > 0:
            for j in range(4):
                k.e(f"v_pk_add_f32 v[{SUM+p*8+2*j}:{SUM+p*8+2*j+1}], v[{SUM+p*8+2*j}:{SUM+p*8+2*j+1}], v[{24+2*j}:{25+2*j}]")
    for p in range(2):
        for j in range(4):
            k.e(f"v_lshlrev_b32 v{128+p*8+2*j}, 16, v{248+p*4+j}")
            k.e(f"v_and_b32 v{129+p*8+2*j}, 0xffff0000, v{248+p*4+j}")
    k.e("v_lshlrev_b32 v18, 16, v17")
    k.e("v_mov_b32 v19, v18")
    k.e(f"s_mov_b32 s48, {f2h(-LOG2E)}")
    k.e(f"s_mov_b32 s49, {f2h(-LOG2E)}")
    k.e("s_waitcnt lgkmcnt(0)")
    for p in range(2):
        Y = ACC + p * 32
        for i in range(0, 8, 2):
            k.e(f"v_pk_add_f32 v[{Y+i}:{Y+i+1}], v[{Y+i}:{Y+i+1}], v[{Y+8+i}:{Y+9+i}]")
            k.e(f"v_pk_add_f32 v[{Y+16+i}:{Y+17+i}], v[{Y+16+i}:{Y+17+i}], v[{Y+24+i}:{Y+25+i}]")
        for i in range(0, 8, 2):
            k.e(f"v_pk_add_f32 v[{Y+i}:{Y+i+1}], v[{Y+i}:{Y+i+1}], v[{Y+16+i}:{Y+17+i}]")
        for i in range(0, 8, 2):
            k.e(f"v_pk_add_f32 v[{Y+i}:{Y+i+1}], v[{Y+i}:{Y+i+1}], v[18:19]")
    for p in range(2):
        Y = ACC + p * 32; T = Y + 8
        for i in range(0, 8, 2):
            k.e(f"v_pk_mul_f32 v[{T+i}:{T+i+1}], v[{Y+i}:{Y+i+1}], s[48:49]")
    for p in range(2):
        T = ACC + p * 32 + 8
        for i in range(8): k.e(f"v_exp_f32 v{T+i}, v{T+i}")
    for p in range(2):
        T = ACC + p * 32 + 8
        for i in range(8): k.e(f"v_add_f32 v{T+i}, 1.0, v{T+i}")
    for p in range(2):
        T = ACC + p * 32 + 8
        for i in range(8): k.e(f"v_rcp_f32 v{T+i}, v{T+i}")
    k.e("s_nop 0")
    for p in range(2):
        Y = ACC + p * 32; T = Y + 8
        for i in range(0, 8, 2):
            k.e(f"v_pk_mul_f32 v[{Y+i}:{Y+i+1}], v[{Y+i}:{Y+i+1}], v[{T+i}:{T+i+1}]")
    for p in range(2):
        Y = ACC + p * 32
        for i in range(0, 8, 2):
            k.e(f"v_pk_fma_f32 v[{Y+i}:{Y+i+1}], v[{Y+i}:{Y+i+1}], v[{SUM+p*8+i}:{SUM+p*8+i+1}], v[{128+p*8+i}:{129+p*8+i}]")
    for p in range(2):
        Y = ACC + p * 32
        for i in range(0, 8, 2):
            k.e(f"v_cvt_pk_bf16_f32 v{40+p*4+i//2}, v{Y+i}, v{Y+i+1}")
        k.e(f"buffer_store_dwordx4 v[{40+p*4}:{43+p*4}], v16, s[28:31], s54 offen offset:{64*p}")

XSRC = 239
STAMPS = set()
UFL = 252

def gen_m3(name="main_kernel", debug=None, prof=False, l2pf=True, kidx=0, XSTART=26):
    k = Em()
    M.PRE_HOOK = lambda kk: poll(kk, 'u', 14, 28)
    nst = [0]
    def stamp(name=None):
        if not prof: return
        if name is not None and name not in STAMPS: return
        i = nst[0]; nst[0] += 1
        k.e(f"s_memtime s[{64+2*i}:{65+2*i}]")
        k.e(f"s_memrealtime s[100:101]")
        k.e("s_waitcnt lgkmcnt(0)")
        k.e(f"s_mov_b32 s{65+2*i}, s100")
    k.L.append(kernel_header(name))
    cscale = math.log2(math.e) / math.sqrt(128.0)
    tl_begin(k, prof)
    k(f"""
    s_cmp_ge_u32 s2, 256
    s_cbranch_scc1 L_at_done
    s_load_dwordx2 s[4:5], s[0:1], {KA_X}
    s_load_dwordx2 s[12:13], s[0:1], {KA_WS}
    s_load_dwordx2 s[14:15], s[0:1], {KA_DBG}
    v_lshrrev_b32 v1, 6, v0
    v_and_b32 v0, 63, v0
    s_and_b32 s{S_G}, s2, 7
    v_readfirstlane_b32 s{S_W}, v1
    s_lshr_b32 s{S_RB}, s2, 3
    v_lshlrev_b32 v59, 4, v0            ; lane*16
    s_waitcnt lgkmcnt(0)
    s_mov_b32 s16, s4
    s_mov_b32 s17, s5
    s_mov_b32 s18, 2097152
    s_mov_b32 s19, 0x00020000
    s_lshl_b32 s3, s2, 13
    s_lshl_b32 s8, s{S_W}, 11           ; + 2w rows
    s_add_u32 s3, s3, s8
    buffer_load_dwordx4 v[64:67], v59, s[16:19], s3 offen
    buffer_load_dwordx4 v[68:71], v59, s[16:19], s3 offen offset:1024
    s_load_dwordx2 s[16:17], s[0:1], {KA_K}
    s_load_dwordx2 s[20:21], s[0:1], {KA_V}
    s_load_dwordx2 s[8:9], s[0:1], {KA_WQ}
    s_load_dwordx2 s[10:11], s[0:1], {KA_WO}
    s_load_dwordx2 s[56:57], s[0:1], {KA_W1}
    """)
    stamp()
    srd(k, SRD_WS, 12, 13, 8 << 20)
    srd(k, KA_DBG_SRD, 14, 15, 256)
    k(f"""
    s_cmp_ge_u32 s2, 48
    s_cbranch_scc1 L_nozero
    s_cmp_lg_u32 s{S_W}, 0
    s_cbranch_scc1 L_nozero
    s_lshl_b32 s3, s2, 8
    s_cmp_ge_u32 s2, 40
    s_cselect_b32 s14, {16384 - 40*256}, 0
    s_add_u32 s3, s3, s14
    s_add_u32 s3, s3, {CNT_OFF}
    v_mov_b32 v1, 0
    v_lshlrev_b32 v2, 2, v0
    buffer_store_dword v1, v2, s[{SRD_WS}:{SRD_WS+3}], s3 offen sc1
    s_waitcnt vmcnt(0)
    v_mov_b32 v2, 1
    v_cmp_eq_u32 vcc, 0, v0
    s_and_saveexec_b64 s[14:15], vcc
    buffer_atomic_add v2, v1, s[{KA_DBG_SRD}:{KA_DBG_SRD+3}], 0 offen
    s_mov_b64 exec, s[14:15]
    L_nozero:
    s_lshl_b32 s14, s{S_G}, 19          ; g*524288
    s_lshl_b32 s15, s{S_RB}, 16         ; rb*65536
    s_lshl_b32 s3, s{S_G}, 21           ; g*2MB
    s_add_u32 s3, s3, {SLAB_OFF}
    s_waitcnt lgkmcnt(0)
    s_add_u32 s16, s16, s14
    s_addc_u32 s17, s17, 0
    s_mov_b32 s18, 524288
    s_mov_b32 s19, 0x00020000
    s_add_u32 s20, s20, s14
    s_addc_u32 s21, s21, 0
    s_mov_b32 s22, 524288
    s_mov_b32 s23, 0x00020000
    s_mov_b32 s58, {2048*3584}
    s_mov_b32 s59, 0x00020000
    """)
    srd(k, SRD_WQ, 8, 9, 4194304)
    srd(k, SRD_WO, 10, 11, 4194304)
    srd_off(k, SRD_X, 12, 13, "s15", 65536)
    srd_off(k, SRD_SL, 12, 13, "s3", 2097152)
    k(f"""
    s_and_b32 s{S_NT}, s{S_G}, 1
    s_lshl_b32 s{S_NT}, s{S_NT}, 2
    s_and_b32 s3, s{S_RB}, 3
    s_add_u32 s{S_NT}, s{S_NT}, s3
    s_mov_b32 s{S_NT2}, s{S_NT}
    s_lshr_b32 s{S_MT}, s{S_G}, 1
    s_lshl_b32 s{S_MT2}, s{S_MT}, 3
    s_mul_i32 s{S_MT}, s{S_MT}, 7
    s_lshr_b32 s3, s{S_RB}, 2
    s_add_u32 s{S_MT}, s{S_MT}, s3
    s_add_u32 s{S_MT2}, s{S_MT2}, s3
    """)
    k(f"""
    v_lshrrev_b32 v1, 4, v0             ; l>>4 (0..3)
    v_and_b32 v2, 15, v0                ; p = l&15
    ; DV: (l>>4)*256 + ((p ^ ((l>>4)<<2))*16)
    v_lshlrev_b32 v3, 2, v1
    v_xor_b32 v3, v2, v3
    v_lshlrev_b32 v3, 4, v3
    v_lshl_add_u32 v{DV}, v1, 8, v3
    v_lshl_add_u32 v{DW}, v1, 13, v3
    """)
    for i in range(4):
        k(f"""
        v_add_u32 v4, {4*i}, v1
        v_xor_b32 v4, v2, v4
        v_lshlrev_b32 v4, 4, v4
        v_lshl_add_u32 v{DK+i}, v1, 8, v4
        """)
    k(f"""
    v_and_b32 v4, 31, v0
    v_lshrrev_b32 v5, 5, v0             ; hf
    v_xor_b32 v6, v5, v2
    v_lshlrev_b32 v7, 8, v4
    """)
    for t in range(8):
        k.e(f"v_xor_b32 v8, {2*t}, v6")
        k.e(f"v_lshl_add_u32 v{KA+t}, v8, 4, v7")
    k(f"""
    v_bfe_u32 v8, v0, 2, 2              ; r
    v_bfe_u32 v9, v0, 4, 1              ; csub
    v_and_b32 v10, 3, v0                ; c
    v_lshl_add_u32 v11, v5, 2, v8       ; 4hf + r
    v_lshlrev_b32 v11, 8, v11
    v_lshl_add_u32 v11, v9, 5, v11
    v_lshl_add_u32 v12, v10, 3, v11
    """)
    for db in range(4):
        k.e(f"v_xor_b32 v13, {db}, v8")
        k.e(f"v_lshl_add_u32 v13, v13, 6, v12")
        k.e(f"v_add_u32 v{VA+db}, {VRING}, v13")
    k(f"""
    s_and_b32 s14, s{S_W}, 1
    s_lshl_b32 s14, s14, 14
    s_lshr_b32 s15, s{S_W}, 1
    s_mul_i32 s15, s15, {131072-32768}
    s_add_u32 s{S_WRING}, s14, s15
    s_add_u32 s{S_WRING}, s{S_WRING}, 32768
    v_lshl_add_u32 v11, v5, 3, v8
    v_lshlrev_b32 v11, 8, v11
    v_lshl_add_u32 v11, v9, 5, v11
    v_and_b32 v13, 1, v10
    v_lshrrev_b32 v14, 1, v10
    v_lshl_or_b32 v13, v13, 1, v14      ; sigma(c)
    v_lshl_add_u32 v11, v13, 3, v11
    v_add_u32 v11, s{S_WRING}, v11
    """)
    for db in range(4):
        k.e(f"v_xor_b32 v13, {db}, v8")
        k.e(f"v_lshl_add_u32 v{WA+db}, v13, 6, v11")
    k(f"""
    v_lshlrev_b32 v15, 4, v0            ; lane*16
    v_add_u32 v{XA}, {XT}, v15
    v_mov_b32 v{XSRC}, v15
    """)
    xg = []
    for i in range(16):
        xg.append([f"s_lshl_b32 s3, s{S_W}, 14",
                   f"s_add_u32 s3, s3, {i*1024}",
                   f"s_add_u32 m0, s3, {XT}",
                   "s_nop 0",
                   f"buffer_load_dwordx4 v{XSRC}, s[{SRD_X}:{SRD_X+3}], s3 offen sc1 lds"])
    k.e("s_waitcnt vmcnt(0)")
    stamp("xrows")
    ln_phase(k)
    stamp("lndone")
    vmg = Ctr(63)
    g1_addr(k)
    k.e(f"s_cmp_eq_u32 s{S_W}, 0")
    k.e("s_cbranch_scc1 L_pre_w0")
    k.e(f"s_cmp_ge_u32 s{S_RB}, 28")
    k.e("s_cbranch_scc1 L_pre_nog1")
    vtmp = Ctr(63)
    g1_loadsA(k, vtmp)
    touches_w1(k)
    touches_wq(k)
    k.e(f"s_waitcnt vmcnt({len(vtmp.q) + 8})")
    k.e("s_branch L_pre_done")
    k.lab("L_pre_nog1")
    touches_wq(k)
    k.e("s_waitcnt vmcnt(2)")
    k.e("s_branch L_pre_done")
    k.lab("L_pre_w0")
    k.e("s_waitcnt vmcnt(0)")
    k.lab("L_pre_done")
    stamp("stores")
    ln_barrier(k, 63)
    stamp()
    k.e(f"s_cmp_ge_u32 s{S_RB}, 28")
    k.e("s_cbranch_scc1 L_no_g1")
    k.e(f"s_cmp_lg_u32 s{S_W}, 0")
    k.e("s_cbranch_scc1 L_w0_pre_done")
    g1_loadsA(k, Ctr(63))
    k.lab("L_w0_pre_done")
    for ks in range(G1_PF):
        vmg.issue(("A", ks)); vmg.issue(("A", ks))
    for b in range(4): vmg.issue(("E", 0))
    g1_phase(k, vmg, stamp, xg, XSTART)
    k.e("s_branch L_g1_done")
    k.lab("L_no_g1")
    for grp in xg:
        for ins in grp: k.e(ins)
    nst[0] -= 2
    stamp(); stamp()
    k.lab("L_g1_done")
    k(f"""
    s_and_b32 s14, s{S_W}, 1
    s_lshl_b32 s14, s14, 14
    s_lshr_b32 s15, s{S_W}, 1
    s_mul_i32 s15, s15, {131072-32768}
    s_add_u32 s{S_WRING}, s14, s15
    s_add_u32 s{S_WRING}, s{S_WRING}, 32768
    """)
    k(f"""
    s_lshl_b32 s14, s{S_G}, 2
    s_add_u32 s14, s14, s{S_W}
    s_lshl_b32 s{S_WOFF}, s14, 8
    """)
    def wdma(t, srd, RS):
        out = [f"s_add_u32 m0, s{S_WRING}, {(t&3)*4096}"]
        for i in range(4):
            if i == 0:
                out.append("s_nop 0")
                out.append(f"buffer_load_dwordx4 v{DW}, s[{srd}:{srd+3}], s{S_WOFF} offen lds")
            else:
                out.append(f"s_add_u32 s{S_WOFF}, s{S_WOFF}, {4*RS-1024}")
                out.append(f"buffer_load_dwordx4 v{DW}, s[{srd}:{srd+3}], s{S_WOFF} offen offset:{1024*i} lds")
        out.append(f"s_add_u32 s{S_WOFF}, s{S_WOFF}, {4*RS+3072}")
        return out
    k(f"""
    s_lshl_b32 s{S_KOFF}, s{S_W}, 12          ; w*4096
    s_mov_b32 s{S_M0K}, s{S_KOFF}
    s_add_u32 s{S_M0V}, s{S_KOFF}, {VRING}
    s_mov_b32 s{S_VOFF}, s{S_KOFF}
    """)
    def kdma(slot):
        out = [f"s_add_u32 m0, s{S_M0K}, {slot*16384}", "s_nop 0"]
        for i in range(4):
            out.append(f"buffer_load_dwordx4 v{DK+i}, s[{SRD_K}:{SRD_K+3}], s{S_KOFF} offen offset:{1024*i} {POL()} lds")
        out.append(f"s_add_u32 s{S_KOFF}, s{S_KOFF}, 16384")
        return out
    def vdma(slot):
        out = [f"s_add_u32 m0, s{S_M0V}, {slot*16384}", "s_nop 0"]
        for i in range(4):
            out.append(f"buffer_load_dwordx4 v{DV}, s[{SRD_V}:{SRD_V+3}], s{S_VOFF} offen offset:{1024*i} {POL()} lds")
        out.append(f"s_add_u32 s{S_VOFF}, s{S_VOFF}, 16384")
        return out
    for ins in kdma(0) + kdma(1): k.e(ins)
    for t in range(4):
        for ins in wdma(t, SRD_WQ, 8192): k.e(ins)
    k.e(f"s_cmp_ge_u32 s{S_RB}, 28")
    k.e("s_cbranch_scc1 L_no_g1f")
    g1_finish(k)
    k.e("s_waitcnt vmcnt(18)")
    k.e("s_branch L_g1f_done")
    k.lab("L_no_g1f")
    k.e("s_waitcnt vmcnt(16)")
    k.lab("L_g1f_done")
    k.e("s_barrier")
    stamp()
    late = []
    if l2pf:
        late = [f"s_lshl_b32 s14, s{S_RB}, 14",
                f"buffer_load_dword v247, v251, s[{SRD_K}:{SRD_K+3}], s14 offen",
                f"buffer_load_dword v248, v251, s[{SRD_V}:{SRD_V+3}], s14 offen",
                f"s_lshl_b32 s15, s{S_G}, 19",
                "s_add_u32 s14, s14, s15",
                f"buffer_load_dword v249, v251, s[{SRD_WO}:{SRD_WO+3}], s14 offen"]
    gen_proj(k, "q", SRD_WQ, 8192, True, True, late)
    stamp()
    k(f"""
    s_waitcnt vmcnt({3 if l2pf else 0}) lgkmcnt(0)
    s_barrier
    """)
    for ins in vdma(0) + kdma(2) + vdma(1): k.e(ins)
    k.e(f"s_cmp_ge_u32 s{S_RB}, 28")
    k.e("s_cbranch_scc1 L_no_usig")
    k.e(f"s_lshl_b32 s14, s{S_NT}, 8")
    k.e(f"s_add_u32 s14, s14, {UCNT_OFF}")
    signal(k, "u", 14)
    k.lab("L_no_usig")
    k.e(f"s_load_dwordx2 s[8:9], s[0:1], {KA_W2}")
    k(f"""
    s_lshl_b32 s14, s{S_W}, 6
    v_add_u32 v1, s14, v0                       ; tid
    v_lshrrev_b32 v2, 1, v1
    v_lshlrev_b32 v2, 12, v2
    v_and_b32 v3, 1, v1
    v_lshl_add_u32 v250, v3, 6, v2
    s_waitcnt lgkmcnt(0)
    """)
    srd(k, SRD_WQ, 8, 9, 1792 * 4096)
    k.e(f"s_mov_b32 s14, {f2h(cscale)}")
    k.e(f"s_mov_b32 s15, {f2h(cscale)}")
    k.e("s_nop 7")
    for db in range(4):
        for qb in range(2):
            a = PACC + (db * 2 + qb) * 16
            for r in range(0, 16, 2):
                k.e(f"v_pk_mul_f32 v[{a+r}:{a+r+1}], v[{a+r}:{a+r+1}], s[14:15]")
            for r in range(0, 16, 2):
                q = QF + qb * 32 + (2 * db + (r >> 3)) * 4 + ((r & 7) >> 1)
                k.e(f"v_cvt_pk_bf16_f32 v{q}, v{a+r}, v{a+r+1}")
    if debug == "q":
        k(f"""
        s_lshl_b32 s14, s{S_RB}, 2
        s_add_u32 s14, s14, s{S_W}
        s_mul_i32 s14, s14, 16384
        v_lshlrev_b32 v1, 2, v0
        """)
        for i in range(64):
            k.e(f"buffer_store_dword v{QF+i}, v1, s[{SRD_SL}:{SRD_SL+3}], s14 offen offset:{(i&15)*256}")
            if (i & 15) == 15: k.e("s_add_u32 s14, s14, 4096")
        k.e("s_waitcnt vmcnt(0)")
        k.e("s_endpgm")
    for t in range(4):
        for ins in k_read(0, t, t): k.e(ins)
    for t in range(8):
        k.e(f"s_waitcnt lgkmcnt({min(3, 7-t)})")
        for qb in range(2):
            d = Sbuf(0, qb)
            k.e(mfma(d, KF + (t & 3) * 4, QF + qb * 32 + t * 4, "0" if t == 0 else d))
        if t + 4 < 8:
            for ins in k_read(0, t + 4, t + 4): k.e(ins)
    for i in range(128):
        k.e(f"v_accvgpr_write_b32 a{OA+i}, 0")
    k.e(f"v_mov_b32 v{LL}, 0")
    k.e(f"v_mov_b32 v{LL+1}, 0")
    k.e(f"v_mov_b32 v{LS+2}, 0")
    k.e(f"v_mov_b32 v{LS+3}, 0")
    k.e(f"s_mov_b32 s{S_THR}, {f2h(2.0**THR_LOG2)}")
    for qb in range(2):
        S = Sbuf(0, qb)
        t, t2 = T0, T0 + 1
        k.e(f"v_max3_f32 v{t}, v{S}, v{S+1}, v{S+2}")
        for r in range(3, 15, 2):
            k.e(f"v_max3_f32 v{t}, v{t}, v{S+r}, v{S+r+1}")
        k.e(f"v_max_f32 v{t}, v{t}, v{S+15}")
        k.e(f"v_mov_b32 v{t2}, v{t}")
        k.e("s_nop 1")
        k.e(f"v_permlane32_swap_b32 v{t2}, v{t}")
        k.e(f"v_max_f32 v{t}, v{t}, v{t2}")
        for r in range(16):
            k.e(f"v_sub_f32 v{S+r}, v{S+r}, v{t}")
            k.e(f"v_sub_f32 v{NEGM+16*qb+r}, 0, v{t}")
    k.e("s_waitcnt vmcnt(8)")
    k.e("s_barrier")
    stamp()
    for ins in k_read(1, 0, 0) + k_read(1, 1, 1): k.e(ins)
    rare_sites = []
    def dma_plan(lst):
        return {8: [lst[0]], 11: [lst[2]], 15: [lst[3]], 19: [lst[4]], 23: [lst[5]], 27: [lst[6]]}
    def step(u, rid, **kw):
        S = dict(do_qk=True, do_pv=True, qk_next=True, pv_next=True, dma=None, pre=None, prev7=3)
        S.update(kw)
        lk = Look(u, S['do_qk'], S['do_pv'], S['qk_next'], S['pv_next'])
        lk.prev7 = S['prev7']
        gen_step(k, u, S['do_qk'], S['do_pv'], True, lk, S['dma'], S['pre'], rid)
        rare_sites.append((rid, u & 1))
    step(0, "s0", do_pv=False, dma=dma_plan(kdma(3)), prev7=1)
    k.e(f"s_mov_b32 s{S_CNT}, 7")
    k.lab("L_main")
    for uu in range(1, 9):
        j = uu >> 1
        pre = None
        if uu & 1 == 0:
            pre = ["s_waitcnt vmcnt(8)", "s_barrier"]
            dm = dma_plan(kdma((j + 3) & 3))
        else:
            dm = dma_plan(vdma((j + 2) & 3))
        step(uu, f"m{uu}", dma=dm, pre=pre)
    k.e(f"s_sub_u32 s{S_CNT}, s{S_CNT}, 1")
    k.e(f"s_cmp_lg_u32 s{S_CNT}, 0")
    k.e(f"s_cbranch_scc1 L_main")
    def tw(i):
        return [f"s_and_b32 s14, s{S_RB}, 3", f"s_mul_i32 s14, s14, {448*4096}", f"s_lshl_b32 s15, s{S_MT2}, 7",
                f"s_add_u32 s14, s14, s15", f"s_add_u32 s14, s14, {i*128*4096}",
                f"buffer_load_dword v{246+(i&1)}, v250, s[{SRD_WQ}:{SRD_WQ+3}], s14 offen"]
    def tu(i):
        return [f"s_lshl_b32 s14, s{S_NT2}, 1", f"s_mul_i32 s14, s14, {112*1024}", f"s_lshr_b32 s15, s{S_RB}, 2",
                f"s_mul_i32 s15, s15, 28672", f"s_add_u32 s14, s14, s15", f"s_add_u32 s14, s14, {UF_OFF + i*16384}",
                f"buffer_load_dword v{248+(i&1)}, v251, s[{SRD_WS}:{SRD_WS+3}], s14 offen sc1"]
    def merge(d, g, lst):
        d = dict(d) if d else {}
        d[g] = d.get(g, []) + lst
        return d
    k(f"""
    s_lshl_b32 s14, s{S_NT2}, 8
    s_add_u32 s14, s14, {UCNT_OFF}
    v_mov_b32 v{UFL}, 0
    buffer_load_dword v{UFL}, v{UFL}, s[{SRD_DBG}:{SRD_DBG+3}], s14 offen sc1
    """)
    step(57, "t57", dma=dma_plan(vdma((28 + 2) & 3)))
    step(58, "t58", pre=["s_waitcnt vmcnt(4)", "s_barrier",
                         f"v_readfirstlane_b32 s14, v{UFL}", "s_cmp_ge_u32 s14, 28", "s_cbranch_scc1 L_uok"] +
                        [f"s_lshl_b32 s14, s{S_NT2}, 8", f"s_add_u32 s14, s14, {UCNT_OFF}", "UPOLL", "L_uok:"],
         dma=merge(merge(None, 3, tw(0)), 19, tw(1)))
    step(59, "t59", dma=merge(merge(dma_plan(vdma((29 + 2) & 3)), 29, tu(0)), 30, tu(1)))
    step(60, "t60", pre=["s_waitcnt vmcnt(8)", "s_barrier"], dma=merge(merge(None, 3, tw(2)), 19, tw(3)))
    step(61, "t61")
    step(62, "t62", pre=["s_waitcnt vmcnt(4)", "s_barrier"], qk_next=False)
    step(63, "t63", do_qk=False, qk_next=False, prev7=2)
    p = 63 & 1
    k.e(f"v_add_f32 v{LL}, v{LL}, v{LS+2*p}")
    k.e(f"v_add_f32 v{LL+1}, v{LL+1}, v{LS+2*p+1}")
    for i in range(8):
        nxt = v_read(63, i + 2, i + 2) if i + 2 < 8 else []
        prevn = 2 if (i == 0 or i + 1 < 8) else 0
        k.e(f"s_waitcnt lgkmcnt({prevn})")
        db, ks = i >> 1, i & 1
        for qb in range(2):
            d = OA + (db * 2 + qb) * 16
            k.e(mfma(d, VF + (i & 3) * 4, Pbuf(p, qb, ks), d, dfile='a'))
            if qb == 0:
                for ins in nxt: k.e(ins)
    k.e("s_waitcnt lgkmcnt(0)")
    stamp()
    k(f"""
    s_waitcnt lgkmcnt(0)
    s_barrier
    s_lshl_b32 s{S_WRING}, s{S_W}, 14
    v_lshrrev_b32 v1, 4, v0
    v_mul_u32_u24 v1, {1024-256}, v1
    v_add_u32 v{DW}, v{DV}, v1
    ; soffset = g*512*1024 + w*256
    s_lshl_b32 s{S_WOFF}, s{S_G}, 19
    s_lshl_b32 s14, s{S_W}, 8
    s_add_u32 s{S_WOFF}, s{S_WOFF}, s14
    """)
    for t in range(4):
        for ins in wdma(t, SRD_WO, 1024): k.e(ins)
    k.e(f"s_sub_u32 s14, s{S_WRING}, {VRING}")
    for db in range(4):
        k.e(f"v_add_u32 v{WA+db}, s14, v{VA+db}")
    for qb in range(2):
        k.e(f"v_mov_b32 v{T0+qb}, v{LL+qb}")
    k.e("s_nop 1")
    for qb in range(2):
        k.e(f"v_permlane32_swap_b32 v{T0+qb}, v{LL+qb}")
    for qb in range(2):
        k.e(f"v_add_f32 v{LL+qb}, v{LL+qb}, v{T0+qb}")
    for qb in range(2):
        k.e(f"v_rcp_f32 v{LL+qb}, v{LL+qb}")
    k(f"""
    s_lshl_b32 s14, s{S_W}, 14
    s_add_u32 s14, s14, {XT}
    v_lshlrev_b32 v15, 4, v0
    v_add_u32 v14, s14, v15
    v_add_u32 v{XA}, {XT}, v15
    """)
    for db in range(4):
        for qb in range(2):
            for ks in range(2):
                tb = S0 + ((db * 4 + qb * 2 + ks) & 3) * 16
                for r in range(8):
                    k.e(f"v_accvgpr_read_b32 v{tb+r}, a{OA+(db*2+qb)*16+ks*8+r}")
                for r in range(8):
                    k.e(f"v_mul_f32 v{tb+r}, v{tb+r}, v{LL+qb}")
                for r in range(0, 8, 2):
                    k.e(f"v_cvt_pk_bf16_f32 v{tb+8+r//2}, v{tb+r}, v{tb+r+1}")
                k.e(f"ds_write_b128 v14, v[{tb+8}:{tb+11}] offset:{(2*db+ks)*2048 + qb*1024}")
    if debug == "o":
        k("""
        s_waitcnt vmcnt(0) lgkmcnt(0)
        s_barrier
        """)
        k(f"""
        s_lshl_b32 s14, s{S_RB}, 16
        s_lshl_b32 s15, s{S_W}, 14
        s_add_u32 s14, s14, s15
        v_add_u32 v13, s15, v{XA}
        """)
        for i in range(16):
            k.e(f"ds_read_b128 v[16:19], v13 offset:{i*1024}")
            k.e("s_waitcnt lgkmcnt(0)")
            k.e(f"buffer_store_dwordx4 v[16:19], v15, s[{SRD_SL}:{SRD_SL+3}], s14 offen")
            k.e("s_add_u32 s14, s14, 1024")
            k.e("s_waitcnt vmcnt(0)")
        k.e("s_endpgm")
    k("""
    s_waitcnt lgkmcnt(0)
    s_barrier
    """)
    stamp()
    gen_proj(k, "o", SRD_WO, 1024, False, True)
    stamp()
    vm1 = Ctr(63)
    k.e("s_waitcnt lgkmcnt(0)")
    k.e("s_barrier")
    k(f"""
    v_lshlrev_b32 v1, 4, v0
    s_lshl_b32 s14, s{S_RB}, 16          ; rb*65536
    s_lshl_b32 s15, s{S_W}, 14           ; w*16384
    s_add_u32 s14, s14, s15
    s_nop 7
    """)
    for cb in range(4):
        for qb in range(2):
            a = PACC + (cb * 2 + qb) * 16
            o = QF + (cb * 2 + qb) * 8
            for r in range(0, 16, 2):
                k.e(f"v_cvt_pk_bf16_f32 v{o+r//2}, v{a+r}, v{a+r+1}")
            k.e("s_nop 1")
            for pr in range(2):
                k.e(f"v_permlane32_swap_b32 v{o+4*pr}, v{o+4*pr+2}")
                k.e(f"v_permlane32_swap_b32 v{o+4*pr+1}, v{o+4*pr+3}")
            for pr in range(2):
                idx = cb * 4 + qb * 2 + pr
                k.e(f"buffer_store_dwordx4 v[{o+4*pr}:{o+4*pr+3}], v1, s[{SRD_SL}:{SRD_SL+3}], s14 offen offset:{(idx&3)*1024} sc1")
                vm1.issue(("ST", 0))
                if (idx & 3) == 3: k.e("s_add_u32 s14, s14, 4096")
    g2_setup(k, vm1)
    n = vm1.need(lambda t: t[0] == "ST")
    k.e(f"s_waitcnt vmcnt({n})")
    k.e("s_barrier")
    k.e(f"s_lshl_b32 s52, s{S_RB}, 8")
    k.e(f"s_add_u32 s52, s52, {CNT_OFF}")
    signal(k, "slab", 52)
    stamp()
    g2_main(k, vm1, stamp)
    if prof:
        k.e("s_waitcnt vmcnt(0)")
        stamp()
        k.e(f"s_load_dwordx2 s[12:13], s[0:1], {KA_WS}")
        k.e("s_waitcnt lgkmcnt(0)")
        srd_off(k, 4, 12, 13, 64 << 20, 1 << 20)
        k.e(f"s_lshl_b32 s14, s2, 2")
        k.e(f"s_add_u32 s14, s14, s{S_W}")
        k.e(f"s_lshl_b32 s14, s14, 7")
        for i in range(nst[0]):
            k.e(f"v_mov_b32 v2, s{64+2*i}")
            k.e(f"v_mov_b32 v3, s{65+2*i}")
            k.e(f"v_mov_b32 v1, {8*i}")
            k.e(f"buffer_store_dwordx2 v[2:3], v1, s[4:7], s14 offen")
        tl_end(k, prof, kidx)
    k.lab("L_at_done")
    k.e("s_endpgm")
    for rid, p in rare_sites:
        k.lab(f"L_rare_{rid}")
        k.e(f"s_call_b64 s[{S_RET}:{S_RET+1}], L_raresub_{p}")
        k.e(f"s_branch L_back_{rid}")
    gen_rare(k, 0)
    gen_rare(k, 1)
    return k.text(), kernel_desc(name, 512, 102, 256), f"; @launch kernel={name} grid=(256,1,1) block=(256,1,1) lds=163840"
```

```python
from common import *
import k_main as M
from k_main import *
import math

S_MT2, S_NT2 = 10, 11
S_FLG = 51
SRD_DBG = 60
UCNT_OFF = CNT_OFF + 8192
POLL_MAX = 1 << 20

def poll(k, tag, off_sgpr, target):
    k(f"""
    s_mov_b32 s{S_FLG}, {POLL_MAX}
    v_mov_b32 v1, 0
    L_poll_{tag}:
    buffer_load_dword v2, v1, s[{SRD_DBG}:{SRD_DBG+3}], s{off_sgpr} offen sc1
    s_waitcnt vmcnt(0)
    v_readfirstlane_b32 s3, v2
    s_cmp_ge_u32 s3, {target}
    s_cbranch_scc1 L_polld_{tag}
    s_sleep 16
    s_sub_u32 s{S_FLG}, s{S_FLG}, 1
    s_cmp_lg_u32 s{S_FLG}, 0
    s_cbranch_scc1 L_poll_{tag}
    L_polld_{tag}:
    """)

def signal(k, tag, off_sgpr):
    k(f"""
    s_cmp_lg_u32 s{S_W}, 0
    s_cbranch_scc1 L_sig_{tag}
    v_mov_b32 v1, 0
    v_mov_b32 v2, 1
    v_cmp_eq_u32 vcc, 0, v0
    s_and_saveexec_b64 s[48:49], vcc
    buffer_atomic_add v2, v1, s[{SRD_DBG}:{SRD_DBG+3}], s{off_sgpr} offen
    s_mov_b64 exec, s[48:49]
    L_sig_{tag}:
    """)

def g1_phase(k, stamp, after_exchange):
    RS, NKS, NKST = 3584, 32, 128
    PF, NS, NB = 8, 10, 9
    ACC, AF, BF = 64, 128, 144
    vm = Ctr(63)
    k(f"""
    s_load_dwordx2 s[8:9], s[0:1], {KA_B1}
    v_lshrrev_b32 v3, 3, v0
    v_and_b32 v4, 7, v0
    v_lshrrev_b32 v5, 1, v3
    v_and_b32 v5, 1, v5
    v_lshlrev_b32 v5, 2, v5
    v_xor_b32 v4, v4, v5
    s_movk_i32 s49, {RS}
    v_mul_lo_u32 v3, v3, s49
    v_lshl_add_u32 v10, v4, 4, v3       ; voffA
    v_lshlrev_b32 v11, 4, v0            ; voffB
    v_lshrrev_b32 v3, 5, v0             ; hf
    v_bfe_u32 v4, v0, 4, 1
    v_bfe_u32 v5, v0, 2, 2
    v_and_b32 v6, 3, v0
    v_lshlrev_b32 v7, 3, v3
    v_add_u32 v7, v7, v5
    v_lshlrev_b32 v7, 7, v7
    v_lshl_add_u32 v7, v4, 5, v7
    v_lshl_add_u32 v7, v6, 3, v7
    s_mul_i32 s46, s{S_W}, {NS*2048}
    v_add_u32 v7, s46, v7
    v_lshrrev_b32 v8, 1, v5
    v_lshlrev_b32 v9, 6, v8
    v_add_u32 v12, v7, v9
    v_xor_b32 v9, 64, v9
    v_add_u32 v13, v7, v9
    v_lshlrev_b32 v14, 3, v3            ; hf*8
    s_mul_i32 s43, s{S_W}, {NKS*16*RS}
    s_lshl_b32 s49, s{S_MT}, 7
    s_add_u32 s43, s43, s49
    s_add_u32 s47, s43, {8*RS-1024}
    s_lshl_b32 s44, s{S_NT}, 1
    s_mul_i32 s44, s44, {NKST}
    s_mul_i32 s49, s{S_W}, {NKS}
    s_add_u32 s44, s44, s49
    s_lshl_b32 s44, s44, 10
    s_add_u32 s44, s44, {HF_OFF}
    s_add_u32 s45, s44, {NKST*1024}
    """)
    def issue(ks):
        slot = ks % NS
        k.e(f"s_add_u32 m0, s46, {slot*2048}")
        bs = BF + (ks % NB) * 8
        k.e(f"buffer_load_dwordx4 v[{bs}:{bs+3}], v11, s[{SRD_WS}:{SRD_WS+3}], s44 offen"); vm.issue(("B", ks))
        k.e(f"buffer_load_dwordx4 v10, s[{SRD_W1}:{SRD_W1+3}], s43 offen lds"); vm.issue(("A", ks))
        k.e(f"buffer_load_dwordx4 v10, s[{SRD_W1}:{SRD_W1+3}], s47 offen offset:1024 lds"); vm.issue(("A", ks))
        k.e(f"buffer_load_dwordx4 v[{bs+4}:{bs+7}], v11, s[{SRD_WS}:{SRD_WS+3}], s45 offen"); vm.issue(("B", ks))
        k.e(f"s_add_u32 s43, s43, {16*RS}")
        k.e(f"s_add_u32 s47, s47, {16*RS}")
        k.e(f"s_add_u32 s44, s44, 1024")
        k.e(f"s_add_u32 s45, s45, 1024")
    def tr(ks):
        slot = ks % NS
        out = []
        for mb in range(2):
            for bp in range(2):
                d = AF + (ks & 1) * 8 + mb * 4 + bp * 2
                out.append(f"ds_read_b64_tr_b16 v[{d}:{d+1}], v{12+mb} offset:{slot*2048 + bp*512}")
        return out
    for ks in range(PF):
        issue(ks)
    k(f"""
    s_lshr_b32 s48, s{S_W}, 1
    s_lshl_b32 s48, s48, 6
    s_lshl_b32 s49, s{S_MT}, 7
    s_add_u32 s48, s48, s49
    s_waitcnt lgkmcnt(0)
    s_mov_b32 s12, s8
    s_mov_b32 s13, s9
    s_mov_b32 s14, {1792*2}
    s_mov_b32 s15, 0x00020000
    """)
    for b in range(4):
        k.e(f"buffer_load_dwordx2 v[{20+2*b}:{21+2*b}], v14, s[12:15], s48 offen offset:{16*b}"); vm.issue(("E", 0))
    n = vm.need(lambda t: t == ("A", 0))
    k.e(f"s_waitcnt vmcnt({n})")
    stamp()
    for ins in tr(0): k.e(ins)
    for ks in range(NKS):
        n = vm.need(lambda t: (t[0] == "A" and t[1] <= ks + 1) or (t[0] == "B" and t[1] <= ks))
        k.e("s_waitcnt lgkmcnt(0)" if n is None else f"s_waitcnt vmcnt({n}) lgkmcnt(0)")
        bs = BF + (ks % NB) * 8
        fill = tr(ks + 1) if ks + 1 < NKS else []
        mf = []
        for mb in range(2):
            for nb in range(2):
                d = ACC + (mb * 2 + nb) * 16
                mf.append(mfma(d, AF + (ks & 1) * 8 + mb * 4, bs + nb * 4, "0" if ks == 0 else d, dfile='v', afile='v', bfile='v'))
        k.e(mf[0])
        for ins in fill[:2]: k.e(ins)
        k.e(mf[1])
        for ins in fill[2:]: k.e(ins)
        k.e(mf[2])
        if ks + PF < NKS:
            issue(ks + PF)
        k.e(mf[3])
    stamp()
    k.e("s_nop 7")
    k.e("s_barrier")
    k(f"""
    s_lshl_b32 s48, s{S_W}, 14
    v_add_u32 v3, s48, v11
    s_nop 4
    """)
    for blk in range(4):
        for q in range(4):
            r = ACC + blk * 16 + q * 4
            k.e(f"ds_write_b128 v3, v[{r}:{r+3}] offset:{blk*4096 + q*1024}")
    k(f"""
    s_lshl_b32 s48, s{S_W}, 12
    v_add_u32 v3, s48, v11
    s_waitcnt lgkmcnt(0)
    s_barrier
    """)
    for src in range(4):
        for q in range(4):
            r = ACC + src * 16 + q * 4
            k.e(f"ds_read_b128 v[{r}:{r+3}], v3 offset:{src*16384 + q*1024}")
    n = vm.need(lambda t: t[0] == "E")
    if n is not None: k.e(f"s_waitcnt vmcnt({n})")
    for b in range(4):
        k.e(f"v_lshlrev_b32 v{32+4*b}, 16, v{20+2*b}")
        k.e(f"v_and_b32 v{33+4*b}, 0xffff0000, v{20+2*b}")
        k.e(f"v_lshlrev_b32 v{34+4*b}, 16, v{21+2*b}")
        k.e(f"v_and_b32 v{35+4*b}, 0xffff0000, v{21+2*b}")
    k.e("s_waitcnt lgkmcnt(0)")
    k.e("s_barrier")
    after_exchange()

def g1_finish(k):
    Y = 64
    c1 = -2.0 * 0.7978845608028654 * LOG2E
    k.e(f"s_mov_b32 s12, {f2h(c1)}")
    k.e(f"s_mov_b32 s13, {f2h(c1*0.044715)}")
    k.e(f"v_mov_b32 v48, s12")
    for r in range(0, 16, 2):
        k.e(f"v_pk_add_f32 v[{Y+r}:{Y+r+1}], v[{Y+r}:{Y+r+1}], v[{Y+16+r}:{Y+17+r}]")
        k.e(f"v_pk_add_f32 v[{Y+32+r}:{Y+33+r}], v[{Y+32+r}:{Y+33+r}], v[{Y+48+r}:{Y+49+r}]")
    for r in range(0, 16, 2):
        k.e(f"v_pk_add_f32 v[{Y+r}:{Y+r+1}], v[{Y+r}:{Y+r+1}], v[{Y+32+r}:{Y+33+r}]")
    for r in range(0, 16, 2):
        k.e(f"v_pk_add_f32 v[{Y+r}:{Y+r+1}], v[{Y+r}:{Y+r+1}], v[{32+r}:{33+r}]")
    T = Y + 16
    for r in range(0, 16, 2):
        k.e(f"v_pk_mul_f32 v[{T+r}:{T+r+1}], v[{Y+r}:{Y+r+1}], v[{Y+r}:{Y+r+1}]")
    for r in range(16):
        k.e(f"v_fma_f32 v{T+r}, v{T+r}, s13, v48")
    for r in range(0, 16, 2):
        k.e(f"v_pk_mul_f32 v[{T+r}:{T+r+1}], v[{T+r}:{T+r+1}], v[{Y+r}:{Y+r+1}]")
    for r in range(16):
        k.e(f"v_exp_f32 v{T+r}, v{T+r}")
    for r in range(16):
        k.e(f"v_add_f32 v{T+r}, 1.0, v{T+r}")
    for r in range(16):
        k.e(f"v_rcp_f32 v{T+r}, v{T+r}")
    k.e("s_nop 0")
    for r in range(0, 16, 2):
        k.e(f"v_pk_mul_f32 v[{Y+r}:{Y+r+1}], v[{Y+r}:{Y+r+1}], v[{T+r}:{T+r+1}]")
    for r in range(0, 16, 2):
        k.e(f"v_cvt_pk_bf16_f32 v{52 + r//2}, v{Y+r}, v{Y+r+1}")
    k(f"""
    s_and_b32 s12, s{S_W}, 1
    s_lshl_b32 s13, s{S_NT}, 1
    s_add_u32 s12, s12, s13
    s_mul_i32 s12, s12, 112
    s_lshl_b32 s13, s{S_MT}, 2
    s_add_u32 s12, s12, s13
    s_lshr_b32 s13, s{S_W}, 1
    s_lshl_b32 s13, s13, 1
    s_add_u32 s12, s12, s13
    s_lshl_b32 s12, s12, 10
    s_add_u32 s12, s12, {UF_OFF}
    buffer_store_dwordx4 v[52:55], v11, s[{SRD_WS}:{SRD_WS+3}], s12 offen sc1
    buffer_store_dwordx4 v[56:59], v11, s[{SRD_WS}:{SRD_WS+3}], s12 offen offset:1024 sc1
    """)

G2_PF = 10
def g2_setup(k, vm):
    RS, NKS, NKST = 4096, 28, 112
    PF, NS, NB = G2_PF, G2_PF + 2, G2_PF + 1
    k(f"""
    s_load_dwordx2 s[8:9], s[0:1], {KA_B2}
    s_load_dwordx2 s[12:13], s[0:1], {KA_X}
    s_load_dwordx2 s[14:15], s[0:1], {KA_OUT}
    s_load_dwordx2 s[48:49], s[0:1], {KA_WS}
    v_lshrrev_b32 v3, 3, v0
    v_and_b32 v4, 7, v0
    v_lshrrev_b32 v5, 1, v3
    v_and_b32 v5, 1, v5
    v_lshlrev_b32 v5, 2, v5
    v_xor_b32 v4, v4, v5
    v_lshlrev_b32 v3, 12, v3
    v_lshl_add_u32 v10, v4, 4, v3       ; voffA
    v_lshlrev_b32 v11, 4, v0
    v_lshrrev_b32 v3, 5, v0             ; hf
    v_bfe_u32 v4, v0, 4, 1
    v_bfe_u32 v5, v0, 2, 2
    v_and_b32 v6, 3, v0
    v_lshlrev_b32 v7, 2, v3
    v_add_u32 v7, v7, v5
    v_lshlrev_b32 v7, 7, v7
    v_lshl_add_u32 v7, v4, 5, v7
    v_lshl_add_u32 v7, v6, 3, v7
    s_mul_i32 s46, s{S_W}, {NS*2048}
    v_add_u32 v7, s46, v7
    v_lshrrev_b32 v8, 1, v5
    v_lshlrev_b32 v9, 6, v8
    v_add_u32 v12, v7, v9
    v_xor_b32 v9, 64, v9
    v_add_u32 v13, v7, v9
    s_mul_i32 s43, s{S_W}, {NKS*16*RS}
    s_lshl_b32 s47, s{S_MT2}, 7
    s_add_u32 s43, s43, s47
    s_add_u32 s47, s43, {8*RS-1024}
    s_lshl_b32 s44, s{S_NT2}, 1
    s_mul_i32 s44, s44, {NKST}
    s_mul_i32 s45, s{S_W}, {NKS}
    s_add_u32 s44, s44, s45
    s_lshl_b32 s44, s44, 10
    s_add_u32 s44, s44, {UF_OFF}
    s_add_u32 s45, s44, {NKST*1024}
    v_and_b32 v14, 31, v0
    s_lshr_b32 s54, s{S_W}, 1
    s_lshl_b32 s54, s54, 5
    v_add_u32 v14, s54, v14             ; row
    v_lshlrev_b32 v15, 1, v14           ; b2 offset
    v_lshlrev_b32 v16, 10, v14
    v_lshl_add_u32 v16, v3, 4, v16
    s_and_b32 s54, s{S_W}, 1
    s_lshl_b32 s54, s54, 5
    v_add_u32 v16, s54, v16
    """)
    for ks in range(PF):
        g2_issue(k, vm, ks)
    k("s_waitcnt lgkmcnt(0)")
    srd(k, 16, 8, 9, 2048 * 2)
    srd(k, 20, 12, 13, 2097152)
    srd(k, 28, 14, 15, 2097152)
    srd_off(k, 32, 48, 49, SLAB_OFF, 16 << 20)
    k(f"""
    s_lshl_b32 s54, s{S_MT2}, 16
    s_lshl_b32 s55, s{S_NT2}, 7
    s_add_u32 s54, s54, s55
    s_lshl_b32 s55, s{S_MT2}, 7         ; b2 base
    s_lshl_b32 s53, s{S_MT2}, 16
    s_lshr_b32 s52, s{S_NT2}, 1
    s_lshl_b32 s52, s52, 14
    s_add_u32 s53, s53, s52
    s_and_b32 s52, s{S_NT2}, 1
    s_lshl_b32 s52, s52, 13
    s_add_u32 s53, s53, s52
    s_lshl_b32 s52, s{S_W}, 10
    s_add_u32 s53, s53, s52
    """)
    k.e("buffer_load_ushort v17, v15, s[16:19], s55 offen"); vm.issue(("E", 0))
    k.e(f"buffer_load_dwordx4 v[248:251], v16, s[20:23], s54 offen"); vm.issue(("E", 0))
    k.e(f"buffer_load_dwordx4 v[252:255], v16, s[20:23], s54 offen offset:64"); vm.issue(("E", 0))

def g2_issue(k, vm, ks):
    RS = 4096
    NS, NB = G2_PF + 2, G2_PF + 1
    slot = ks % NS
    k.e(f"s_add_u32 m0, s46, {slot*2048}")
    bs = 144 + (ks % NB) * 8
    k.e(f"buffer_load_dwordx4 v[{bs}:{bs+3}], v11, s[{SRD_WS}:{SRD_WS+3}], s44 offen sc1"); vm.issue(("B", ks))
    k.e(f"buffer_load_dwordx4 v10, s[{SRD_WQ}:{SRD_WQ+3}], s43 offen lds"); vm.issue(("A", ks))
    k.e(f"buffer_load_dwordx4 v10, s[{SRD_WQ}:{SRD_WQ+3}], s47 offen offset:1024 lds"); vm.issue(("A", ks))
    k.e(f"buffer_load_dwordx4 v[{bs+4}:{bs+7}], v11, s[{SRD_WS}:{SRD_WS+3}], s45 offen sc1"); vm.issue(("B", ks))
    k.e(f"s_add_u32 s43, s43, {16*RS}")
    k.e(f"s_add_u32 s47, s47, {16*RS}")
    k.e(f"s_add_u32 s44, s44, 1024")
    k.e(f"s_add_u32 s45, s45, 1024")

def g2_main(k, vm, stamp, POLL_KS=10):
    NKS = 28
    PF, NS, NB = G2_PF, G2_PF + 2, G2_PF + 1
    ACC, AF, BF = 64, 128, 144
    SL = 0
    SUM = 232
    def tr(ks):
        slot = ks % NS
        out = []
        for mb in range(2):
            for bp in range(2):
                d = AF + (ks & 1) * 8 + mb * 4 + bp * 2
                out.append(f"ds_read_b64_tr_b16 v[{d}:{d+1}], v{12+mb} offset:{slot*2048 + bp*1024}")
        return out
    n = vm.need(lambda t: t == ("A", 0))
    k.e(f"s_waitcnt vmcnt({n})")
    for ins in tr(0): k.e(ins)
    si = 0
    for ks in range(NKS):
        n = vm.need(lambda t: (t[0] == "A" and t[1] <= ks + 1) or (t[0] == "B" and t[1] <= ks))
        k.e("s_waitcnt lgkmcnt(0)" if n is None else f"s_waitcnt vmcnt({n}) lgkmcnt(0)")
        bs = BF + (ks % NB) * 8
        fill = tr(ks + 1) if ks + 1 < NKS else []
        mf = []
        for mb in range(2):
            for nb in range(2):
                a = AF + (ks & 1) * 8 + mb * 4
                b = bs + nb * 4
                d = ACC + (mb * 2 + nb) * 16
                c = "0" if ks == 0 else f"v[{d}:{d+15}]"
                mf.append(f"v_mfma_f32_32x32x16_bf16 v[{d}:{d+15}], v[{b}:{b+3}], v[{a}:{a+3}], {c}")
        k.e(mf[0])
        for ins in fill[:2]: k.e(ins)
        k.e(mf[1])
        for ins in fill[2:]: k.e(ins)
        k.e(mf[2])
        if ks + PF < NKS:
            g2_issue(k, vm, ks + PF)
        if ks == POLL_KS:
            k.e(f"s_lshl_b32 s52, s{S_MT2}, 8")
            k.e(f"s_add_u32 s52, s52, {CNT_OFF}")
            k.e(f"s_cmp_lg_u32 s{S_W}, 0")
            k.e("s_cbranch_scc1 L_slab_nopoll")
            poll(k, "slab", 52, 8)
            k.lab("L_slab_nopoll")
            k.e("s_barrier")
        if ks >= POLL_KS and si < 16:
            for rep in range(1 if ks < 26 else 2):
                if si < 16:
                    g, p = si >> 1, si & 1
                    k.e(f"s_add_u32 s52, s53, {g*2097152 + p*4096}")
                    k.e(f"buffer_load_dwordx4 a[{si*4}:{si*4+3}], v11, s[32:35], s52 offen sc1"); vm.issue(("S", si))
                    si += 1
        k.e(mf[3])
    assert si == 16
    stamp()
    PS = 64 * 272
    k(f"""
    v_and_b32 v3, 31, v0
    s_movk_i32 s52, 272
    v_mul_lo_u32 v3, v3, s52
    v_lshrrev_b32 v4, 5, v0
    v_lshl_add_u32 v3, v4, 4, v3
    s_mul_i32 s55, s{S_W}, {PS}
    v_add_u32 v3, s55, v3
    v_mul_lo_u32 v8, v14, s52
    v_lshl_add_u32 v8, v4, 5, v8
    s_and_b32 s52, s{S_W}, 1
    s_lshl_b32 s52, s52, 6
    v_add_u32 v8, s52, v8
    s_barrier
    """)
    for mb in range(2):
        for nb in range(2):
            for b in range(4):
                r = ACC + (mb * 2 + nb) * 16 + b * 4
                k.e(f"ds_write_b128 v3, v[{r}:{r+3}] offset:{mb*32*272 + nb*128 + b*32}")
    k(f"""
    s_waitcnt lgkmcnt(0)
    s_barrier
    """)
    for p in range(2):
        for src in range(4):
            r = ACC + p * 32 + src * 8
            k.e(f"ds_read_b128 v[{r}:{r+3}], v8 offset:{src*PS + p*128}")
            k.e(f"ds_read_b128 v[{r+4}:{r+7}], v8 offset:{src*PS + p*128 + 16}")
    for i in range(16):
        g, p = i >> 1, i & 1
        n = vm.need(lambda t: t[0] == "S" and t[1] <= i)
        if n is not None: k.e(f"s_waitcnt vmcnt({n})")
        for j in range(4):
            k.e(f"v_accvgpr_read_b32 v{20+j}, a{i*4+j}")
        for j in range(4):
            if g == 0:
                k.e(f"v_lshlrev_b32 v{SUM+p*8+2*j}, 16, v{20+j}")
                k.e(f"v_and_b32 v{SUM+p*8+2*j+1}, 0xffff0000, v{20+j}")
            else:
                k.e(f"v_lshlrev_b32 v{24+2*j}, 16, v{20+j}")
                k.e(f"v_and_b32 v{25+2*j}, 0xffff0000, v{20+j}")
        if g > 0:
            for j in range(4):
                k.e(f"v_pk_add_f32 v[{SUM+p*8+2*j}:{SUM+p*8+2*j+1}], v[{SUM+p*8+2*j}:{SUM+p*8+2*j+1}], v[{24+2*j}:{25+2*j}]")
    for p in range(2):
        for j in range(4):
            k.e(f"v_lshlrev_b32 v{128+p*8+2*j}, 16, v{248+p*4+j}")
            k.e(f"v_and_b32 v{129+p*8+2*j}, 0xffff0000, v{248+p*4+j}")
    k.e("v_lshlrev_b32 v18, 16, v17")
    k.e("v_mov_b32 v19, v18")
    k.e(f"s_mov_b32 s48, {f2h(-LOG2E)}")
    k.e(f"s_mov_b32 s49, {f2h(-LOG2E)}")
    k.e("s_waitcnt lgkmcnt(0)")
    for p in range(2):
        Y = ACC + p * 32
        for i in range(0, 8, 2):
            k.e(f"v_pk_add_f32 v[{Y+i}:{Y+i+1}], v[{Y+i}:{Y+i+1}], v[{Y+8+i}:{Y+9+i}]")
            k.e(f"v_pk_add_f32 v[{Y+16+i}:{Y+17+i}], v[{Y+16+i}:{Y+17+i}], v[{Y+24+i}:{Y+25+i}]")
        for i in range(0, 8, 2):
            k.e(f"v_pk_add_f32 v[{Y+i}:{Y+i+1}], v[{Y+i}:{Y+i+1}], v[{Y+16+i}:{Y+17+i}]")
        for i in range(0, 8, 2):
            k.e(f"v_pk_add_f32 v[{Y+i}:{Y+i+1}], v[{Y+i}:{Y+i+1}], v[18:19]")
    for p in range(2):
        Y = ACC + p * 32; T = Y + 8
        for i in range(0, 8, 2):
            k.e(f"v_pk_mul_f32 v[{T+i}:{T+i+1}], v[{Y+i}:{Y+i+1}], s[48:49]")
    for p in range(2):
        T = ACC + p * 32 + 8
        for i in range(8): k.e(f"v_exp_f32 v{T+i}, v{T+i}")
    for p in range(2):
        T = ACC + p * 32 + 8
        for i in range(8): k.e(f"v_add_f32 v{T+i}, 1.0, v{T+i}")
    for p in range(2):
        T = ACC + p * 32 + 8
        for i in range(8): k.e(f"v_rcp_f32 v{T+i}, v{T+i}")
    k.e("s_nop 0")
    for p in range(2):
        Y = ACC + p * 32; T = Y + 8
        for i in range(0, 8, 2):
            k.e(f"v_pk_mul_f32 v[{Y+i}:{Y+i+1}], v[{Y+i}:{Y+i+1}], v[{T+i}:{T+i+1}]")
    for p in range(2):
        Y = ACC + p * 32
        for i in range(0, 8, 2):
            k.e(f"v_pk_fma_f32 v[{Y+i}:{Y+i+1}], v[{Y+i}:{Y+i+1}], v[{SUM+p*8+i}:{SUM+p*8+i+1}], v[{128+p*8+i}:{129+p*8+i}]")
    for p in range(2):
        Y = ACC + p * 32
        for i in range(0, 8, 2):
            k.e(f"v_cvt_pk_bf16_f32 v{40+p*4+i//2}, v{Y+i}, v{Y+i+1}")
        k.e(f"buffer_store_dwordx4 v[{40+p*4}:{43+p*4}], v16, s[28:31], s54 offen offset:{64*p}")

XSRC = 239
UFL = 252

def gen_m4(name="main_kernel", debug=None, prof=False, l2pf=True, kidx=1):
    k = Em()
    M.PRE_HOOK = lambda kk: poll(kk, 'u', 14, 28)
    nst = [0]
    def stamp():
        if not prof: return
        i = nst[0]; nst[0] += 1
        k.e(f"s_memtime s[{64+2*i}:{65+2*i}]")
        k.e(f"s_memrealtime s[100:101]")
        k.e("s_waitcnt lgkmcnt(0)")
        k.e(f"s_mov_b32 s{65+2*i}, s100")
    k.L.append(kernel_header(name))
    cscale = math.log2(math.e) / math.sqrt(128.0)
    tl_begin(k, prof)
    k(f"""
    s_cmp_ge_u32 s2, 256
    s_cbranch_scc1 L_at_done
    s_load_dwordx2 s[4:5], s[0:1], {KA_K}
    s_load_dwordx2 s[6:7], s[0:1], {KA_V}
    s_load_dwordx2 s[8:9], s[0:1], {KA_WQ}
    s_load_dwordx2 s[10:11], s[0:1], {KA_WO}
    s_load_dwordx2 s[12:13], s[0:1], {KA_WS}
    v_lshrrev_b32 v1, 6, v0
    v_and_b32 v0, 63, v0
    s_and_b32 s{S_G}, s2, 7
    v_readfirstlane_b32 s{S_W}, v1
    s_lshr_b32 s{S_RB}, s2, 3
    s_lshl_b32 s14, s{S_G}, 19          ; g*524288
    s_lshl_b32 s15, s{S_RB}, 16         ; rb*65536
    s_lshl_b32 s3, s{S_G}, 21           ; g*2MB
    s_add_u32 s3, s3, {SLAB_OFF}
    s_waitcnt lgkmcnt(0)
    """)
    stamp()
    srd_off(k, SRD_K, 4, 5, "s14", 524288)
    srd_off(k, SRD_V, 6, 7, "s14", 524288)
    srd(k, SRD_WQ, 8, 9, 4194304)
    srd(k, SRD_WO, 10, 11, 4194304)
    srd_off(k, SRD_X, 12, 13, "s15", 65536)
    srd_off(k, SRD_SL, 12, 13, "s3", 2097152)
    srd(k, SRD_WS, 12, 13, 8 << 20)
    k(f"""
    s_load_dwordx2 s[12:13], s[0:1], {KA_W1}
    s_and_b32 s{S_NT}, s{S_G}, 1
    s_lshl_b32 s{S_NT}, s{S_NT}, 2
    s_and_b32 s3, s{S_RB}, 3
    s_add_u32 s{S_NT}, s{S_NT}, s3
    s_mov_b32 s{S_NT2}, s{S_NT}
    s_lshr_b32 s{S_MT}, s{S_G}, 1
    s_lshl_b32 s{S_MT2}, s{S_MT}, 3
    s_mul_i32 s{S_MT}, s{S_MT}, 7
    s_lshr_b32 s3, s{S_RB}, 2
    s_add_u32 s{S_MT}, s{S_MT}, s3
    s_add_u32 s{S_MT2}, s{S_MT2}, s3
    s_waitcnt lgkmcnt(0)
    """)
    srd(k, SRD_W1, 12, 13, 2048 * 3584)
    if l2pf:
        k(f"""
        s_lshl_b32 s14, s{S_W}, 6
        v_add_u32 v1, s14, v0               ; tid
        v_lshrrev_b32 v2, 4, v1
        v_and_b32 v3, 15, v1
        v_lshlrev_b32 v2, 13, v2
        v_lshl_add_u32 v250, v3, 6, v2
        s_lshl_b32 s14, s{S_RB}, 17         ; rb*16*8192
        s_lshl_b32 s15, s{S_G}, 10
        s_add_u32 s14, s14, s15
        buffer_load_dword v246, v250, s[{SRD_WQ}:{SRD_WQ+3}], s14 offen
        v_lshlrev_b32 v251, 6, v1           ; tid*64
        """)
    k(f"""
    v_lshrrev_b32 v1, 4, v0             ; l>>4 (0..3)
    v_and_b32 v2, 15, v0                ; p = l&15
    ; DV: (l>>4)*256 + ((p ^ ((l>>4)<<2))*16)
    v_lshlrev_b32 v3, 2, v1
    v_xor_b32 v3, v2, v3
    v_lshlrev_b32 v3, 4, v3
    v_lshl_add_u32 v{DV}, v1, 8, v3
    v_lshl_add_u32 v{DW}, v1, 13, v3
    """)
    for i in range(4):
        k(f"""
        v_add_u32 v4, {4*i}, v1
        v_xor_b32 v4, v2, v4
        v_lshlrev_b32 v4, 4, v4
        v_lshl_add_u32 v{DK+i}, v1, 8, v4
        """)
    k(f"""
    v_and_b32 v4, 31, v0
    v_lshrrev_b32 v5, 5, v0             ; hf
    v_xor_b32 v6, v5, v2
    v_lshlrev_b32 v7, 8, v4
    """)
    for t in range(8):
        k.e(f"v_xor_b32 v8, {2*t}, v6")
        k.e(f"v_lshl_add_u32 v{KA+t}, v8, 4, v7")
    k(f"""
    v_bfe_u32 v8, v0, 2, 2              ; r
    v_bfe_u32 v9, v0, 4, 1              ; csub
    v_and_b32 v10, 3, v0                ; c
    v_lshl_add_u32 v11, v5, 2, v8       ; 4hf + r
    v_lshlrev_b32 v11, 8, v11
    v_lshl_add_u32 v11, v9, 5, v11
    v_lshl_add_u32 v12, v10, 3, v11
    """)
    for db in range(4):
        k.e(f"v_xor_b32 v13, {db}, v8")
        k.e(f"v_lshl_add_u32 v13, v13, 6, v12")
        k.e(f"v_add_u32 v{VA+db}, {VRING}, v13")
    k(f"""
    s_and_b32 s14, s{S_W}, 1
    s_lshl_b32 s14, s14, 14
    s_lshr_b32 s15, s{S_W}, 1
    s_mul_i32 s15, s15, {131072-32768}
    s_add_u32 s{S_WRING}, s14, s15
    s_add_u32 s{S_WRING}, s{S_WRING}, 32768
    v_lshl_add_u32 v11, v5, 3, v8
    v_lshlrev_b32 v11, 8, v11
    v_lshl_add_u32 v11, v9, 5, v11
    v_and_b32 v13, 1, v10
    v_lshrrev_b32 v14, 1, v10
    v_lshl_or_b32 v13, v13, 1, v14      ; sigma(c)
    v_lshl_add_u32 v11, v13, 3, v11
    v_add_u32 v11, s{S_WRING}, v11
    """)
    for db in range(4):
        k.e(f"v_xor_b32 v13, {db}, v8")
        k.e(f"v_lshl_add_u32 v{WA+db}, v13, 6, v11")
    k(f"""
    v_lshlrev_b32 v15, 4, v0            ; lane*16
    v_add_u32 v{XA}, {XT}, v15
    v_mov_b32 v{XSRC}, v15
    """)
    xg = []
    for i in range(16):
        xg.append([f"s_lshl_b32 s3, s{S_W}, 14",
                   f"s_add_u32 s3, s3, {i*1024}",
                   f"s_add_u32 m0, s3, {XT}",
                   "s_nop 0",
                   f"buffer_load_dwordx4 v{XSRC}, s[{SRD_X}:{SRD_X+3}], s3 offen lds"])
    for grp in xg:
        for ins in grp: k.e(ins)
    k(f"""
    s_and_b32 s14, s{S_W}, 1
    s_lshl_b32 s14, s14, 14
    s_lshr_b32 s15, s{S_W}, 1
    s_mul_i32 s15, s15, {131072-32768}
    s_add_u32 s{S_WRING}, s14, s15
    s_add_u32 s{S_WRING}, s{S_WRING}, 32768
    """)
    k(f"""
    s_lshl_b32 s14, s{S_G}, 2
    s_add_u32 s14, s14, s{S_W}
    s_lshl_b32 s{S_WOFF}, s14, 8
    """)
    def wdma(t, srd, RS):
        out = [f"s_add_u32 m0, s{S_WRING}, {(t&3)*4096}"]
        for i in range(4):
            if i == 0:
                out.append("s_nop 0")
                out.append(f"buffer_load_dwordx4 v{DW}, s[{srd}:{srd+3}], s{S_WOFF} offen lds")
            else:
                out.append(f"s_add_u32 s{S_WOFF}, s{S_WOFF}, {4*RS-1024}")
                out.append(f"buffer_load_dwordx4 v{DW}, s[{srd}:{srd+3}], s{S_WOFF} offen offset:{1024*i} lds")
        out.append(f"s_add_u32 s{S_WOFF}, s{S_WOFF}, {4*RS+3072}")
        return out
    k(f"""
    s_lshl_b32 s{S_KOFF}, s{S_W}, 12          ; w*4096
    s_mov_b32 s{S_M0K}, s{S_KOFF}
    s_add_u32 s{S_M0V}, s{S_KOFF}, {VRING}
    s_mov_b32 s{S_VOFF}, s{S_KOFF}
    """)
    def kdma(slot):
        out = [f"s_add_u32 m0, s{S_M0K}, {slot*16384}", "s_nop 0"]
        for i in range(4):
            out.append(f"buffer_load_dwordx4 v{DK+i}, s[{SRD_K}:{SRD_K+3}], s{S_KOFF} offen offset:{1024*i} {POL()} lds")
        out.append(f"s_add_u32 s{S_KOFF}, s{S_KOFF}, 16384")
        return out
    def vdma(slot):
        out = [f"s_add_u32 m0, s{S_M0V}, {slot*16384}", "s_nop 0"]
        for i in range(4):
            out.append(f"buffer_load_dwordx4 v{DV}, s[{SRD_V}:{SRD_V+3}], s{S_VOFF} offen offset:{1024*i} {POL()} lds")
        out.append(f"s_add_u32 s{S_VOFF}, s{S_VOFF}, 16384")
        return out
    for ins in kdma(0) + kdma(1): k.e(ins)
    for t in range(4):
        for ins in wdma(t, SRD_WQ, 8192): k.e(ins)
    k.e("s_waitcnt vmcnt(16)")
    k.e("s_barrier")
    stamp()
    late = []
    if l2pf:
        late = [f"s_lshl_b32 s14, s{S_RB}, 14",
                f"buffer_load_dword v247, v251, s[{SRD_K}:{SRD_K+3}], s14 offen",
                f"buffer_load_dword v248, v251, s[{SRD_V}:{SRD_V+3}], s14 offen",
                f"s_lshl_b32 s15, s{S_G}, 19",
                "s_add_u32 s14, s14, s15",
                f"buffer_load_dword v249, v251, s[{SRD_WO}:{SRD_WO+3}], s14 offen"]
    gen_proj(k, "q", SRD_WQ, 8192, True, True, late)
    stamp()
    k(f"""
    s_waitcnt vmcnt({3 if l2pf else 0}) lgkmcnt(0)
    s_barrier
    """)
    for ins in vdma(0) + kdma(2) + vdma(1): k.e(ins)
    k.e(f"s_load_dwordx2 s[8:9], s[0:1], {KA_W2}")
    k(f"""
    s_lshl_b32 s14, s{S_W}, 6
    v_add_u32 v1, s14, v0                       ; tid
    v_lshrrev_b32 v2, 1, v1
    v_and_b32 v3, 1, v1
    v_lshlrev_b32 v4, 12, v2
    v_lshl_add_u32 v253, v3, 6, v4
    s_movk_i32 s14, 3584
    v_mul_lo_u32 v2, v2, s14
    v_lshl_add_u32 v250, v3, 6, v2
    s_waitcnt lgkmcnt(0)
    """)
    srd(k, SRD_WQ, 8, 9, 1792 * 4096)
    k.e(f"s_mov_b32 s14, {f2h(cscale)}")
    k.e(f"s_mov_b32 s15, {f2h(cscale)}")
    k.e("s_nop 7")
    for db in range(4):
        for qb in range(2):
            a = PACC + (db * 2 + qb) * 16
            for r in range(0, 16, 2):
                k.e(f"v_pk_mul_f32 v[{a+r}:{a+r+1}], v[{a+r}:{a+r+1}], s[14:15]")
            for r in range(0, 16, 2):
                q = QF + qb * 32 + (2 * db + (r >> 3)) * 4 + ((r & 7) >> 1)
                k.e(f"v_cvt_pk_bf16_f32 v{q}, v{a+r}, v{a+r+1}")
    if debug == "q":
        k(f"""
        s_lshl_b32 s14, s{S_RB}, 2
        s_add_u32 s14, s14, s{S_W}
        s_mul_i32 s14, s14, 16384
        v_lshlrev_b32 v1, 2, v0
        """)
        for i in range(64):
            k.e(f"buffer_store_dword v{QF+i}, v1, s[{SRD_SL}:{SRD_SL+3}], s14 offen offset:{(i&15)*256}")
            if (i & 15) == 15: k.e("s_add_u32 s14, s14, 4096")
        k.e("s_waitcnt vmcnt(0)")
        k.e("s_endpgm")
    for t in range(4):
        for ins in k_read(0, t, t): k.e(ins)
    for t in range(8):
        k.e(f"s_waitcnt lgkmcnt({min(3, 7-t)})")
        for qb in range(2):
            d = Sbuf(0, qb)
            k.e(mfma(d, KF + (t & 3) * 4, QF + qb * 32 + t * 4, "0" if t == 0 else d))
        if t + 4 < 8:
            for ins in k_read(0, t + 4, t + 4): k.e(ins)
    for i in range(128):
        k.e(f"v_accvgpr_write_b32 a{OA+i}, 0")
    k.e(f"v_mov_b32 v{LL}, 0")
    k.e(f"v_mov_b32 v{LL+1}, 0")
    k.e(f"v_mov_b32 v{LS+2}, 0")
    k.e(f"v_mov_b32 v{LS+3}, 0")
    k.e(f"s_mov_b32 s{S_THR}, {f2h(2.0**THR_LOG2)}")
    for qb in range(2):
        S = Sbuf(0, qb)
        t, t2 = T0, T0 + 1
        k.e(f"v_max3_f32 v{t}, v{S}, v{S+1}, v{S+2}")
        for r in range(3, 15, 2):
            k.e(f"v_max3_f32 v{t}, v{t}, v{S+r}, v{S+r+1}")
        k.e(f"v_max_f32 v{t}, v{t}, v{S+15}")
        k.e(f"v_mov_b32 v{t2}, v{t}")
        k.e("s_nop 1")
        k.e(f"v_permlane32_swap_b32 v{t2}, v{t}")
        k.e(f"v_max_f32 v{t}, v{t}, v{t2}")
        for r in range(16):
            k.e(f"v_sub_f32 v{S+r}, v{S+r}, v{t}")
            k.e(f"v_sub_f32 v{NEGM+16*qb+r}, 0, v{t}")
    k.e("s_waitcnt vmcnt(8)")
    k.e("s_barrier")
    stamp()
    for ins in k_read(1, 0, 0) + k_read(1, 1, 1): k.e(ins)
    rare_sites = []
    def dma_plan(lst):
        return {8: [lst[0]], 11: [lst[2]], 15: [lst[3]], 19: [lst[4]], 23: [lst[5]], 27: [lst[6]]}
    def step(u, rid, **kw):
        S = dict(do_qk=True, do_pv=True, qk_next=True, pv_next=True, dma=None, pre=None, prev7=3)
        S.update(kw)
        lk = Look(u, S['do_qk'], S['do_pv'], S['qk_next'], S['pv_next'])
        lk.prev7 = S['prev7']
        gen_step(k, u, S['do_qk'], S['do_pv'], True, lk, S['dma'], S['pre'], rid)
        rare_sites.append((rid, u & 1))
    step(0, "s0", do_pv=False, dma=dma_plan(kdma(3)), prev7=1)
    k.e(f"s_mov_b32 s{S_CNT}, 7")
    k.lab("L_main")
    for uu in range(1, 9):
        j = uu >> 1
        pre = None
        if uu & 1 == 0:
            pre = ["s_waitcnt vmcnt(8)", "s_barrier"]
            dm = dma_plan(kdma((j + 3) & 3))
        else:
            dm = dma_plan(vdma((j + 2) & 3))
        step(uu, f"m{uu}", dma=dm, pre=pre)
    k.e(f"s_sub_u32 s{S_CNT}, s{S_CNT}, 1")
    k.e(f"s_cmp_lg_u32 s{S_CNT}, 0")
    k.e(f"s_cbranch_scc1 L_main")
    def ta(i):
        return [f"s_and_b32 s14, s{S_RB}, 3", f"s_mul_i32 s14, s14, {512*3584}", f"s_lshl_b32 s15, s{S_MT}, 7",
                f"s_add_u32 s14, s14, s15", f"s_add_u32 s14, s14, {i*128*3584}",
                f"buffer_load_dword v{246+(i&1)}, v250, s[{SRD_W1}:{SRD_W1+3}], s14 offen"]
    def tb(i):
        return [f"s_lshl_b32 s14, s{S_NT}, 18", f"s_lshr_b32 s15, s{S_RB}, 2", f"s_and_b32 s15, s15, 3", f"s_lshl_b32 s15, s15, 16",
                f"s_add_u32 s14, s14, s15", f"s_add_u32 s14, s14, {HF_OFF + i*16384}",
                f"buffer_load_dword v{248+(i&1)}, v251, s[{SRD_WS}:{SRD_WS+3}], s14 offen"]
    def merge(d, g, lst):
        d = dict(d) if d else {}
        d[g] = d.get(g, []) + lst
        return d
    step(57, "t57", dma=merge(merge(dma_plan(vdma((28 + 2) & 3)), 29, ta(0)), 30, tb(0)))
    step(58, "t58", pre=["s_waitcnt vmcnt(10)", "s_barrier"], dma=merge(merge(merge(merge(None, 3, ta(1)), 11, tb(1)), 19, ta(2)), 27, tb(2)))
    step(59, "t59", dma=merge(merge(dma_plan(vdma((29 + 2) & 3)), 29, ta(3)), 30, tb(3)))
    step(60, "t60", pre=["s_waitcnt vmcnt(10)", "s_barrier"])
    step(61, "t61")
    step(62, "t62", pre=["s_waitcnt vmcnt(2)", "s_barrier"], qk_next=False)
    step(63, "t63", do_qk=False, qk_next=False, prev7=2)
    p = 63 & 1
    k.e(f"v_add_f32 v{LL}, v{LL}, v{LS+2*p}")
    k.e(f"v_add_f32 v{LL+1}, v{LL+1}, v{LS+2*p+1}")
    for i in range(8):
        nxt = v_read(63, i + 2, i + 2) if i + 2 < 8 else []
        prevn = 2 if (i == 0 or i + 1 < 8) else 0
        k.e(f"s_waitcnt lgkmcnt({prevn})")
        db, ks = i >> 1, i & 1
        for qb in range(2):
            d = OA + (db * 2 + qb) * 16
            k.e(mfma(d, VF + (i & 3) * 4, Pbuf(p, qb, ks), d, dfile='a'))
            if qb == 0:
                for ins in nxt: k.e(ins)
    k.e("s_waitcnt lgkmcnt(0)")
    stamp()
    k(f"""
    s_waitcnt lgkmcnt(0)
    s_barrier
    """)
    def wo_ring():
        k(f"""
        s_lshl_b32 s{S_WRING}, s{S_W}, 14
        v_lshrrev_b32 v1, 4, v0
        v_mul_u32_u24 v1, {1024-256}, v1
        v_add_u32 v{DW}, v{DV}, v1
        s_lshl_b32 s{S_WOFF}, s{S_G}, 19
        s_lshl_b32 s14, s{S_W}, 8
        s_add_u32 s{S_WOFF}, s{S_WOFF}, s14
        """)
        for t in range(4):
            for ins in wdma(t, SRD_WO, 1024): k.e(ins)
    k.e(f"s_cmp_ge_u32 s{S_RB}, 28")
    k.e("s_cbranch_scc1 L_no_g1")
    g1_phase(k, stamp, wo_ring)
    g1_finish(k)
    k.e("s_branch L_g1_done")
    k.lab("L_no_g1")
    wo_ring()
    nst[0] -= 2
    stamp(); stamp()
    k.lab("L_g1_done")
    k.e(f"s_sub_u32 s14, s{S_WRING}, {VRING}")
    for db in range(4):
        k.e(f"v_add_u32 v{WA+db}, s14, v{VA+db}")
    for qb in range(2):
        k.e(f"v_mov_b32 v{T0+qb}, v{LL+qb}")
    k.e("s_nop 1")
    for qb in range(2):
        k.e(f"v_permlane32_swap_b32 v{T0+qb}, v{LL+qb}")
    for qb in range(2):
        k.e(f"v_add_f32 v{LL+qb}, v{LL+qb}, v{T0+qb}")
    for qb in range(2):
        k.e(f"v_rcp_f32 v{LL+qb}, v{LL+qb}")
    k(f"""
    s_lshl_b32 s14, s{S_W}, 14
    s_add_u32 s14, s14, {XT}
    v_lshlrev_b32 v15, 4, v0
    v_add_u32 v14, s14, v15
    v_add_u32 v{XA}, {XT}, v15
    """)
    for db in range(4):
        for qb in range(2):
            for ks in range(2):
                tb = S0 + ((db * 4 + qb * 2 + ks) & 3) * 16
                for r in range(8):
                    k.e(f"v_accvgpr_read_b32 v{tb+r}, a{OA+(db*2+qb)*16+ks*8+r}")
                for r in range(8):
                    k.e(f"v_mul_f32 v{tb+r}, v{tb+r}, v{LL+qb}")
                for r in range(0, 8, 2):
                    k.e(f"v_cvt_pk_bf16_f32 v{tb+8+r//2}, v{tb+r}, v{tb+r+1}")
                k.e(f"ds_write_b128 v14, v[{tb+8}:{tb+11}] offset:{(2*db+ks)*2048 + qb*1024}")
    if debug == "o":
        k("""
        s_waitcnt vmcnt(0) lgkmcnt(0)
        s_barrier
        """)
        k(f"""
        s_lshl_b32 s14, s{S_RB}, 16
        s_lshl_b32 s15, s{S_W}, 14
        s_add_u32 s14, s14, s15
        v_add_u32 v13, s15, v{XA}
        """)
        for i in range(16):
            k.e(f"ds_read_b128 v[16:19], v13 offset:{i*1024}")
            k.e("s_waitcnt lgkmcnt(0)")
            k.e(f"buffer_store_dwordx4 v[16:19], v15, s[{SRD_SL}:{SRD_SL+3}], s14 offen")
            k.e("s_add_u32 s14, s14, 1024")
            k.e("s_waitcnt vmcnt(0)")
        k.e("s_endpgm")
    k("""
    s_waitcnt vmcnt(0) lgkmcnt(0)
    s_barrier
    """)
    k.e(f"s_cmp_ge_u32 s{S_RB}, 28")
    k.e("s_cbranch_scc1 L_no_usig")
    k.e(f"s_lshl_b32 s14, s{S_NT}, 8")
    k.e(f"s_add_u32 s14, s14, {UCNT_OFF}")
    k.e(f"s_mov_b32 s15, s{S_WRING}")
    signal(k, "u", 14)
    k.e(f"s_mov_b32 s{S_WRING}, s15")
    k.lab("L_no_usig")
    stamp()
    def tw(i):
        return [f"s_and_b32 s14, s{S_RB}, 3", f"s_mul_i32 s14, s14, {448*4096}", f"s_lshl_b32 s15, s{S_MT2}, 7",
                f"s_add_u32 s14, s14, s15", f"s_add_u32 s14, s14, {i*128*4096}",
                f"buffer_load_dword v{246+(i&1)}, v253, s[{SRD_WQ}:{SRD_WQ+3}], s14 offen"]
    gen_proj(k, "o", SRD_WO, 1024, False, True, tw(0) + tw(1) + tw(2) + tw(3))
    stamp()
    vm1 = Ctr(63)
    k.e("s_waitcnt lgkmcnt(0)")
    k.e(f"s_cmp_lg_u32 s{S_W}, 0")
    k.e("s_cbranch_scc1 L_u_nopoll")
    k.e(f"s_lshl_b32 s14, s{S_NT2}, 8")
    k.e(f"s_add_u32 s14, s14, {UCNT_OFF}")
    poll(k, "u", 14, 28)
    k.lab("L_u_nopoll")
    k.e("s_barrier")
    k(f"""
    v_lshlrev_b32 v1, 4, v0
    s_lshl_b32 s14, s{S_RB}, 16          ; rb*65536
    s_lshl_b32 s15, s{S_W}, 14           ; w*16384
    s_add_u32 s14, s14, s15
    s_nop 7
    """)
    for cb in range(4):
        for qb in range(2):
            a = PACC + (cb * 2 + qb) * 16
            o = QF + (cb * 2 + qb) * 8
            for r in range(0, 16, 2):
                k.e(f"v_cvt_pk_bf16_f32 v{o+r//2}, v{a+r}, v{a+r+1}")
            k.e("s_nop 1")
            for pr in range(2):
                k.e(f"v_permlane32_swap_b32 v{o+4*pr}, v{o+4*pr+2}")
                k.e(f"v_permlane32_swap_b32 v{o+4*pr+1}, v{o+4*pr+3}")
            for pr in range(2):
                idx = cb * 4 + qb * 2 + pr
                k.e(f"buffer_store_dwordx4 v[{o+4*pr}:{o+4*pr+3}], v1, s[{SRD_SL}:{SRD_SL+3}], s14 offen offset:{(idx&3)*1024} sc1")
                vm1.issue(("ST", 0))
                if (idx & 3) == 3: k.e("s_add_u32 s14, s14, 4096")
    g2_setup(k, vm1)
    n = vm1.need(lambda t: t[0] == "ST")
    k.e(f"s_waitcnt vmcnt({n})")
    k.e("s_barrier")
    k.e(f"s_lshl_b32 s52, s{S_RB}, 8")
    k.e(f"s_add_u32 s52, s52, {CNT_OFF}")
    signal(k, "slab", 52)
    stamp()
    g2_main(k, vm1, stamp)
    if prof:
        k.e("s_waitcnt vmcnt(0)")
        stamp()
        k.e(f"s_load_dwordx2 s[12:13], s[0:1], {KA_WS}")
        k.e("s_waitcnt lgkmcnt(0)")
        srd_off(k, 4, 12, 13, 64 << 20, 1 << 20)
        k.e(f"s_lshl_b32 s14, s2, 2")
        k.e(f"s_add_u32 s14, s14, s{S_W}")
        k.e(f"s_lshl_b32 s14, s14, 7")
        for i in range(nst[0]):
            k.e(f"v_mov_b32 v2, s{64+2*i}")
            k.e(f"v_mov_b32 v3, s{65+2*i}")
            k.e(f"v_mov_b32 v1, {8*i}")
            k.e(f"buffer_store_dwordx2 v[2:3], v1, s[4:7], s14 offen")
        tl_end(k, prof, kidx)
    k.lab("L_at_done")
    k.e("s_endpgm")
    for rid, p in rare_sites:
        k.lab(f"L_rare_{rid}")
        k.e(f"s_call_b64 s[{S_RET}:{S_RET+1}], L_raresub_{p}")
        k.e(f"s_branch L_back_{rid}")
    gen_rare(k, 0)
    gen_rare(k, 1)
    return k.text(), kernel_desc(name, 512, 102, 256), f"; @launch kernel={name} grid=(256,1,1) block=(256,1,1) lds=163840"
```

```python
from common import *
import k_main as M
from k_main import *
import math

S_MT2, S_NT2 = 10, 11
S_FLG = 51
SRD_DBG = 60
UCNT_OFF = CNT_OFF + 8192
POLL_MAX = 1 << 20

def poll(k, tag, off_sgpr, target):
    k(f"""
    s_mov_b32 s{S_FLG}, {POLL_MAX}
    v_mov_b32 v1, 0
    L_poll_{tag}:
    buffer_load_dword v4, v1, s[{SRD_DBG}:{SRD_DBG+3}], s{off_sgpr} offen sc1
    s_waitcnt vmcnt(0)
    v_readfirstlane_b32 s3, v4
    s_cmp_ge_u32 s3, {target}
    s_cbranch_scc1 L_polld_{tag}
    s_sleep 16
    s_sub_u32 s{S_FLG}, s{S_FLG}, 1
    s_cmp_lg_u32 s{S_FLG}, 0
    s_cbranch_scc1 L_poll_{tag}
    L_polld_{tag}:
    """)

def signal(k, tag, off_sgpr):
    k(f"""
    s_cmp_lg_u32 s{S_W}, 0
    s_cbranch_scc1 L_sig_{tag}
    v_mov_b32 v1, 0
    v_mov_b32 v4, 1
    v_cmp_eq_u32 vcc, 0, v0
    s_and_saveexec_b64 s[48:49], vcc
    buffer_atomic_add v4, v1, s[{SRD_DBG}:{SRD_DBG+3}], s{off_sgpr} offen
    s_mov_b64 exec, s[48:49]
    L_sig_{tag}:
    """)

def g1_phase(k, stamp, after_exchange):
    RS, NKS, NKST = 3584, 32, 128
    PF, NS, NB = 8, 10, 9
    ACC, AF, BF = 64, 128, 144
    vm = Ctr(63)
    k(f"""
    s_load_dwordx2 s[8:9], s[0:1], {KA_B1}
    v_lshrrev_b32 v3, 3, v0
    v_and_b32 v4, 7, v0
    v_lshrrev_b32 v5, 1, v3
    v_and_b32 v5, 1, v5
    v_lshlrev_b32 v5, 2, v5
    v_xor_b32 v4, v4, v5
    s_movk_i32 s49, {RS}
    v_mul_lo_u32 v3, v3, s49
    v_lshl_add_u32 v10, v4, 4, v3       ; voffA
    v_lshlrev_b32 v11, 4, v0            ; voffB
    v_lshrrev_b32 v3, 5, v0             ; hf
    v_bfe_u32 v4, v0, 4, 1
    v_bfe_u32 v5, v0, 2, 2
    v_and_b32 v6, 3, v0
    v_lshlrev_b32 v7, 3, v3
    v_add_u32 v7, v7, v5
    v_lshlrev_b32 v7, 7, v7
    v_lshl_add_u32 v7, v4, 5, v7
    v_lshl_add_u32 v7, v6, 3, v7
    s_mul_i32 s46, s{S_W}, {NS*2048}
    v_add_u32 v7, s46, v7
    v_lshrrev_b32 v8, 1, v5
    v_lshlrev_b32 v9, 6, v8
    v_add_u32 v12, v7, v9
    v_xor_b32 v9, 64, v9
    v_add_u32 v13, v7, v9
    v_lshlrev_b32 v14, 3, v3            ; hf*8
    s_mul_i32 s43, s{S_W}, {NKS*16*RS}
    s_lshl_b32 s49, s{S_MT}, 7
    s_add_u32 s43, s43, s49
    s_add_u32 s47, s43, {8*RS-1024}
    s_lshl_b32 s44, s{S_NT}, 1
    s_mul_i32 s44, s44, {NKST}
    s_mul_i32 s49, s{S_W}, {NKS}
    s_add_u32 s44, s44, s49
    s_lshl_b32 s44, s44, 10
    s_add_u32 s44, s44, {HF_OFF}
    s_add_u32 s45, s44, {NKST*1024}
    """)
    def issue(ks):
        slot = ks % NS
        k.e(f"s_add_u32 m0, s46, {slot*2048}")
        bs = BF + (ks % NB) * 8
        k.e(f"buffer_load_dwordx4 v[{bs}:{bs+3}], v11, s[{SRD_WS}:{SRD_WS+3}], s44 offen"); vm.issue(("B", ks))
        k.e(f"buffer_load_dwordx4 v10, s[{SRD_W1}:{SRD_W1+3}], s43 offen lds"); vm.issue(("A", ks))
        k.e(f"buffer_load_dwordx4 v10, s[{SRD_W1}:{SRD_W1+3}], s47 offen offset:1024 lds"); vm.issue(("A", ks))
        k.e(f"buffer_load_dwordx4 v[{bs+4}:{bs+7}], v11, s[{SRD_WS}:{SRD_WS+3}], s45 offen"); vm.issue(("B", ks))
        k.e(f"s_add_u32 s43, s43, {16*RS}")
        k.e(f"s_add_u32 s47, s47, {16*RS}")
        k.e(f"s_add_u32 s44, s44, 1024")
        k.e(f"s_add_u32 s45, s45, 1024")
    def tr(ks):
        slot = ks % NS
        out = []
        for mb in range(2):
            for bp in range(2):
                d = AF + (ks & 1) * 8 + mb * 4 + bp * 2
                out.append(f"ds_read_b64_tr_b16 v[{d}:{d+1}], v{12+mb} offset:{slot*2048 + bp*512}")
        return out
    for ks in range(PF):
        issue(ks)
    k(f"""
    s_lshr_b32 s48, s{S_W}, 1
    s_lshl_b32 s48, s48, 6
    s_lshl_b32 s49, s{S_MT}, 7
    s_add_u32 s48, s48, s49
    s_waitcnt lgkmcnt(0)
    s_mov_b32 s12, s8
    s_mov_b32 s13, s9
    s_mov_b32 s14, {1792*2}
    s_mov_b32 s15, 0x00020000
    """)
    for b in range(4):
        k.e(f"buffer_load_dwordx2 v[{20+2*b}:{21+2*b}], v14, s[12:15], s48 offen offset:{16*b}"); vm.issue(("E", 0))
    n = vm.need(lambda t: t == ("A", 0))
    k.e(f"s_waitcnt vmcnt({n})")
    stamp()
    for ins in tr(0): k.e(ins)
    for ks in range(NKS):
        n = vm.need(lambda t: (t[0] == "A" and t[1] <= ks + 1) or (t[0] == "B" and t[1] <= ks))
        k.e("s_waitcnt lgkmcnt(0)" if n is None else f"s_waitcnt vmcnt({n}) lgkmcnt(0)")
        bs = BF + (ks % NB) * 8
        fill = tr(ks + 1) if ks + 1 < NKS else []
        mf = []
        for mb in range(2):
            for nb in range(2):
                d = ACC + (mb * 2 + nb) * 16
                mf.append(mfma(d, AF + (ks & 1) * 8 + mb * 4, bs + nb * 4, "0" if ks == 0 else d, dfile='v', afile='v', bfile='v'))
        k.e(mf[0])
        for ins in fill[:2]: k.e(ins)
        k.e(mf[1])
        for ins in fill[2:]: k.e(ins)
        k.e(mf[2])
        if ks + PF < NKS:
            issue(ks + PF)
        k.e(mf[3])
    stamp()
    k.e("s_nop 7")
    k.e("s_barrier")
    k(f"""
    s_lshl_b32 s48, s{S_W}, 14
    v_add_u32 v3, s48, v11
    s_nop 4
    """)
    for blk in range(4):
        for q in range(4):
            r = ACC + blk * 16 + q * 4
            k.e(f"ds_write_b128 v3, v[{r}:{r+3}] offset:{blk*4096 + q*1024}")
    k(f"""
    s_lshl_b32 s48, s{S_W}, 12
    v_add_u32 v3, s48, v11
    s_waitcnt lgkmcnt(0)
    s_barrier
    """)
    for src in range(4):
        for q in range(4):
            r = ACC + src * 16 + q * 4
            k.e(f"ds_read_b128 v[{r}:{r+3}], v3 offset:{src*16384 + q*1024}")
    n = vm.need(lambda t: t[0] == "E")
    if n is not None: k.e(f"s_waitcnt vmcnt({n})")
    for b in range(4):
        k.e(f"v_lshlrev_b32 v{32+4*b}, 16, v{20+2*b}")
        k.e(f"v_and_b32 v{33+4*b}, 0xffff0000, v{20+2*b}")
        k.e(f"v_lshlrev_b32 v{34+4*b}, 16, v{21+2*b}")
        k.e(f"v_and_b32 v{35+4*b}, 0xffff0000, v{21+2*b}")
    k.e("s_waitcnt lgkmcnt(0)")
    k.e("s_barrier")
    after_exchange()

def g1_finish(k):
    Y = 64
    c1 = -2.0 * 0.7978845608028654 * LOG2E
    k.e(f"s_mov_b32 s12, {f2h(c1)}")
    k.e(f"s_mov_b32 s13, {f2h(c1*0.044715)}")
    k.e(f"v_mov_b32 v48, s12")
    for r in range(0, 16, 2):
        k.e(f"v_pk_add_f32 v[{Y+r}:{Y+r+1}], v[{Y+r}:{Y+r+1}], v[{Y+16+r}:{Y+17+r}]")
        k.e(f"v_pk_add_f32 v[{Y+32+r}:{Y+33+r}], v[{Y+32+r}:{Y+33+r}], v[{Y+48+r}:{Y+49+r}]")
    for r in range(0, 16, 2):
        k.e(f"v_pk_add_f32 v[{Y+r}:{Y+r+1}], v[{Y+r}:{Y+r+1}], v[{Y+32+r}:{Y+33+r}]")
    for r in range(0, 16, 2):
        k.e(f"v_pk_add_f32 v[{Y+r}:{Y+r+1}], v[{Y+r}:{Y+r+1}], v[{32+r}:{33+r}]")
    T = Y + 16
    for r in range(0, 16, 2):
        k.e(f"v_pk_mul_f32 v[{T+r}:{T+r+1}], v[{Y+r}:{Y+r+1}], v[{Y+r}:{Y+r+1}]")
    for r in range(16):
        k.e(f"v_fma_f32 v{T+r}, v{T+r}, s13, v48")
    for r in range(0, 16, 2):
        k.e(f"v_pk_mul_f32 v[{T+r}:{T+r+1}], v[{T+r}:{T+r+1}], v[{Y+r}:{Y+r+1}]")
    for r in range(16):
        k.e(f"v_exp_f32 v{T+r}, v{T+r}")
    for r in range(16):
        k.e(f"v_add_f32 v{T+r}, 1.0, v{T+r}")
    for r in range(16):
        k.e(f"v_rcp_f32 v{T+r}, v{T+r}")
    k.e("s_nop 0")
    for r in range(0, 16, 2):
        k.e(f"v_pk_mul_f32 v[{Y+r}:{Y+r+1}], v[{Y+r}:{Y+r+1}], v[{T+r}:{T+r+1}]")
    for r in range(0, 16, 2):
        k.e(f"v_cvt_pk_bf16_f32 v{52 + r//2}, v{Y+r}, v{Y+r+1}")
    k(f"""
    s_and_b32 s12, s{S_W}, 1
    s_lshl_b32 s13, s{S_NT}, 1
    s_add_u32 s12, s12, s13
    s_mul_i32 s12, s12, 112
    s_lshl_b32 s13, s{S_MT}, 2
    s_add_u32 s12, s12, s13
    s_lshr_b32 s13, s{S_W}, 1
    s_lshl_b32 s13, s13, 1
    s_add_u32 s12, s12, s13
    s_lshl_b32 s12, s12, 10
    s_add_u32 s12, s12, {UF_OFF}
    buffer_store_dwordx4 v[52:55], v11, s[{SRD_WS}:{SRD_WS+3}], s12 offen sc1
    buffer_store_dwordx4 v[56:59], v11, s[{SRD_WS}:{SRD_WS+3}], s12 offen offset:1024 sc1
    """)

G2_PF = 10
def g2_setup(k, vm):
    RS, NKS, NKST = 4096, 28, 112
    PF, NS, NB = G2_PF, G2_PF + 2, G2_PF + 1
    k(f"""
    s_load_dwordx2 s[8:9], s[0:1], {KA_B2}
    s_load_dwordx2 s[12:13], s[0:1], {KA_X}
    s_load_dwordx2 s[14:15], s[0:1], {KA_OUT}
    s_load_dwordx2 s[48:49], s[0:1], {KA_WS}
    v_lshrrev_b32 v3, 3, v0
    v_and_b32 v4, 7, v0
    v_lshrrev_b32 v5, 1, v3
    v_and_b32 v5, 1, v5
    v_lshlrev_b32 v5, 2, v5
    v_xor_b32 v4, v4, v5
    v_lshlrev_b32 v3, 12, v3
    v_lshl_add_u32 v10, v4, 4, v3       ; voffA
    v_lshlrev_b32 v11, 4, v0
    v_lshrrev_b32 v3, 5, v0             ; hf
    v_bfe_u32 v4, v0, 4, 1
    v_bfe_u32 v5, v0, 2, 2
    v_and_b32 v6, 3, v0
    v_lshlrev_b32 v7, 2, v3
    v_add_u32 v7, v7, v5
    v_lshlrev_b32 v7, 7, v7
    v_lshl_add_u32 v7, v4, 5, v7
    v_lshl_add_u32 v7, v6, 3, v7
    s_mul_i32 s46, s{S_W}, {NS*2048}
    v_add_u32 v7, s46, v7
    v_lshrrev_b32 v8, 1, v5
    v_lshlrev_b32 v9, 6, v8
    v_add_u32 v12, v7, v9
    v_xor_b32 v9, 64, v9
    v_add_u32 v13, v7, v9
    s_mul_i32 s43, s{S_W}, {NKS*16*RS}
    s_lshl_b32 s47, s{S_MT2}, 7
    s_add_u32 s43, s43, s47
    s_add_u32 s47, s43, {8*RS-1024}
    s_lshl_b32 s44, s{S_NT2}, 1
    s_mul_i32 s44, s44, {NKST}
    s_mul_i32 s45, s{S_W}, {NKS}
    s_add_u32 s44, s44, s45
    s_lshl_b32 s44, s44, 10
    s_add_u32 s44, s44, {UF_OFF}
    s_add_u32 s45, s44, {NKST*1024}
    v_and_b32 v14, 31, v0
    s_lshr_b32 s54, s{S_W}, 1
    s_lshl_b32 s54, s54, 5
    v_add_u32 v14, s54, v14             ; row
    v_lshlrev_b32 v15, 1, v14           ; b2 offset
    v_lshlrev_b32 v2, 10, v14
    v_lshl_add_u32 v2, v3, 4, v2
    s_and_b32 s54, s{S_W}, 1
    s_lshl_b32 s54, s54, 5
    v_add_u32 v2, s54, v2
    """)
    for ks in range(PF):
        g2_issue(k, vm, ks)
    k("s_waitcnt lgkmcnt(0)")
    srd(k, 16, 8, 9, 2048 * 2)
    srd(k, 20, 12, 13, 2097152)
    srd(k, 28, 14, 15, 2097152)
    srd_off(k, 32, 48, 49, SLAB_OFF, 16 << 20)
    k(f"""
    s_lshl_b32 s54, s{S_MT2}, 16
    s_lshl_b32 s55, s{S_NT2}, 7
    s_add_u32 s54, s54, s55
    s_lshl_b32 s55, s{S_MT2}, 7         ; b2 base
    s_lshl_b32 s53, s{S_MT2}, 16
    s_lshr_b32 s52, s{S_NT2}, 1
    s_lshl_b32 s52, s52, 14
    s_add_u32 s53, s53, s52
    s_and_b32 s52, s{S_NT2}, 1
    s_lshl_b32 s52, s52, 13
    s_add_u32 s53, s53, s52
    s_lshl_b32 s52, s{S_W}, 10
    s_add_u32 s53, s53, s52
    """)
    k.e("buffer_load_ushort v9, v15, s[16:19], s55 offen"); vm.issue(("E", 0))
    k.e(f"buffer_load_dwordx4 v[248:251], v2, s[20:23], s54 offen"); vm.issue(("E", 0))
    k.e(f"buffer_load_dwordx4 v[252:255], v2, s[20:23], s54 offen offset:64"); vm.issue(("E", 0))

def g2_issue(k, vm, ks):
    RS = 4096
    NS, NB = G2_PF + 2, G2_PF + 1
    slot = ks % NS
    k.e(f"s_add_u32 m0, s46, {slot*2048}")
    bs = 144 + (ks % NB) * 8
    k.e(f"buffer_load_dwordx4 v[{bs}:{bs+3}], v11, s[{SRD_WS}:{SRD_WS+3}], s44 offen sc1"); vm.issue(("B", ks))
    k.e(f"buffer_load_dwordx4 v10, s[{SRD_WQ}:{SRD_WQ+3}], s43 offen lds"); vm.issue(("A", ks))
    k.e(f"buffer_load_dwordx4 v10, s[{SRD_WQ}:{SRD_WQ+3}], s47 offen offset:1024 lds"); vm.issue(("A", ks))
    k.e(f"buffer_load_dwordx4 v[{bs+4}:{bs+7}], v11, s[{SRD_WS}:{SRD_WS+3}], s45 offen sc1"); vm.issue(("B", ks))
    k.e(f"s_add_u32 s43, s43, {16*RS}")
    k.e(f"s_add_u32 s47, s47, {16*RS}")
    k.e(f"s_add_u32 s44, s44, 1024")
    k.e(f"s_add_u32 s45, s45, 1024")

def g2_main(k, vm, stamp, POLL_KS=10, SIG_KS=5):
    NKS = 28
    PF, NS, NB = G2_PF, G2_PF + 2, G2_PF + 1
    ACC, AF, BF = 64, 128, 144
    SL = 0
    SUM = 232
    def tr(ks):
        slot = ks % NS
        out = []
        for mb in range(2):
            for bp in range(2):
                d = AF + (ks & 1) * 8 + mb * 4 + bp * 2
                out.append(f"ds_read_b64_tr_b16 v[{d}:{d+1}], v{12+mb} offset:{slot*2048 + bp*1024}")
        return out
    n = vm.need(lambda t: t == ("A", 0))
    k.e(f"s_waitcnt vmcnt({n})")
    for ins in tr(0): k.e(ins)
    si = 0
    for ks in range(NKS):
        n = vm.need(lambda t: (t[0] == "A" and t[1] <= ks + 1) or (t[0] == "B" and t[1] <= ks))
        k.e("s_waitcnt lgkmcnt(0)" if n is None else f"s_waitcnt vmcnt({n}) lgkmcnt(0)")
        bs = BF + (ks % NB) * 8
        fill = tr(ks + 1) if ks + 1 < NKS else []
        mf = []
        for mb in range(2):
            for nb in range(2):
                a = AF + (ks & 1) * 8 + mb * 4
                b = bs + nb * 4
                d = ACC + (mb * 2 + nb) * 16
                c = "0" if ks == 0 else f"v[{d}:{d+15}]"
                mf.append(f"v_mfma_f32_32x32x16_bf16 v[{d}:{d+15}], v[{b}:{b+3}], v[{a}:{a+3}], {c}")
        k.e(mf[0])
        for ins in fill[:2]: k.e(ins)
        k.e(mf[1])
        for ins in fill[2:]: k.e(ins)
        k.e(mf[2])
        if ks + PF < NKS:
            g2_issue(k, vm, ks + PF)
        if ks == SIG_KS:
            n = vm.need(lambda t: t[0] == "ST")
            if n is not None: k.e(f"s_waitcnt vmcnt({n})")
            k.e("s_barrier")
            k.e(f"s_lshl_b32 s52, s{S_RB}, 8")
            k.e(f"s_add_u32 s52, s52, {CNT_OFF}")
            signal(k, "slab", 52)
        if ks == POLL_KS:
            k.e(f"s_lshl_b32 s52, s{S_MT2}, 8")
            k.e(f"s_add_u32 s52, s52, {CNT_OFF}")
            k.e(f"s_cmp_lg_u32 s{S_W}, 0")
            k.e("s_cbranch_scc1 L_slab_nopoll")
            poll(k, "slab", 52, 8)
            k.lab("L_slab_nopoll")
            k.e("s_barrier")
        if ks >= POLL_KS and si < 16:
            for rep in range(1 if ks < 26 else 2):
                if si < 16:
                    g, p = si >> 1, si & 1
                    k.e(f"s_add_u32 s52, s53, {g*2097152 + p*4096}")
                    k.e(f"buffer_load_dwordx4 a[{si*4}:{si*4+3}], v11, s[32:35], s52 offen sc1"); vm.issue(("S", si))
                    si += 1
        k.e(mf[3])
    assert si == 16
    stamp()
    PS = 64 * 272
    k(f"""
    v_and_b32 v3, 31, v0
    s_movk_i32 s52, 272
    v_mul_lo_u32 v3, v3, s52
    v_lshrrev_b32 v4, 5, v0
    v_lshl_add_u32 v3, v4, 4, v3
    s_mul_i32 s55, s{S_W}, {PS}
    v_add_u32 v3, s55, v3
    v_mul_lo_u32 v8, v14, s52
    v_lshl_add_u32 v8, v4, 5, v8
    s_and_b32 s52, s{S_W}, 1
    s_lshl_b32 s52, s52, 6
    v_add_u32 v8, s52, v8
    s_barrier
    """)
    for mb in range(2):
        for nb in range(2):
            for b in range(4):
                r = ACC + (mb * 2 + nb) * 16 + b * 4
                k.e(f"ds_write_b128 v3, v[{r}:{r+3}] offset:{mb*32*272 + nb*128 + b*32}")
    k(f"""
    s_waitcnt lgkmcnt(0)
    s_barrier
    """)
    for p in range(2):
        for src in range(4):
            r = ACC + p * 32 + src * 8
            k.e(f"ds_read_b128 v[{r}:{r+3}], v8 offset:{src*PS + p*128}")
            k.e(f"ds_read_b128 v[{r+4}:{r+7}], v8 offset:{src*PS + p*128 + 16}")
    for i in range(16):
        g, p = i >> 1, i & 1
        n = vm.need(lambda t: t[0] == "S" and t[1] <= i)
        if n is not None: k.e(f"s_waitcnt vmcnt({n})")
        for j in range(4):
            k.e(f"v_accvgpr_read_b32 v{20+j}, a{i*4+j}")
        for j in range(4):
            if g == 0:
                k.e(f"v_lshlrev_b32 v{SUM+p*8+2*j}, 16, v{20+j}")
                k.e(f"v_and_b32 v{SUM+p*8+2*j+1}, 0xffff0000, v{20+j}")
            else:
                k.e(f"v_lshlrev_b32 v{24+2*j}, 16, v{20+j}")
                k.e(f"v_and_b32 v{25+2*j}, 0xffff0000, v{20+j}")
        if g > 0:
            for j in range(4):
                k.e(f"v_pk_add_f32 v[{SUM+p*8+2*j}:{SUM+p*8+2*j+1}], v[{SUM+p*8+2*j}:{SUM+p*8+2*j+1}], v[{24+2*j}:{25+2*j}]")
    for p in range(2):
        for j in range(4):
            k.e(f"v_lshlrev_b32 v{128+p*8+2*j}, 16, v{248+p*4+j}")
            k.e(f"v_and_b32 v{129+p*8+2*j}, 0xffff0000, v{248+p*4+j}")
    k.e("v_lshlrev_b32 v18, 16, v9")
    k.e("v_mov_b32 v19, v18")
    k.e(f"s_mov_b32 s48, {f2h(-LOG2E)}")
    k.e(f"s_mov_b32 s49, {f2h(-LOG2E)}")
    k.e("s_waitcnt lgkmcnt(0)")
    for p in range(2):
        Y = ACC + p * 32
        for i in range(0, 8, 2):
            k.e(f"v_pk_add_f32 v[{Y+i}:{Y+i+1}], v[{Y+i}:{Y+i+1}], v[{Y+8+i}:{Y+9+i}]")
            k.e(f"v_pk_add_f32 v[{Y+16+i}:{Y+17+i}], v[{Y+16+i}:{Y+17+i}], v[{Y+24+i}:{Y+25+i}]")
        for i in range(0, 8, 2):
            k.e(f"v_pk_add_f32 v[{Y+i}:{Y+i+1}], v[{Y+i}:{Y+i+1}], v[{Y+16+i}:{Y+17+i}]")
        for i in range(0, 8, 2):
            k.e(f"v_pk_add_f32 v[{Y+i}:{Y+i+1}], v[{Y+i}:{Y+i+1}], v[18:19]")
    for p in range(2):
        Y = ACC + p * 32; T = Y + 8
        for i in range(0, 8, 2):
            k.e(f"v_pk_mul_f32 v[{T+i}:{T+i+1}], v[{Y+i}:{Y+i+1}], s[48:49]")
    for p in range(2):
        T = ACC + p * 32 + 8
        for i in range(8): k.e(f"v_exp_f32 v{T+i}, v{T+i}")
    for p in range(2):
        T = ACC + p * 32 + 8
        for i in range(8): k.e(f"v_add_f32 v{T+i}, 1.0, v{T+i}")
    for p in range(2):
        T = ACC + p * 32 + 8
        for i in range(8): k.e(f"v_rcp_f32 v{T+i}, v{T+i}")
    k.e("s_nop 0")
    for p in range(2):
        Y = ACC + p * 32; T = Y + 8
        for i in range(0, 8, 2):
            k.e(f"v_pk_mul_f32 v[{Y+i}:{Y+i+1}], v[{Y+i}:{Y+i+1}], v[{T+i}:{T+i+1}]")
    for p in range(2):
        Y = ACC + p * 32
        for i in range(0, 8, 2):
            k.e(f"v_pk_fma_f32 v[{Y+i}:{Y+i+1}], v[{Y+i}:{Y+i+1}], v[{SUM+p*8+i}:{SUM+p*8+i+1}], v[{128+p*8+i}:{129+p*8+i}]")
    for p in range(2):
        Y = ACC + p * 32
        for i in range(0, 8, 2):
            k.e(f"v_cvt_pk_bf16_f32 v{40+p*4+i//2}, v{Y+i}, v{Y+i+1}")
        k.e(f"buffer_store_dwordx4 v[{40+p*4}:{43+p*4}], v2, s[28:31], s54 offen offset:{64*p}")

XSRC = 239
UFL = 252

def gen_m4(name="main_kernel", debug=None, prof=False, l2pf=True, kidx=1, sched2=True):
    k = Em()
    M.SCHED2 = sched2
    M.PRE_HOOK = lambda kk: poll(kk, 'u', 14, 28)
    nst = [0]
    def stamp():
        if not prof: return
        i = nst[0]; nst[0] += 1
        k.e(f"s_memtime s[{64+2*i}:{65+2*i}]")
        k.e(f"s_memrealtime s[100:101]")
        k.e("s_waitcnt lgkmcnt(0)")
        k.e(f"s_mov_b32 s{65+2*i}, s100")
    k.L.append(kernel_header(name))
    cscale = math.log2(math.e) / math.sqrt(128.0)
    tl_begin(k, prof)
    k(f"""
    s_cmp_ge_u32 s2, 256
    s_cbranch_scc1 L_at_done
    s_load_dwordx2 s[4:5], s[0:1], {KA_K}
    s_load_dwordx2 s[6:7], s[0:1], {KA_V}
    s_load_dwordx2 s[8:9], s[0:1], {KA_WQ}
    s_load_dwordx2 s[10:11], s[0:1], {KA_WO}
    s_load_dwordx2 s[12:13], s[0:1], {KA_WS}
    v_lshrrev_b32 v1, 6, v0
    v_and_b32 v0, 63, v0
    s_and_b32 s{S_G}, s2, 7
    v_readfirstlane_b32 s{S_W}, v1
    s_lshr_b32 s{S_RB}, s2, 3
    s_lshl_b32 s14, s{S_G}, 19          ; g*524288
    s_lshl_b32 s15, s{S_RB}, 16         ; rb*65536
    s_lshl_b32 s3, s{S_G}, 21           ; g*2MB
    s_add_u32 s3, s3, {SLAB_OFF}
    s_waitcnt lgkmcnt(0)
    """)
    stamp()
    srd_off(k, SRD_K, 4, 5, "s14", 524288)
    srd_off(k, SRD_V, 6, 7, "s14", 524288)
    srd(k, SRD_WQ, 8, 9, 4194304)
    srd(k, SRD_WO, 10, 11, 4194304)
    srd_off(k, SRD_X, 12, 13, "s15", 65536)
    srd_off(k, SRD_SL, 12, 13, "s3", 2097152)
    srd(k, SRD_WS, 12, 13, 8 << 20)
    k(f"""
    s_load_dwordx2 s[12:13], s[0:1], {KA_W1}
    s_and_b32 s{S_NT}, s{S_G}, 1
    s_lshl_b32 s{S_NT}, s{S_NT}, 2
    s_and_b32 s3, s{S_RB}, 3
    s_add_u32 s{S_NT}, s{S_NT}, s3
    s_mov_b32 s{S_NT2}, s{S_NT}
    s_lshr_b32 s{S_MT}, s{S_G}, 1
    s_lshl_b32 s{S_MT2}, s{S_MT}, 3
    s_mul_i32 s{S_MT}, s{S_MT}, 7
    s_lshr_b32 s3, s{S_RB}, 2
    s_add_u32 s{S_MT}, s{S_MT}, s3
    s_add_u32 s{S_MT2}, s{S_MT2}, s3
    s_waitcnt lgkmcnt(0)
    """)
    srd(k, SRD_W1, 12, 13, 2048 * 3584)
    if l2pf:
        k(f"""
        s_lshl_b32 s14, s{S_W}, 6
        v_add_u32 v1, s14, v0               ; tid
        v_lshrrev_b32 v2, 4, v1
        v_and_b32 v3, 15, v1
        v_lshlrev_b32 v2, 13, v2
        v_lshl_add_u32 v250, v3, 6, v2
        s_lshl_b32 s14, s{S_RB}, 17         ; rb*16*8192
        s_lshl_b32 s15, s{S_G}, 10
        s_add_u32 s14, s14, s15
        buffer_load_dword v246, v250, s[{SRD_WQ}:{SRD_WQ+3}], s14 offen
        v_lshlrev_b32 v251, 6, v1           ; tid*64
        """)
    k(f"""
    v_lshrrev_b32 v1, 4, v0             ; l>>4 (0..3)
    v_and_b32 v2, 15, v0                ; p = l&15
    ; DV: (l>>4)*256 + ((p ^ ((l>>4)<<2))*16)
    v_lshlrev_b32 v3, 2, v1
    v_xor_b32 v3, v2, v3
    v_lshlrev_b32 v3, 4, v3
    v_lshl_add_u32 v{DV}, v1, 8, v3
    v_lshl_add_u32 v{DW}, v1, 13, v3
    """)
    for i in range(4):
        k(f"""
        v_add_u32 v4, {4*i}, v1
        v_xor_b32 v4, v2, v4
        v_lshlrev_b32 v4, 4, v4
        v_lshl_add_u32 v{DK+i}, v1, 8, v4
        """)
    k(f"""
    v_and_b32 v4, 31, v0
    v_lshrrev_b32 v5, 5, v0             ; hf
    v_xor_b32 v6, v5, v2
    v_lshlrev_b32 v7, 8, v4
    """)
    for t in range(8):
        k.e(f"v_xor_b32 v8, {2*t}, v6")
        k.e(f"v_lshl_add_u32 v{KA+t}, v8, 4, v7")
    k(f"""
    v_bfe_u32 v8, v0, 2, 2              ; r
    v_bfe_u32 v9, v0, 4, 1              ; csub
    v_and_b32 v10, 3, v0                ; c
    v_lshl_add_u32 v11, v5, 2, v8       ; 4hf + r
    v_lshlrev_b32 v11, 8, v11
    v_lshl_add_u32 v11, v9, 5, v11
    v_lshl_add_u32 v12, v10, 3, v11
    """)
    for db in range(4):
        k.e(f"v_xor_b32 v13, {db}, v8")
        k.e(f"v_lshl_add_u32 v13, v13, 6, v12")
        k.e(f"v_add_u32 v{VA+db}, {VRING}, v13")
    k(f"""
    s_and_b32 s14, s{S_W}, 1
    s_lshl_b32 s14, s14, 14
    s_lshr_b32 s15, s{S_W}, 1
    s_mul_i32 s15, s15, {131072-32768}
    s_add_u32 s{S_WRING}, s14, s15
    s_add_u32 s{S_WRING}, s{S_WRING}, 32768
    v_lshl_add_u32 v11, v5, 3, v8
    v_lshlrev_b32 v11, 8, v11
    v_lshl_add_u32 v11, v9, 5, v11
    v_and_b32 v13, 1, v10
    v_lshrrev_b32 v14, 1, v10
    v_lshl_or_b32 v13, v13, 1, v14      ; sigma(c)
    v_lshl_add_u32 v11, v13, 3, v11
    v_add_u32 v11, s{S_WRING}, v11
    """)
    for db in range(4):
        k.e(f"v_xor_b32 v13, {db}, v8")
        k.e(f"v_lshl_add_u32 v{WA+db}, v13, 6, v11")
    k(f"""
    v_lshlrev_b32 v15, 4, v0            ; lane*16
    v_add_u32 v{XA}, {XT}, v15
    v_mov_b32 v{XSRC}, v15
    """)
    xg = []
    for i in range(16):
        xg.append([f"s_lshl_b32 s3, s{S_W}, 14",
                   f"s_add_u32 s3, s3, {i*1024}",
                   f"s_add_u32 m0, s3, {XT}",
                   "s_nop 0",
                   f"buffer_load_dwordx4 v{XSRC}, s[{SRD_X}:{SRD_X+3}], s3 offen lds"])
    for grp in xg:
        for ins in grp: k.e(ins)
    k(f"""
    s_and_b32 s14, s{S_W}, 1
    s_lshl_b32 s14, s14, 14
    s_lshr_b32 s15, s{S_W}, 1
    s_mul_i32 s15, s15, {131072-32768}
    s_add_u32 s{S_WRING}, s14, s15
    s_add_u32 s{S_WRING}, s{S_WRING}, 32768
    """)
    k(f"""
    s_lshl_b32 s14, s{S_G}, 2
    s_add_u32 s14, s14, s{S_W}
    s_lshl_b32 s{S_WOFF}, s14, 8
    """)
    def wdma(t, srd, RS):
        out = [f"s_add_u32 m0, s{S_WRING}, {(t&3)*4096}"]
        for i in range(4):
            if i == 0:
                out.append("s_nop 0")
                out.append(f"buffer_load_dwordx4 v{DW}, s[{srd}:{srd+3}], s{S_WOFF} offen lds")
            else:
                out.append(f"s_add_u32 s{S_WOFF}, s{S_WOFF}, {4*RS-1024}")
                out.append(f"buffer_load_dwordx4 v{DW}, s[{srd}:{srd+3}], s{S_WOFF} offen offset:{1024*i} lds")
        out.append(f"s_add_u32 s{S_WOFF}, s{S_WOFF}, {4*RS+3072}")
        return out
    k(f"""
    s_lshl_b32 s{S_KOFF}, s{S_W}, 12          ; w*4096
    s_mov_b32 s{S_M0K}, s{S_KOFF}
    s_add_u32 s{S_M0V}, s{S_KOFF}, {VRING}
    s_mov_b32 s{S_VOFF}, s{S_KOFF}
    """)
    def kdma(slot):
        out = [f"s_add_u32 m0, s{S_M0K}, {slot*16384}", "s_nop 0"]
        for i in range(4):
            out.append(f"buffer_load_dwordx4 v{DK+i}, s[{SRD_K}:{SRD_K+3}], s{S_KOFF} offen offset:{1024*i} {POL()} lds")
        out.append(f"s_add_u32 s{S_KOFF}, s{S_KOFF}, 16384")
        return out
    def vdma(slot):
        out = [f"s_add_u32 m0, s{S_M0V}, {slot*16384}", "s_nop 0"]
        for i in range(4):
            out.append(f"buffer_load_dwordx4 v{DV}, s[{SRD_V}:{SRD_V+3}], s{S_VOFF} offen offset:{1024*i} {POL()} lds")
        out.append(f"s_add_u32 s{S_VOFF}, s{S_VOFF}, 16384")
        return out
    for ins in kdma(0) + kdma(1): k.e(ins)
    for t in range(4):
        for ins in wdma(t, SRD_WQ, 8192): k.e(ins)
    k.e("s_waitcnt vmcnt(16)")
    k.e("s_barrier")
    stamp()
    late = []
    gen_proj(k, "q", SRD_WQ, 8192, True, True, late)
    stamp()
    k(f"""
    s_waitcnt vmcnt(0) lgkmcnt(0)
    s_barrier
    """)
    for ins in vdma(0) + kdma(2) + vdma(1): k.e(ins)
    k.e(f"s_load_dwordx2 s[8:9], s[0:1], {KA_W2}")
    k(f"""
    s_lshl_b32 s14, s{S_W}, 6
    v_add_u32 v1, s14, v0                       ; tid
    v_lshrrev_b32 v2, 1, v1
    v_and_b32 v3, 1, v1
    v_lshlrev_b32 v4, 12, v2
    v_lshl_add_u32 v253, v3, 6, v4
    s_movk_i32 s14, 3584
    v_mul_lo_u32 v2, v2, s14
    v_lshl_add_u32 v250, v3, 6, v2
    s_waitcnt lgkmcnt(0)
    """)
    srd(k, SRD_WQ, 8, 9, 1792 * 4096)
    k.e(f"s_mov_b32 s14, {f2h(cscale)}")
    k.e(f"s_mov_b32 s15, {f2h(cscale)}")
    k.e("s_nop 7")
    for db in range(4):
        for qb in range(2):
            a = PACC + (db * 2 + qb) * 16
            for r in range(0, 16, 2):
                k.e(f"v_pk_mul_f32 v[{a+r}:{a+r+1}], v[{a+r}:{a+r+1}], s[14:15]")
            for r in range(0, 16, 2):
                q = QF + qb * 32 + (2 * db + (r >> 3)) * 4 + ((r & 7) >> 1)
                k.e(f"v_cvt_pk_bf16_f32 v{q}, v{a+r}, v{a+r+1}")
    if debug == "q":
        k(f"""
        s_lshl_b32 s14, s{S_RB}, 2
        s_add_u32 s14, s14, s{S_W}
        s_mul_i32 s14, s14, 16384
        v_lshlrev_b32 v1, 2, v0
        """)
        for i in range(64):
            k.e(f"buffer_store_dword v{QF+i}, v1, s[{SRD_SL}:{SRD_SL+3}], s14 offen offset:{(i&15)*256}")
            if (i & 15) == 15: k.e("s_add_u32 s14, s14, 4096")
        k.e("s_waitcnt vmcnt(0)")
        k.e("s_endpgm")
    for t in range(4):
        for ins in k_read(0, t, t): k.e(ins)
    for t in range(8):
        k.e(f"s_waitcnt lgkmcnt({min(3, 7-t)})")
        for qb in range(2):
            d = Sbuf(0, qb)
            k.e(mfma(d, KF + (t & 3) * 4, QF + qb * 32 + t * 4, "0" if t == 0 else d))
        if t + 4 < 8:
            for ins in k_read(0, t + 4, t + 4): k.e(ins)
    for i in range(128):
        k.e(f"v_accvgpr_write_b32 a{OA+i}, 0")
    k.e(f"v_mov_b32 v{LL}, 0")
    k.e(f"v_mov_b32 v{LL+1}, 0")
    k.e(f"v_mov_b32 v{LS+2}, 0")
    k.e(f"v_mov_b32 v{LS+3}, 0")
    k.e(f"s_mov_b32 s{S_THR}, {f2h(2.0**THR_LOG2)}")
    for qb in range(2):
        S = Sbuf(0, qb)
        t, t2 = T0, T0 + 1
        k.e(f"v_max3_f32 v{t}, v{S}, v{S+1}, v{S+2}")
        for r in range(3, 15, 2):
            k.e(f"v_max3_f32 v{t}, v{t}, v{S+r}, v{S+r+1}")
        k.e(f"v_max_f32 v{t}, v{t}, v{S+15}")
        k.e(f"v_mov_b32 v{t2}, v{t}")
        k.e("s_nop 1")
        k.e(f"v_permlane32_swap_b32 v{t2}, v{t}")
        k.e(f"v_max_f32 v{t}, v{t}, v{t2}")
        for r in range(16):
            k.e(f"v_sub_f32 v{S+r}, v{S+r}, v{t}")
            k.e(f"v_sub_f32 v{NEGM+16*qb+r}, 0, v{t}")
    if M.SCHED2:
        k.e(f"v_exp_f32 v{ET}, v{Sbuf(0,0)}")
        k.e(f"v_exp_f32 v{ET+1}, v{Sbuf(0,0)+1}")
    k.e("s_waitcnt vmcnt(8)")
    k.e("s_barrier")
    stamp()
    for ins in k_read(1, 0, 0) + k_read(1, 1, 1): k.e(ins)
    rare_sites = []
    def dma_plan(lst):
        return {8: [lst[0]], 11: [lst[2]], 15: [lst[3]], 19: [lst[4]], 23: [lst[5]], 27: [lst[6]]}
    def step(u, rid, **kw):
        S = dict(do_qk=True, do_pv=True, qk_next=True, pv_next=True, dma=None, pre=None, prev7=3)
        S.update(kw)
        lk = Look(u, S['do_qk'], S['do_pv'], S['qk_next'], S['pv_next'])
        lk.prev7 = S['prev7']
        gen_step(k, u, S['do_qk'], S['do_pv'], True, lk, S['dma'], S['pre'], rid)
        rare_sites.append((rid, u & 1))
    d0 = dma_plan(kdma(3))
    d0[29] = [f"s_lshl_b32 s14, s{S_RB}, 14", f"s_lshl_b32 s15, s{S_G}, 19", "s_add_u32 s14, s14, s15",
              f"buffer_load_dword v249, v251, s[{SRD_WO}:{SRD_WO+3}], s14 offen"]
    step(0, "s0", do_pv=False, dma=d0, prev7=1)
    k.e(f"s_mov_b32 s{S_CNT}, 7")
    k.lab("L_main")
    for uu in range(1, 9):
        j = uu >> 1
        pre = None
        if uu & 1 == 0:
            pre = ["s_waitcnt vmcnt(8)", "s_barrier"]
            dm = dma_plan(kdma((j + 3) & 3))
        else:
            dm = dma_plan(vdma((j + 2) & 3))
        step(uu, f"m{uu}", dma=dm, pre=pre)
    k.e(f"s_sub_u32 s{S_CNT}, s{S_CNT}, 1")
    k.e(f"s_cmp_lg_u32 s{S_CNT}, 0")
    k.e(f"s_cbranch_scc1 L_main")
    def ta(i):
        return [f"s_and_b32 s14, s{S_RB}, 3", f"s_mul_i32 s14, s14, {512*3584}", f"s_lshl_b32 s15, s{S_MT}, 7",
                f"s_add_u32 s14, s14, s15", f"s_add_u32 s14, s14, {i*128*3584}",
                f"buffer_load_dword v{246+(i&1)}, v250, s[{SRD_W1}:{SRD_W1+3}], s14 offen"]
    def tb(i):
        return [f"s_lshl_b32 s14, s{S_NT}, 18", f"s_lshr_b32 s15, s{S_RB}, 2", f"s_and_b32 s15, s15, 3", f"s_lshl_b32 s15, s15, 16",
                f"s_add_u32 s14, s14, s15", f"s_add_u32 s14, s14, {HF_OFF + i*16384}",
                f"buffer_load_dword v{248+(i&1)}, v251, s[{SRD_WS}:{SRD_WS+3}], s14 offen"]
    def merge(d, g, lst):
        d = dict(d) if d else {}
        d[g] = d.get(g, []) + lst
        return d
    step(57, "t57", dma=merge(merge(dma_plan(vdma((28 + 2) & 3)), 29, ta(0)), 30, tb(0)))
    step(58, "t58", pre=["s_waitcnt vmcnt(10)", "s_barrier"], dma=merge(merge(merge(merge(None, 3, ta(1)), 11, tb(1)), 19, ta(2)), 27, tb(2)))
    step(59, "t59", dma=merge(merge(dma_plan(vdma((29 + 2) & 3)), 29, ta(3)), 30, tb(3)))
    step(60, "t60", pre=["s_waitcnt vmcnt(10)", "s_barrier"])
    step(61, "t61")
    step(62, "t62", pre=["s_waitcnt vmcnt(2)", "s_barrier"], qk_next=False)
    step(63, "t63", do_qk=False, qk_next=False, prev7=2)
    p = 63 & 1
    k.e(f"v_add_f32 v{LL}, v{LL}, v{LS+2*p}")
    k.e(f"v_add_f32 v{LL+1}, v{LL+1}, v{LS+2*p+1}")
    for i in range(8):
        nxt = v_read(63, i + 2, i + 2) if i + 2 < 8 else []
        prevn = 2 if (i == 0 or i + 1 < 8) else 0
        k.e(f"s_waitcnt lgkmcnt({prevn})")
        db, ks = i >> 1, i & 1
        for qb in range(2):
            d = OA + (db * 2 + qb) * 16
            k.e(mfma(d, VF + (i & 3) * 4, Pbuf(p, qb, ks), d, dfile='a'))
            if qb == 0:
                for ins in nxt: k.e(ins)
    k.e("s_waitcnt lgkmcnt(0)")
    stamp()
    k(f"""
    s_waitcnt lgkmcnt(0)
    s_barrier
    """)
    def wo_ring():
        k(f"""
        s_lshl_b32 s{S_WRING}, s{S_W}, 14
        v_lshrrev_b32 v1, 4, v0
        v_mul_u32_u24 v1, {1024-256}, v1
        v_add_u32 v{DW}, v{DV}, v1
        s_lshl_b32 s{S_WOFF}, s{S_G}, 19
        s_lshl_b32 s14, s{S_W}, 8
        s_add_u32 s{S_WOFF}, s{S_WOFF}, s14
        """)
        for t in range(4):
            for ins in wdma(t, SRD_WO, 1024): k.e(ins)
    k.e(f"s_cmp_ge_u32 s{S_RB}, 28")
    k.e("s_cbranch_scc1 L_no_g1")
    g1_phase(k, stamp, wo_ring)
    g1_finish(k)
    k.e("s_branch L_g1_done")
    k.lab("L_no_g1")
    wo_ring()
    nst[0] -= 2
    stamp(); stamp()
    k.lab("L_g1_done")
    k.e(f"s_sub_u32 s14, s{S_WRING}, {VRING}")
    for db in range(4):
        k.e(f"v_add_u32 v{WA+db}, s14, v{VA+db}")
    for qb in range(2):
        k.e(f"v_mov_b32 v{T0+qb}, v{LL+qb}")
    k.e("s_nop 1")
    for qb in range(2):
        k.e(f"v_permlane32_swap_b32 v{T0+qb}, v{LL+qb}")
    for qb in range(2):
        k.e(f"v_add_f32 v{LL+qb}, v{LL+qb}, v{T0+qb}")
    for qb in range(2):
        k.e(f"v_rcp_f32 v{LL+qb}, v{LL+qb}")
    k(f"""
    s_lshl_b32 s14, s{S_W}, 14
    s_add_u32 s14, s14, {XT}
    v_lshlrev_b32 v15, 4, v0
    v_add_u32 v14, s14, v15
    v_add_u32 v{XA}, {XT}, v15
    """)
    for db in range(4):
        for qb in range(2):
            for ks in range(2):
                tb = S0 + ((db * 4 + qb * 2 + ks) & 3) * 16
                for r in range(8):
                    k.e(f"v_accvgpr_read_b32 v{tb+r}, a{OA+(db*2+qb)*16+ks*8+r}")
                for r in range(8):
                    k.e(f"v_mul_f32 v{tb+r}, v{tb+r}, v{LL+qb}")
                for r in range(0, 8, 2):
                    k.e(f"v_cvt_pk_bf16_f32 v{tb+8+r//2}, v{tb+r}, v{tb+r+1}")
                k.e(f"ds_write_b128 v14, v[{tb+8}:{tb+11}] offset:{(2*db+ks)*2048 + qb*1024}")
    if debug == "o":
        k("""
        s_waitcnt vmcnt(0) lgkmcnt(0)
        s_barrier
        """)
        k(f"""
        s_lshl_b32 s14, s{S_RB}, 16
        s_lshl_b32 s15, s{S_W}, 14
        s_add_u32 s14, s14, s15
        v_add_u32 v13, s15, v{XA}
        """)
        for i in range(16):
            k.e(f"ds_read_b128 v[16:19], v13 offset:{i*1024}")
            k.e("s_waitcnt lgkmcnt(0)")
            k.e(f"buffer_store_dwordx4 v[16:19], v15, s[{SRD_SL}:{SRD_SL+3}], s14 offen")
            k.e("s_add_u32 s14, s14, 1024")
            k.e("s_waitcnt vmcnt(0)")
        k.e("s_endpgm")
    k("""
    s_waitcnt vmcnt(0) lgkmcnt(0)
    s_barrier
    """)
    k.e(f"s_cmp_ge_u32 s{S_RB}, 28")
    k.e("s_cbranch_scc1 L_no_usig")
    k.e(f"s_lshl_b32 s14, s{S_NT}, 8")
    k.e(f"s_add_u32 s14, s14, {UCNT_OFF}")
    k.e(f"s_mov_b32 s15, s{S_WRING}")
    signal(k, "u", 14)
    k.e(f"s_mov_b32 s{S_WRING}, s15")
    k.lab("L_no_usig")
    stamp()
    def tw(i):
        return [f"s_and_b32 s14, s{S_RB}, 3", f"s_mul_i32 s14, s14, {448*4096}", f"s_lshl_b32 s15, s{S_MT2}, 7",
                f"s_add_u32 s14, s14, s15", f"s_add_u32 s14, s14, {i*128*4096}",
                f"buffer_load_dword v{246+(i&1)}, v253, s[{SRD_WQ}:{SRD_WQ+3}], s14 offen"]
    ufl = [f"s_lshl_b32 s14, s{S_NT2}, 8", f"s_add_u32 s14, s14, {UCNT_OFF}", f"v_mov_b32 v{UFL}, 0",
           f"buffer_load_dword v{UFL}, v{UFL}, s[{SRD_DBG}:{SRD_DBG+3}], s14 offen sc1"]
    gen_proj(k, "o", SRD_WO, 1024, False, True, ufl + tw(0) + tw(1) + tw(2) + tw(3))
    stamp()
    vm1 = Ctr(63)
    k.e("s_waitcnt vmcnt(4) lgkmcnt(0)")
    k.e(f"v_readfirstlane_b32 s14, v{UFL}")
    k.e("s_cmp_ge_u32 s14, 28")
    k.e("s_cbranch_scc1 L_u_nopoll")
    k.e(f"s_cmp_lg_u32 s{S_W}, 0")
    k.e("s_cbranch_scc1 L_u_nopoll")
    k.e(f"s_lshl_b32 s14, s{S_NT2}, 8")
    k.e(f"s_add_u32 s14, s14, {UCNT_OFF}")
    poll(k, "u", 14, 28)
    k.lab("L_u_nopoll")
    k.e("s_barrier")
    g2_setup(k, vm1)
    k(f"""
    v_lshlrev_b32 v1, 4, v0
    s_lshl_b32 s14, s{S_RB}, 16          ; rb*65536
    s_lshl_b32 s15, s{S_W}, 14           ; w*16384
    s_add_u32 s14, s14, s15
    """)
    for cb in range(4):
        for qb in range(2):
            a = PACC + (cb * 2 + qb) * 16
            o = a
            for r in range(0, 16, 2):
                k.e(f"v_cvt_pk_bf16_f32 v{o+r//2}, v{a+r}, v{a+r+1}")
            k.e("s_nop 1")
            for pr in range(2):
                k.e(f"v_permlane32_swap_b32 v{o+4*pr}, v{o+4*pr+2}")
                k.e(f"v_permlane32_swap_b32 v{o+4*pr+1}, v{o+4*pr+3}")
            for pr in range(2):
                idx = cb * 4 + qb * 2 + pr
                k.e(f"buffer_store_dwordx4 v[{o+4*pr}:{o+4*pr+3}], v1, s[{SRD_SL}:{SRD_SL+3}], s14 offen offset:{(idx&3)*1024} sc1")
                vm1.issue(("ST", 0))
                if (idx & 3) == 3: k.e("s_add_u32 s14, s14, 4096")
    stamp()
    g2_main(k, vm1, stamp)
    if prof:
        k.e("s_waitcnt vmcnt(0)")
        stamp()
        k.e(f"s_load_dwordx2 s[12:13], s[0:1], {KA_WS}")
        k.e("s_waitcnt lgkmcnt(0)")
        srd_off(k, 4, 12, 13, 64 << 20, 1 << 20)
        k.e(f"s_lshl_b32 s14, s2, 2")
        k.e(f"s_add_u32 s14, s14, s{S_W}")
        k.e(f"s_lshl_b32 s14, s14, 7")
        for i in range(nst[0]):
            k.e(f"v_mov_b32 v2, s{64+2*i}")
            k.e(f"v_mov_b32 v3, s{65+2*i}")
            k.e(f"v_mov_b32 v1, {8*i}")
            k.e(f"buffer_store_dwordx2 v[2:3], v1, s[4:7], s14 offen")
        tl_end(k, prof, kidx)
    k.lab("L_at_done")
    k.e("s_endpgm")
    for rid, p in rare_sites:
        k.lab(f"L_rare_{rid}")
        k.e(f"s_call_b64 s[{S_RET}:{S_RET+1}], L_raresub_{p}")
        k.e(f"s_branch L_back_{rid}")
    gen_rare(k, 0)
    gen_rare(k, 1)
    return k.text(), kernel_desc(name, 512, 102, 256), f"; @launch kernel={name} grid=(256,1,1) block=(256,1,1) lds=163840"
```

```python
from common import *
import k_main as M
from k_main import *
from k_ln import ln_rows
import math

S_MT2, S_NT2 = 10, 11
S_IDX, S_XCD = 32, 33
HCNT_OFF = CNT_OFF + 16384
DBG_SRD = 4
S_FLG = 51
SRD_DBG = 60
UCNT_OFF = CNT_OFF + 8192
POLL_MAX = 1 << 20

def poll(k, tag, off_sgpr, target):
    k(f"""
    s_mov_b32 s{S_FLG}, {POLL_MAX}
    v_mov_b32 v1, 0
    L_poll_{tag}:
    buffer_load_dword v4, v1, s[{SRD_DBG}:{SRD_DBG+3}], s{off_sgpr} offen sc1
    s_waitcnt vmcnt(0)
    v_readfirstlane_b32 s3, v4
    s_cmp_ge_u32 s3, {target}
    s_cbranch_scc1 L_polld_{tag}
    s_sleep 16
    s_sub_u32 s{S_FLG}, s{S_FLG}, 1
    s_cmp_lg_u32 s{S_FLG}, 0
    s_cbranch_scc1 L_poll_{tag}
    L_polld_{tag}:
    """)

def signal(k, tag, off_sgpr):
    k(f"""
    s_cmp_lg_u32 s{S_W}, 0
    s_cbranch_scc1 L_sig_{tag}
    v_mov_b32 v1, 0
    v_mov_b32 v4, 1
    v_cmp_eq_u32 vcc, 0, v0
    s_and_saveexec_b64 s[48:49], vcc
    buffer_atomic_add v4, v1, s[{SRD_DBG}:{SRD_DBG+3}], s{off_sgpr} offen
    s_mov_b64 exec, s[48:49]
    L_sig_{tag}:
    """)


def zip_streams(k, a, b):
    A = [l.strip() for l in a]; B = [l.strip() for l in b]
    assert len(A) == len(B)
    for x, y in zip(A, B):
        if x.startswith("s_nop"):
            if x == "s_nop 1": k.e("s_nop 0")
            continue
        k.e(x); k.e(y)

def local_ln(k):
    SUMA, SQA = 128, 130
    T = 132
    for i in range(16):
        k.e(f"s_waitcnt vmcnt({XYOUNG + 15 - i})")
        for j in range(4):
            src = 64 + 4 * i + j
            t = T + 2 * j
            k.e(f"v_lshlrev_b32 v{t}, 16, v{src}")
            k.e(f"v_and_b32 v{t+1}, 0xffff0000, v{src}")
        for j in range(4):
            t = T + 2 * j
            if i == 0 and j == 0:
                k.e(f"v_pk_mul_f32 v[{SQA}:{SQA+1}], v[{t}:{t+1}], v[{t}:{t+1}]")
                k.e(f"v_mov_b32 v{SUMA}, v{t}")
                k.e(f"v_mov_b32 v{SUMA+1}, v{t+1}")
            else:
                k.e(f"v_pk_add_f32 v[{SUMA}:{SUMA+1}], v[{SUMA}:{SUMA+1}], v[{t}:{t+1}]")
                k.e(f"v_pk_fma_f32 v[{SQA}:{SQA+1}], v[{t}:{t+1}], v[{t}:{t+1}], v[{SQA}:{SQA+1}]")
    S, Q, t1, t2 = 140, 141, 142, 143
    k.e(f"v_add_f32 v{S}, v{SUMA}, v{SUMA+1}")
    k.e(f"v_add_f32 v{Q}, v{SQA}, v{SQA+1}")
    for sw in ("v_permlane16_swap_b32", "v_permlane32_swap_b32"):
        k.e(f"v_mov_b32 v{t1}, v{S}")
        k.e(f"v_mov_b32 v{t2}, v{Q}")
        k.e("s_nop 1")
        k.e(f"{sw} v{t1}, v{S}")
        k.e(f"{sw} v{t2}, v{Q}")
        k.e(f"v_add_f32 v{S}, v{S}, v{t1}")
        k.e(f"v_add_f32 v{Q}, v{Q}, v{t2}")
    MB, R = 144, 146
    k(f"""
    v_mul_f32 v{S}, 0x3b000000, v{S}           ; mean
    v_mul_f32 v{Q}, 0x3b000000, v{Q}           ; E[x^2]
    v_fma_f32 v{Q}, -v{S}, v{S}, v{Q}          ; var
    v_max_f32 v{Q}, 0, v{Q}
    v_cvt_pk_bf16_f32 v{MB}, v{S}, v{S}
    v_lshlrev_b32 v{MB}, 16, v{MB}
    v_mov_b32 v{MB+1}, v{MB}
    v_cvt_pk_bf16_f32 v{Q}, v{Q}, v{Q}
    v_lshlrev_b32 v{Q}, 16, v{Q}
    v_add_f32 v{Q}, 0x3727c5ac, v{Q}
    v_cvt_pk_bf16_f32 v{Q}, v{Q}, v{Q}
    v_lshlrev_b32 v{Q}, 16, v{Q}
    v_sqrt_f32 v{Q}, v{Q}
    s_nop 0
    v_cvt_pk_bf16_f32 v{Q}, v{Q}, v{Q}
    v_lshlrev_b32 v{Q}, 16, v{Q}
    v_rcp_f32 v{R}, v{Q}
    s_nop 0
    v_fma_f32 v{t1}, -v{Q}, v{R}, 1.0
    v_fma_f32 v{R}, v{t1}, v{R}, v{R}
    v_mov_b32 v{R+1}, v{R}
    v_lshrrev_b32 v1, 4, v0                     ; part
    v_and_b32 v2, 15, v0                        ; r
    v_lshrrev_b32 v3, 1, v1
    v_lshlrev_b32 v3, 11, v3                    ; (part>>1)*2048
    v_and_b32 v4, 1, v1
    v_lshl_add_u32 v3, v4, 9, v3                ; + (part&1)*512
    v_lshl_add_u32 v3, v2, 4, v3                ; + r*16
    s_lshr_b32 s3, s{S_W}, 1
    s_lshl_b32 s3, s3, 10                       ; qb*1024
    s_and_b32 s14, s{S_W}, 1
    s_lshl_b32 s14, s14, 8                      ; 16*(w&1)*16
    s_add_u32 s3, s3, s14
    s_add_u32 s3, s3, {XT}
    v_add_u32 v3, s3, v3
    """)
    for i in range(16):
        O = 148 + (i & 1) * 4
        for j in range(4):
            src = 64 + 4 * i + j
            t = T + 2 * j
            k.e(f"v_lshlrev_b32 v{t}, 16, v{src}")
            k.e(f"v_and_b32 v{t+1}, 0xffff0000, v{src}")
        for j in range(4):
            t = T + 2 * j
            k.e(f"v_pk_add_f32 v[{t}:{t+1}], v[{t}:{t+1}], v[{MB}:{MB+1}] neg_lo:[0,1] neg_hi:[0,1]")
        for j in range(4):
            t = T + 2 * j
            k.e(f"v_cvt_pk_bf16_f32 v{156+j}, v{t}, v{t+1}")
        for j in range(4):
            t = T + 2 * j
            k.e(f"v_lshlrev_b32 v{t}, 16, v{156+j}")
            k.e(f"v_and_b32 v{t+1}, 0xffff0000, v{156+j}")
        for j in range(4):
            t = T + 2 * j
            k.e(f"v_pk_mul_f32 v[{t}:{t+1}], v[{t}:{t+1}], v[{R}:{R+1}]")
        for j in range(4):
            t = T + 2 * j
            k.e(f"v_cvt_pk_bf16_f32 v{O+j}, v{t}, v{t+1}")
        k.e(f"ds_write_b128 v3, v[{O}:{O+3}] offset:{i*4096}")

HROW = 208
def h_read(k):
    k(f"""
    s_lshl_b32 s3, s{S_G}, 3
    s_lshl_b32 s14, s{S_W}, 1
    s_add_u32 s3, s3, s14                       ; row_local
    s_lshr_b32 s14, s3, 5
    s_lshl_b32 s14, s14, 10                     ; qb*1024
    s_and_b32 s3, s3, 31
    s_lshl_b32 s3, s3, 4                        ; q*16
    s_add_u32 s3, s3, s14
    s_add_u32 s3, s3, {XT}
    v_lshrrev_b32 v1, 1, v0
    v_lshlrev_b32 v1, 11, v1
    v_and_b32 v2, 1, v0
    v_lshl_add_u32 v1, v2, 9, v1
    v_add_u32 v1, s3, v1
    ds_read_b128 v[{HROW}:{HROW+3}], v1
    ds_read_b128 v[{HROW+4}:{HROW+7}], v1 offset:16
    """)

H_LDS = 131072
def h_phase(k):
    streams = []
    for r in range(2):
        kk = Em()
        base = HB + r * 20
        X = list(range(base, base + 8))
        src = HROW + 4 * r
        for i in range(4):
            kk.e(f"v_lshlrev_b32 v{X[2*i]}, 16, v{src+i}")
            kk.e(f"v_and_b32 v{X[2*i+1]}, 0xffff0000, v{src+i}")
        ln_rows(kk, X, base + 8, base + 12)
        kk.e(f"ds_write_b128 v{HB+40+r}, v[{base+8}:{base+11}]")
        streams.append(kk.L)
    k(f"""
    v_lshlrev_b32 v{HB+40}, 4, v0
    s_lshl_b32 s3, s{S_W}, 11
    s_add_u32 s3, s3, {H_LDS}
    v_add_u32 v{HB+40}, s3, v{HB+40}
    v_add_u32 v{HB+41}, 1024, v{HB+40}
    """)
    zip_streams(k, streams[0], streams[1])
    k(f"""
    s_lshl_b32 s3, s{S_W}, 6
    v_add_u32 v{HB+42}, s3, v0                 ; tid
    v_lshlrev_b32 v{HB+43}, 1, v{HB+42}
    v_add_u32 v{HB+43}, {H_LDS}, v{HB+43}
    s_waitcnt lgkmcnt(0)
    s_barrier
    """)
    for p in range(2):
        for r in range(8):
            k.e(f"ds_read_u16 v{HB+p*8+r}, v{HB+43} offset:{r*1024 + p*512}")
    k(f"""
    s_lshl_b32 s13, s{S_RB}, 2
    s_lshr_b32 s14, s{S_G}, 1
    s_add_u32 s13, s13, s14
    s_lshl_b32 s13, s13, 10
    s_and_b32 s14, s{S_G}, 1
    s_lshl_b32 s14, s14, 9
    s_add_u32 s13, s13, s14
    s_add_u32 s13, s13, {HF_OFF}
    v_lshrrev_b32 v{HB+44}, 5, v{HB+42}
    v_lshlrev_b32 v{HB+44}, 17, v{HB+44}
    v_and_b32 v{HB+45}, 31, v{HB+42}
    v_lshl_add_u32 v{HB+44}, v{HB+45}, 4, v{HB+44}
    s_add_u32 s15, s13, {8*131072}
    s_waitcnt lgkmcnt(0)
    """)
    for p in range(2):
        for j in range(4):
            k.e(f"v_lshl_or_b32 v{HB+20+p*4+j}, v{HB+p*8+2*j+1}, 16, v{HB+p*8+2*j}")
    k.e(f"buffer_store_dwordx4 v[{HB+20}:{HB+23}], v{HB+44}, s[{SRD_WS}:{SRD_WS+3}], s13 offen sc1")
    k.e(f"buffer_store_dwordx4 v[{HB+24}:{HB+27}], v{HB+44}, s[{SRD_WS}:{SRD_WS+3}], s15 offen sc1")

HB = 16
XYOUNG = 26

def poll8(k, tag, off, target):
    k(f"""
    s_mov_b32 s{S_FLG}, {POLL_MAX}
    v_and_b32 v1, 7, v0
    v_lshlrev_b32 v1, 8, v1
    s_mov_b32 s3, {off}
    L_poll8_{tag}:
    buffer_load_dword v4, v1, s[{SRD_WS}:{SRD_WS+3}], s3 offen sc1
    s_waitcnt vmcnt(0)
    v_cmp_le_u32 vcc, {target}, v4
    s_cmp_eq_u64 vcc, -1
    s_cbranch_scc1 L_poll8d_{tag}
    s_sleep 16
    s_sub_u32 s{S_FLG}, s{S_FLG}, 1
    s_cmp_lg_u32 s{S_FLG}, 0
    s_cbranch_scc1 L_poll8_{tag}
    L_poll8d_{tag}:
    """)

def g1_phase(k, stamp, after_exchange):
    RS, NKS, NKST = 3584, 32, 128
    PF, NS, NB = 8, 10, 9
    ACC, AF, BF = 64, 128, 144
    vm = Ctr(63)
    k(f"""
    s_load_dwordx2 s[8:9], s[0:1], {KA_B1}
    v_lshrrev_b32 v3, 3, v0
    v_and_b32 v4, 7, v0
    v_lshrrev_b32 v5, 1, v3
    v_and_b32 v5, 1, v5
    v_lshlrev_b32 v5, 2, v5
    v_xor_b32 v4, v4, v5
    s_movk_i32 s49, {RS}
    v_mul_lo_u32 v3, v3, s49
    v_lshl_add_u32 v10, v4, 4, v3       ; voffA
    v_lshlrev_b32 v11, 4, v0            ; voffB
    v_lshrrev_b32 v3, 5, v0             ; hf
    v_bfe_u32 v4, v0, 4, 1
    v_bfe_u32 v5, v0, 2, 2
    v_and_b32 v6, 3, v0
    v_lshlrev_b32 v7, 3, v3
    v_add_u32 v7, v7, v5
    v_lshlrev_b32 v7, 7, v7
    v_lshl_add_u32 v7, v4, 5, v7
    v_lshl_add_u32 v7, v6, 3, v7
    s_mul_i32 s46, s{S_W}, {NS*2048}
    v_add_u32 v7, s46, v7
    v_lshrrev_b32 v8, 1, v5
    v_lshlrev_b32 v9, 6, v8
    v_add_u32 v12, v7, v9
    v_xor_b32 v9, 64, v9
    v_add_u32 v13, v7, v9
    v_lshlrev_b32 v14, 3, v3            ; hf*8
    s_mul_i32 s43, s{S_W}, {NKS*16*RS}
    s_lshl_b32 s49, s{S_MT}, 7
    s_add_u32 s43, s43, s49
    s_add_u32 s47, s43, {8*RS-1024}
    s_lshl_b32 s44, s{S_NT}, 1
    s_mul_i32 s44, s44, {NKST}
    s_mul_i32 s49, s{S_W}, {NKS}
    s_add_u32 s44, s44, s49
    s_lshl_b32 s44, s44, 10
    s_add_u32 s44, s44, {HF_OFF}
    s_add_u32 s45, s44, {NKST*1024}
    """)
    def issue(ks):
        slot = ks % NS
        k.e(f"s_add_u32 m0, s46, {slot*2048}")
        bs = BF + (ks % NB) * 8
        k.e(f"buffer_load_dwordx4 v[{bs}:{bs+3}], v11, s[{SRD_WS}:{SRD_WS+3}], s44 offen sc1"); vm.issue(("B", ks))
        k.e(f"buffer_load_dwordx4 v10, s[{SRD_W1}:{SRD_W1+3}], s43 offen lds"); vm.issue(("A", ks))
        k.e(f"buffer_load_dwordx4 v10, s[{SRD_W1}:{SRD_W1+3}], s47 offen offset:1024 lds"); vm.issue(("A", ks))
        k.e(f"buffer_load_dwordx4 v[{bs+4}:{bs+7}], v11, s[{SRD_WS}:{SRD_WS+3}], s45 offen sc1"); vm.issue(("B", ks))
        k.e(f"s_add_u32 s43, s43, {16*RS}")
        k.e(f"s_add_u32 s47, s47, {16*RS}")
        k.e(f"s_add_u32 s44, s44, 1024")
        k.e(f"s_add_u32 s45, s45, 1024")
    def tr(ks):
        slot = ks % NS
        out = []
        for mb in range(2):
            for bp in range(2):
                d = AF + (ks & 1) * 8 + mb * 4 + bp * 2
                out.append(f"ds_read_b64_tr_b16 v[{d}:{d+1}], v{12+mb} offset:{slot*2048 + bp*512}")
        return out
    for ks in range(PF):
        issue(ks)
    k(f"""
    s_lshr_b32 s48, s{S_W}, 1
    s_lshl_b32 s48, s48, 6
    s_lshl_b32 s49, s{S_MT}, 7
    s_add_u32 s48, s48, s49
    s_waitcnt lgkmcnt(0)
    s_mov_b32 s12, s8
    s_mov_b32 s13, s9
    s_mov_b32 s14, {1792*2}
    s_mov_b32 s15, 0x00020000
    """)
    for b in range(4):
        k.e(f"buffer_load_dwordx2 v[{20+2*b}:{21+2*b}], v14, s[12:15], s48 offen offset:{16*b}"); vm.issue(("E", 0))
    n = vm.need(lambda t: t == ("A", 0))
    k.e(f"s_waitcnt vmcnt({n})")
    stamp()
    for ins in tr(0): k.e(ins)
    for ks in range(NKS):
        n = vm.need(lambda t: (t[0] == "A" and t[1] <= ks + 1) or (t[0] == "B" and t[1] <= ks))
        k.e("s_waitcnt lgkmcnt(0)" if n is None else f"s_waitcnt vmcnt({n}) lgkmcnt(0)")
        bs = BF + (ks % NB) * 8
        fill = tr(ks + 1) if ks + 1 < NKS else []
        mf = []
        for mb in range(2):
            for nb in range(2):
                d = ACC + (mb * 2 + nb) * 16
                mf.append(mfma(d, AF + (ks & 1) * 8 + mb * 4, bs + nb * 4, "0" if ks == 0 else d, dfile='v', afile='v', bfile='v'))
        k.e(mf[0])
        for ins in fill[:2]: k.e(ins)
        k.e(mf[1])
        for ins in fill[2:]: k.e(ins)
        k.e(mf[2])
        if ks + PF < NKS:
            issue(ks + PF)
        k.e(mf[3])
    stamp()
    k.e("s_nop 7")
    k.e("s_barrier")
    k(f"""
    s_lshl_b32 s48, s{S_W}, 14
    v_add_u32 v3, s48, v11
    s_nop 4
    """)
    for blk in range(4):
        for q in range(4):
            r = ACC + blk * 16 + q * 4
            k.e(f"ds_write_b128 v3, v[{r}:{r+3}] offset:{blk*4096 + q*1024}")
    k(f"""
    s_lshl_b32 s48, s{S_W}, 12
    v_add_u32 v3, s48, v11
    s_waitcnt lgkmcnt(0)
    s_barrier
    """)
    for src in range(4):
        for q in range(4):
            r = ACC + src * 16 + q * 4
            k.e(f"ds_read_b128 v[{r}:{r+3}], v3 offset:{src*16384 + q*1024}")
    n = vm.need(lambda t: t[0] == "E")
    if n is not None: k.e(f"s_waitcnt vmcnt({n})")
    for b in range(4):
        k.e(f"v_lshlrev_b32 v{32+4*b}, 16, v{20+2*b}")
        k.e(f"v_and_b32 v{33+4*b}, 0xffff0000, v{20+2*b}")
        k.e(f"v_lshlrev_b32 v{34+4*b}, 16, v{21+2*b}")
        k.e(f"v_and_b32 v{35+4*b}, 0xffff0000, v{21+2*b}")
    k.e("s_waitcnt lgkmcnt(0)")
    k.e("s_barrier")
    after_exchange()

def g1_finish(k):
    Y = 64
    c1 = -2.0 * 0.7978845608028654 * LOG2E
    k.e(f"s_mov_b32 s12, {f2h(c1)}")
    k.e(f"s_mov_b32 s13, {f2h(c1*0.044715)}")
    k.e(f"v_mov_b32 v48, s12")
    for r in range(0, 16, 2):
        k.e(f"v_pk_add_f32 v[{Y+r}:{Y+r+1}], v[{Y+r}:{Y+r+1}], v[{Y+16+r}:{Y+17+r}]")
        k.e(f"v_pk_add_f32 v[{Y+32+r}:{Y+33+r}], v[{Y+32+r}:{Y+33+r}], v[{Y+48+r}:{Y+49+r}]")
    for r in range(0, 16, 2):
        k.e(f"v_pk_add_f32 v[{Y+r}:{Y+r+1}], v[{Y+r}:{Y+r+1}], v[{Y+32+r}:{Y+33+r}]")
    for r in range(0, 16, 2):
        k.e(f"v_pk_add_f32 v[{Y+r}:{Y+r+1}], v[{Y+r}:{Y+r+1}], v[{32+r}:{33+r}]")
    T = Y + 16
    for r in range(0, 16, 2):
        k.e(f"v_pk_mul_f32 v[{T+r}:{T+r+1}], v[{Y+r}:{Y+r+1}], v[{Y+r}:{Y+r+1}]")
    for r in range(16):
        k.e(f"v_fma_f32 v{T+r}, v{T+r}, s13, v48")
    for r in range(0, 16, 2):
        k.e(f"v_pk_mul_f32 v[{T+r}:{T+r+1}], v[{T+r}:{T+r+1}], v[{Y+r}:{Y+r+1}]")
    for r in range(16):
        k.e(f"v_exp_f32 v{T+r}, v{T+r}")
    for r in range(16):
        k.e(f"v_add_f32 v{T+r}, 1.0, v{T+r}")
    for r in range(16):
        k.e(f"v_rcp_f32 v{T+r}, v{T+r}")
    k.e("s_nop 0")
    for r in range(0, 16, 2):
        k.e(f"v_pk_mul_f32 v[{Y+r}:{Y+r+1}], v[{Y+r}:{Y+r+1}], v[{T+r}:{T+r+1}]")
    for r in range(0, 16, 2):
        k.e(f"v_cvt_pk_bf16_f32 v{52 + r//2}, v{Y+r}, v{Y+r+1}")
    k(f"""
    s_and_b32 s12, s{S_W}, 1
    s_lshl_b32 s13, s{S_NT}, 1
    s_add_u32 s12, s12, s13
    s_mul_i32 s12, s12, 112
    s_lshl_b32 s13, s{S_MT}, 2
    s_add_u32 s12, s12, s13
    s_lshr_b32 s13, s{S_W}, 1
    s_lshl_b32 s13, s13, 1
    s_add_u32 s12, s12, s13
    s_lshl_b32 s12, s12, 10
    s_add_u32 s12, s12, {UF_OFF}
    buffer_store_dwordx4 v[52:55], v11, s[{SRD_WS}:{SRD_WS+3}], s12 offen sc1
    buffer_store_dwordx4 v[56:59], v11, s[{SRD_WS}:{SRD_WS+3}], s12 offen offset:1024 sc1
    """)

G2_PF = 10
def g2_setup(k, vm):
    RS, NKS, NKST = 4096, 28, 112
    PF, NS, NB = G2_PF, G2_PF + 2, G2_PF + 1
    k(f"""
    s_load_dwordx2 s[8:9], s[0:1], {KA_B2}
    s_load_dwordx2 s[12:13], s[0:1], {KA_X}
    s_load_dwordx2 s[14:15], s[0:1], {KA_OUT}
    s_load_dwordx2 s[48:49], s[0:1], {KA_WS}
    v_lshrrev_b32 v3, 3, v0
    v_and_b32 v4, 7, v0
    v_lshrrev_b32 v5, 1, v3
    v_and_b32 v5, 1, v5
    v_lshlrev_b32 v5, 2, v5
    v_xor_b32 v4, v4, v5
    v_lshlrev_b32 v3, 12, v3
    v_lshl_add_u32 v10, v4, 4, v3       ; voffA
    v_lshlrev_b32 v11, 4, v0
    v_lshrrev_b32 v3, 5, v0             ; hf
    v_bfe_u32 v4, v0, 4, 1
    v_bfe_u32 v5, v0, 2, 2
    v_and_b32 v6, 3, v0
    v_lshlrev_b32 v7, 2, v3
    v_add_u32 v7, v7, v5
    v_lshlrev_b32 v7, 7, v7
    v_lshl_add_u32 v7, v4, 5, v7
    v_lshl_add_u32 v7, v6, 3, v7
    s_mul_i32 s46, s{S_W}, {NS*2048}
    v_add_u32 v7, s46, v7
    v_lshrrev_b32 v8, 1, v5
    v_lshlrev_b32 v9, 6, v8
    v_add_u32 v12, v7, v9
    v_xor_b32 v9, 64, v9
    v_add_u32 v13, v7, v9
    s_mul_i32 s43, s{S_W}, {NKS*16*RS}
    s_lshl_b32 s47, s{S_MT2}, 7
    s_add_u32 s43, s43, s47
    s_add_u32 s47, s43, {8*RS-1024}
    s_lshl_b32 s44, s{S_NT2}, 1
    s_mul_i32 s44, s44, {NKST}
    s_mul_i32 s45, s{S_W}, {NKS}
    s_add_u32 s44, s44, s45
    s_lshl_b32 s44, s44, 10
    s_add_u32 s44, s44, {UF_OFF}
    s_add_u32 s45, s44, {NKST*1024}
    v_and_b32 v14, 31, v0
    s_lshr_b32 s54, s{S_W}, 1
    s_lshl_b32 s54, s54, 5
    v_add_u32 v14, s54, v14             ; row
    v_lshlrev_b32 v15, 1, v14           ; b2 offset
    v_lshlrev_b32 v2, 10, v14
    v_lshl_add_u32 v2, v3, 4, v2
    s_and_b32 s54, s{S_W}, 1
    s_lshl_b32 s54, s54, 5
    v_add_u32 v2, s54, v2
    """)
    for ks in range(PF):
        g2_issue(k, vm, ks)
    k("s_waitcnt lgkmcnt(0)")
    srd(k, 16, 8, 9, 2048 * 2)
    srd(k, 20, 12, 13, 2097152)
    srd(k, 28, 14, 15, 2097152)
    srd_off(k, 56, 48, 49, SLAB_OFF, 16 << 20)
    k(f"""
    s_lshl_b32 s54, s{S_MT2}, 16
    s_lshl_b32 s55, s{S_NT2}, 7
    s_add_u32 s54, s54, s55
    s_lshl_b32 s55, s{S_MT2}, 7         ; b2 base
    s_lshl_b32 s53, s{S_MT2}, 16
    s_lshr_b32 s52, s{S_NT2}, 1
    s_lshl_b32 s52, s52, 14
    s_add_u32 s53, s53, s52
    s_and_b32 s52, s{S_NT2}, 1
    s_lshl_b32 s52, s52, 13
    s_add_u32 s53, s53, s52
    s_lshl_b32 s52, s{S_W}, 10
    s_add_u32 s53, s53, s52
    """)
    k.e("buffer_load_ushort v9, v15, s[16:19], s55 offen"); vm.issue(("E", 0))
    k.e(f"buffer_load_dwordx4 v[248:251], v2, s[20:23], s54 offen"); vm.issue(("E", 0))
    k.e(f"buffer_load_dwordx4 v[252:255], v2, s[20:23], s54 offen offset:64"); vm.issue(("E", 0))

def g2_issue(k, vm, ks):
    RS = 4096
    NS, NB = G2_PF + 2, G2_PF + 1
    slot = ks % NS
    k.e(f"s_add_u32 m0, s46, {slot*2048}")
    bs = 144 + (ks % NB) * 8
    k.e(f"buffer_load_dwordx4 v[{bs}:{bs+3}], v11, s[{SRD_WS}:{SRD_WS+3}], s44 offen sc1"); vm.issue(("B", ks))
    k.e(f"buffer_load_dwordx4 v10, s[{SRD_WQ}:{SRD_WQ+3}], s43 offen lds"); vm.issue(("A", ks))
    k.e(f"buffer_load_dwordx4 v10, s[{SRD_WQ}:{SRD_WQ+3}], s47 offen offset:1024 lds"); vm.issue(("A", ks))
    k.e(f"buffer_load_dwordx4 v[{bs+4}:{bs+7}], v11, s[{SRD_WS}:{SRD_WS+3}], s45 offen sc1"); vm.issue(("B", ks))
    k.e(f"s_add_u32 s43, s43, {16*RS}")
    k.e(f"s_add_u32 s47, s47, {16*RS}")
    k.e(f"s_add_u32 s44, s44, 1024")
    k.e(f"s_add_u32 s45, s45, 1024")

def g2_main(k, vm, stamp, POLL_KS=10, SIG_KS=5):
    NKS = 28
    PF, NS, NB = G2_PF, G2_PF + 2, G2_PF + 1
    ACC, AF, BF = 64, 128, 144
    SL = 0
    SUM = 232
    def tr(ks):
        slot = ks % NS
        out = []
        for mb in range(2):
            for bp in range(2):
                d = AF + (ks & 1) * 8 + mb * 4 + bp * 2
                out.append(f"ds_read_b64_tr_b16 v[{d}:{d+1}], v{12+mb} offset:{slot*2048 + bp*1024}")
        return out
    n = vm.need(lambda t: t == ("A", 0))
    k.e(f"s_waitcnt vmcnt({n})")
    for ins in tr(0): k.e(ins)
    si = 0
    for ks in range(NKS):
        n = vm.need(lambda t: (t[0] == "A" and t[1] <= ks + 1) or (t[0] == "B" and t[1] <= ks))
        k.e("s_waitcnt lgkmcnt(0)" if n is None else f"s_waitcnt vmcnt({n}) lgkmcnt(0)")
        bs = BF + (ks % NB) * 8
        fill = tr(ks + 1) if ks + 1 < NKS else []
        mf = []
        for mb in range(2):
            for nb in range(2):
                a = AF + (ks & 1) * 8 + mb * 4
                b = bs + nb * 4
                d = ACC + (mb * 2 + nb) * 16
                c = "0" if ks == 0 else f"v[{d}:{d+15}]"
                mf.append(f"v_mfma_f32_32x32x16_bf16 v[{d}:{d+15}], v[{b}:{b+3}], v[{a}:{a+3}], {c}")
        k.e(mf[0])
        for ins in fill[:2]: k.e(ins)
        k.e(mf[1])
        for ins in fill[2:]: k.e(ins)
        k.e(mf[2])
        if ks + PF < NKS:
            g2_issue(k, vm, ks + PF)
        if ks == SIG_KS:
            n = vm.need(lambda t: t[0] == "ST")
            if n is not None: k.e(f"s_waitcnt vmcnt({n})")
            k.e("s_barrier")
            k.e(f"s_lshl_b32 s52, s{S_RB}, 8")
            k.e(f"s_add_u32 s52, s52, {CNT_OFF}")
            signal(k, "slab", 52)
        if ks == POLL_KS:
            k.e(f"s_lshl_b32 s52, s{S_MT2}, 8")
            k.e(f"s_add_u32 s52, s52, {CNT_OFF}")
            k.e(f"s_cmp_lg_u32 s{S_W}, 0")
            k.e("s_cbranch_scc1 L_slab_nopoll")
            poll(k, "slab", 52, 8)
            k.lab("L_slab_nopoll")
            k.e("s_barrier")
        if ks >= POLL_KS and si < 16:
            for rep in range(1 if ks < 26 else 2):
                if si < 16:
                    g, p = si >> 1, si & 1
                    k.e(f"s_add_u32 s52, s53, {g*2097152 + p*4096}")
                    k.e(f"buffer_load_dwordx4 a[{si*4}:{si*4+3}], v11, s[56:59], s52 offen sc1"); vm.issue(("S", si))
                    si += 1
        k.e(mf[3])
    assert si == 16
    stamp()
    PS = 64 * 272
    k(f"""
    v_and_b32 v3, 31, v0
    s_movk_i32 s52, 272
    v_mul_lo_u32 v3, v3, s52
    v_lshrrev_b32 v4, 5, v0
    v_lshl_add_u32 v3, v4, 4, v3
    s_mul_i32 s55, s{S_W}, {PS}
    v_add_u32 v3, s55, v3
    v_mul_lo_u32 v8, v14, s52
    v_lshl_add_u32 v8, v4, 5, v8
    s_and_b32 s52, s{S_W}, 1
    s_lshl_b32 s52, s52, 6
    v_add_u32 v8, s52, v8
    s_barrier
    """)
    for mb in range(2):
        for nb in range(2):
            for b in range(4):
                r = ACC + (mb * 2 + nb) * 16 + b * 4
                k.e(f"ds_write_b128 v3, v[{r}:{r+3}] offset:{mb*32*272 + nb*128 + b*32}")
    k(f"""
    s_waitcnt lgkmcnt(0)
    s_barrier
    """)
    for p in range(2):
        for src in range(4):
            r = ACC + p * 32 + src * 8
            k.e(f"ds_read_b128 v[{r}:{r+3}], v8 offset:{src*PS + p*128}")
            k.e(f"ds_read_b128 v[{r+4}:{r+7}], v8 offset:{src*PS + p*128 + 16}")
    for i in range(16):
        g, p = i >> 1, i & 1
        n = vm.need(lambda t: t[0] == "S" and t[1] <= i)
        if n is not None: k.e(f"s_waitcnt vmcnt({n})")
        for j in range(4):
            k.e(f"v_accvgpr_read_b32 v{20+j}, a{i*4+j}")
        for j in range(4):
            if g == 0:
                k.e(f"v_lshlrev_b32 v{SUM+p*8+2*j}, 16, v{20+j}")
                k.e(f"v_and_b32 v{SUM+p*8+2*j+1}, 0xffff0000, v{20+j}")
            else:
                k.e(f"v_lshlrev_b32 v{24+2*j}, 16, v{20+j}")
                k.e(f"v_and_b32 v{25+2*j}, 0xffff0000, v{20+j}")
        if g > 0:
            for j in range(4):
                k.e(f"v_pk_add_f32 v[{SUM+p*8+2*j}:{SUM+p*8+2*j+1}], v[{SUM+p*8+2*j}:{SUM+p*8+2*j+1}], v[{24+2*j}:{25+2*j}]")
    for p in range(2):
        for j in range(4):
            k.e(f"v_lshlrev_b32 v{128+p*8+2*j}, 16, v{248+p*4+j}")
            k.e(f"v_and_b32 v{129+p*8+2*j}, 0xffff0000, v{248+p*4+j}")
    k.e("v_lshlrev_b32 v18, 16, v9")
    k.e("v_mov_b32 v19, v18")
    k.e(f"s_mov_b32 s48, {f2h(-LOG2E)}")
    k.e(f"s_mov_b32 s49, {f2h(-LOG2E)}")
    k.e("s_waitcnt lgkmcnt(0)")
    for p in range(2):
        Y = ACC + p * 32
        for i in range(0, 8, 2):
            k.e(f"v_pk_add_f32 v[{Y+i}:{Y+i+1}], v[{Y+i}:{Y+i+1}], v[{Y+8+i}:{Y+9+i}]")
            k.e(f"v_pk_add_f32 v[{Y+16+i}:{Y+17+i}], v[{Y+16+i}:{Y+17+i}], v[{Y+24+i}:{Y+25+i}]")
        for i in range(0, 8, 2):
            k.e(f"v_pk_add_f32 v[{Y+i}:{Y+i+1}], v[{Y+i}:{Y+i+1}], v[{Y+16+i}:{Y+17+i}]")
        for i in range(0, 8, 2):
            k.e(f"v_pk_add_f32 v[{Y+i}:{Y+i+1}], v[{Y+i}:{Y+i+1}], v[18:19]")
    for p in range(2):
        Y = ACC + p * 32; T = Y + 8
        for i in range(0, 8, 2):
            k.e(f"v_pk_mul_f32 v[{T+i}:{T+i+1}], v[{Y+i}:{Y+i+1}], s[48:49]")
    for p in range(2):
        T = ACC + p * 32 + 8
        for i in range(8): k.e(f"v_exp_f32 v{T+i}, v{T+i}")
    for p in range(2):
        T = ACC + p * 32 + 8
        for i in range(8): k.e(f"v_add_f32 v{T+i}, 1.0, v{T+i}")
    for p in range(2):
        T = ACC + p * 32 + 8
        for i in range(8): k.e(f"v_rcp_f32 v{T+i}, v{T+i}")
    k.e("s_nop 0")
    for p in range(2):
        Y = ACC + p * 32; T = Y + 8
        for i in range(0, 8, 2):
            k.e(f"v_pk_mul_f32 v[{Y+i}:{Y+i+1}], v[{Y+i}:{Y+i+1}], v[{T+i}:{T+i+1}]")
    for p in range(2):
        Y = ACC + p * 32
        for i in range(0, 8, 2):
            k.e(f"v_pk_fma_f32 v[{Y+i}:{Y+i+1}], v[{Y+i}:{Y+i+1}], v[{SUM+p*8+i}:{SUM+p*8+i+1}], v[{128+p*8+i}:{129+p*8+i}]")
    for p in range(2):
        Y = ACC + p * 32
        for i in range(0, 8, 2):
            k.e(f"v_cvt_pk_bf16_f32 v{40+p*4+i//2}, v{Y+i}, v{Y+i+1}")
        k.e(f"buffer_store_dwordx4 v[{40+p*4}:{43+p*4}], v2, s[28:31], s54 offen offset:{64*p}")

XSRC = 239
UFL = 252

def gen_m5(name="main_kernel", debug=None, prof=False, l2pf=True, kidx=0, sched2=True):
    k = Em()
    M.SCHED2 = sched2
    M.PRE_HOOK = lambda kk: poll8(kk, 'h', HCNT_OFF, 32)
    nst = [0]
    def stamp():
        if not prof: return
        i = nst[0]; nst[0] += 1
        k.e(f"s_memtime s[{64+2*i}:{65+2*i}]")
        k.e(f"s_memrealtime s[100:101]")
        k.e("s_waitcnt lgkmcnt(0)")
        k.e(f"s_mov_b32 s{65+2*i}, s100")
    k.L.append(kernel_header(name))
    cscale = math.log2(math.e) / math.sqrt(128.0)
    tl_begin(k, prof)
    k(f"""
    s_cmp_ge_u32 s2, 256
    s_cbranch_scc1 L_at_done
    s_load_dwordx2 s[4:5], s[0:1], {KA_X}
    s_load_dwordx2 s[12:13], s[0:1], {KA_WS}
    s_load_dwordx2 s[14:15], s[0:1], {KA_DBG}
    v_lshrrev_b32 v1, 6, v0
    v_and_b32 v0, 63, v0
    s_and_b32 s{S_XCD}, s2, 7
    v_readfirstlane_b32 s{S_W}, v1
    s_lshr_b32 s{S_IDX}, s2, 3
    s_and_b32 s{S_G}, s{S_XCD}, 3
    s_lshl_b32 s{S_G}, s{S_G}, 1
    s_and_b32 s3, s{S_IDX}, 1
    s_add_u32 s{S_G}, s{S_G}, s3        ; g = 2*(x&3) + (idx&1)
    s_lshr_b32 s{S_RB}, s{S_XCD}, 2
    s_lshl_b32 s{S_RB}, s{S_RB}, 4
    s_lshr_b32 s3, s{S_IDX}, 1
    s_add_u32 s{S_RB}, s{S_RB}, s3
    v_and_b32 v2, 15, v0
    v_lshrrev_b32 v3, 4, v0
    v_lshlrev_b32 v2, 10, v2
    v_lshl_add_u32 v2, v3, 4, v2        ; r*1024 + part*16
    s_lshl_b32 s3, s{S_RB}, 16
    s_lshl_b32 s8, s{S_W}, 14
    s_add_u32 s3, s3, s8                ; (64rb + 16w)*1024
    s_waitcnt lgkmcnt(0)
    s_mov_b32 s16, s4
    s_mov_b32 s17, s5
    s_mov_b32 s18, 2097152
    s_mov_b32 s19, 0x00020000
    """)
    for i in range(16):
        k.e(f"buffer_load_dwordx4 v[{64+4*i}:{67+4*i}], v2, s[16:19], s3 offen offset:{64*i}")
    k(f"""
    s_load_dwordx2 s[16:17], s[0:1], {KA_K}
    s_load_dwordx2 s[20:21], s[0:1], {KA_V}
    s_load_dwordx2 s[8:9], s[0:1], {KA_WQ}
    s_load_dwordx2 s[10:11], s[0:1], {KA_WO}
    s_load_dwordx2 s[56:57], s[0:1], {KA_W1}
    """)
    stamp()
    srd(k, SRD_WS, 12, 13, 8 << 20)
    srd(k, DBG_SRD, 14, 15, 256)
    k(f"""
    s_cmp_ge_u32 s2, 48
    s_cbranch_scc1 L_nozero
    s_cmp_lg_u32 s{S_W}, 0
    s_cbranch_scc1 L_nozero
    s_lshl_b32 s3, s2, 8
    s_cmp_ge_u32 s2, 40
    s_cselect_b32 s14, {16384 - 40*256}, 0
    s_add_u32 s3, s3, s14
    s_add_u32 s3, s3, {CNT_OFF}
    v_mov_b32 v1, 0
    v_lshlrev_b32 v3, 2, v0
    buffer_store_dword v1, v3, s[{SRD_WS}:{SRD_WS+3}], s3 offen sc1
    s_waitcnt vmcnt(0)
    v_mov_b32 v3, 1
    v_cmp_eq_u32 vcc, 0, v0
    s_and_saveexec_b64 s[14:15], vcc
    buffer_atomic_add v3, v1, s[{DBG_SRD}:{DBG_SRD+3}], 0 offen
    s_mov_b64 exec, s[14:15]
    L_nozero:
    s_lshl_b32 s14, s{S_G}, 19          ; g*524288
    s_lshl_b32 s3, s{S_G}, 21           ; g*2MB
    s_add_u32 s3, s3, {SLAB_OFF}
    s_waitcnt lgkmcnt(0)
    s_add_u32 s16, s16, s14
    s_addc_u32 s17, s17, 0
    s_mov_b32 s18, 524288
    s_mov_b32 s19, 0x00020000
    s_add_u32 s20, s20, s14
    s_addc_u32 s21, s21, 0
    s_mov_b32 s22, 524288
    s_mov_b32 s23, 0x00020000
    s_mov_b32 s58, {2048*3584}
    s_mov_b32 s59, 0x00020000
    """)
    srd(k, SRD_WQ, 8, 9, 4194304)
    srd(k, SRD_WO, 10, 11, 4194304)
    srd_off(k, SRD_SL, 12, 13, "s3", 2097152)
    k(f"""
    s_and_b32 s{S_NT}, s{S_XCD}, 1
    s_lshl_b32 s{S_NT}, s{S_NT}, 2
    s_and_b32 s3, s{S_IDX}, 3
    s_add_u32 s{S_NT}, s{S_NT}, s3
    s_mov_b32 s{S_NT2}, s{S_NT}
    s_lshr_b32 s{S_MT}, s{S_XCD}, 1
    s_lshl_b32 s{S_MT2}, s{S_MT}, 3
    s_mul_i32 s{S_MT}, s{S_MT}, 7
    s_lshr_b32 s3, s{S_IDX}, 2
    s_add_u32 s{S_MT}, s{S_MT}, s3
    s_add_u32 s{S_MT2}, s{S_MT2}, s3
    s_lshl_b32 s14, s{S_W}, 6
    v_add_u32 v1, s14, v0               ; tid
    v_lshrrev_b32 v2, 4, v1
    v_and_b32 v3, 15, v1
    v_lshlrev_b32 v2, 13, v2
    v_lshl_add_u32 v250, v3, 6, v2
    v_lshlrev_b32 v251, 6, v1           ; tid*64
    """)
    k(f"""
    v_lshrrev_b32 v1, 4, v0             ; l>>4 (0..3)
    v_and_b32 v2, 15, v0                ; p = l&15
    ; DV: (l>>4)*256 + ((p ^ ((l>>4)<<2))*16)
    v_lshlrev_b32 v3, 2, v1
    v_xor_b32 v3, v2, v3
    v_lshlrev_b32 v3, 4, v3
    v_lshl_add_u32 v{DV}, v1, 8, v3
    v_lshl_add_u32 v{DW}, v1, 13, v3
    """)
    for i in range(4):
        k(f"""
        v_add_u32 v4, {4*i}, v1
        v_xor_b32 v4, v2, v4
        v_lshlrev_b32 v4, 4, v4
        v_lshl_add_u32 v{DK+i}, v1, 8, v4
        """)
    k(f"""
    v_and_b32 v4, 31, v0
    v_lshrrev_b32 v5, 5, v0             ; hf
    v_xor_b32 v6, v5, v2
    v_lshlrev_b32 v7, 8, v4
    """)
    for t in range(8):
        k.e(f"v_xor_b32 v8, {2*t}, v6")
        k.e(f"v_lshl_add_u32 v{KA+t}, v8, 4, v7")
    k(f"""
    v_bfe_u32 v8, v0, 2, 2              ; r
    v_bfe_u32 v9, v0, 4, 1              ; csub
    v_and_b32 v10, 3, v0                ; c
    v_lshl_add_u32 v11, v5, 2, v8       ; 4hf + r
    v_lshlrev_b32 v11, 8, v11
    v_lshl_add_u32 v11, v9, 5, v11
    v_lshl_add_u32 v12, v10, 3, v11
    """)
    for db in range(4):
        k.e(f"v_xor_b32 v13, {db}, v8")
        k.e(f"v_lshl_add_u32 v13, v13, 6, v12")
        k.e(f"v_add_u32 v{VA+db}, {VRING}, v13")
    k(f"""
    s_and_b32 s14, s{S_W}, 1
    s_lshl_b32 s14, s14, 14
    s_lshr_b32 s15, s{S_W}, 1
    s_mul_i32 s15, s15, {131072-32768}
    s_add_u32 s{S_WRING}, s14, s15
    s_add_u32 s{S_WRING}, s{S_WRING}, 32768
    v_lshl_add_u32 v11, v5, 3, v8
    v_lshlrev_b32 v11, 8, v11
    v_lshl_add_u32 v11, v9, 5, v11
    v_and_b32 v13, 1, v10
    v_lshrrev_b32 v14, 1, v10
    v_lshl_or_b32 v13, v13, 1, v14      ; sigma(c)
    v_lshl_add_u32 v11, v13, 3, v11
    v_add_u32 v11, s{S_WRING}, v11
    """)
    for db in range(4):
        k.e(f"v_xor_b32 v13, {db}, v8")
        k.e(f"v_lshl_add_u32 v{WA+db}, v13, 6, v11")
    k(f"""
    v_lshlrev_b32 v15, 4, v0            ; lane*16
    v_add_u32 v{XA}, {XT}, v15
    s_lshr_b32 s14, s{S_IDX}, 1
    s_lshl_b32 s14, s14, 18             ; 32*8192*j
    s_lshl_b32 s15, s{S_G}, 10
    s_add_u32 s14, s14, s15
    """)
    k(f"""
    s_and_b32 s14, s{S_W}, 1
    s_lshl_b32 s14, s14, 14
    s_lshr_b32 s15, s{S_W}, 1
    s_mul_i32 s15, s15, {131072-32768}
    s_add_u32 s{S_WRING}, s14, s15
    s_add_u32 s{S_WRING}, s{S_WRING}, 32768
    """)
    k(f"""
    s_lshl_b32 s14, s{S_G}, 2
    s_add_u32 s14, s14, s{S_W}
    s_lshl_b32 s{S_WOFF}, s14, 8
    """)
    def wdma(t, srd, RS):
        out = [f"s_add_u32 m0, s{S_WRING}, {(t&3)*4096}"]
        for i in range(4):
            if i == 0:
                out.append("s_nop 0")
                out.append(f"buffer_load_dwordx4 v{DW}, s[{srd}:{srd+3}], s{S_WOFF} offen lds")
            else:
                out.append(f"s_add_u32 s{S_WOFF}, s{S_WOFF}, {4*RS-1024}")
                out.append(f"buffer_load_dwordx4 v{DW}, s[{srd}:{srd+3}], s{S_WOFF} offen offset:{1024*i} lds")
        out.append(f"s_add_u32 s{S_WOFF}, s{S_WOFF}, {4*RS+3072}")
        return out
    k(f"""
    s_lshl_b32 s{S_KOFF}, s{S_W}, 12          ; w*4096
    s_mov_b32 s{S_M0K}, s{S_KOFF}
    s_add_u32 s{S_M0V}, s{S_KOFF}, {VRING}
    s_mov_b32 s{S_VOFF}, s{S_KOFF}
    """)
    def kdma(slot):
        out = [f"s_add_u32 m0, s{S_M0K}, {slot*16384}", "s_nop 0"]
        for i in range(4):
            out.append(f"buffer_load_dwordx4 v{DK+i}, s[{SRD_K}:{SRD_K+3}], s{S_KOFF} offen offset:{1024*i} {POL()} lds")
        out.append(f"s_add_u32 s{S_KOFF}, s{S_KOFF}, 16384")
        return out
    def vdma(slot):
        out = [f"s_add_u32 m0, s{S_M0V}, {slot*16384}", "s_nop 0"]
        for i in range(4):
            out.append(f"buffer_load_dwordx4 v{DV}, s[{SRD_V}:{SRD_V+3}], s{S_VOFF} offen offset:{1024*i} {POL()} lds")
        out.append(f"s_add_u32 s{S_VOFF}, s{S_VOFF}, 16384")
        return out
    for ins in kdma(0) + kdma(1): k.e(ins)
    for t in range(4):
        for ins in wdma(t, SRD_WQ, 8192): k.e(ins)
    k(f"""
    s_lshr_b32 s14, s{S_IDX}, 1
    s_lshl_b32 s14, s14, 18
    s_lshl_b32 s15, s{S_G}, 10
    s_add_u32 s14, s14, s15
    buffer_load_dword v246, v250, s[{SRD_WQ}:{SRD_WQ+3}], s14 offen
    s_add_u32 s14, s14, {16*8192}
    buffer_load_dword v247, v250, s[{SRD_WQ}:{SRD_WQ+3}], s14 offen
    """)
    local_ln(k)
    k.e("s_waitcnt vmcnt(18) lgkmcnt(0)")
    k.e("s_barrier")
    h_read(k)
    stamp()
    late = []
    gen_proj(k, "q", SRD_WQ, 8192, True, True, late)
    stamp()
    k(f"""
    s_waitcnt vmcnt(0) lgkmcnt(0)
    s_barrier
    """)
    for ins in vdma(0) + kdma(2) + vdma(1): k.e(ins)
    k.e(f"s_load_dwordx2 s[8:9], s[0:1], {KA_W2}")
    k(f"""
    s_lshl_b32 s14, s{S_W}, 6
    v_add_u32 v1, s14, v0                       ; tid
    v_lshrrev_b32 v2, 1, v1
    v_and_b32 v3, 1, v1
    v_lshlrev_b32 v4, 12, v2
    v_lshl_add_u32 v253, v3, 6, v4
    s_movk_i32 s14, 3584
    v_mul_lo_u32 v2, v2, s14
    v_lshl_add_u32 v250, v3, 6, v2
    s_waitcnt lgkmcnt(0)
    """)
    srd(k, SRD_WQ, 8, 9, 1792 * 4096)
    k.e(f"s_mov_b32 s14, {f2h(cscale)}")
    k.e(f"s_mov_b32 s15, {f2h(cscale)}")
    k.e("s_nop 7")
    for db in range(4):
        for qb in range(2):
            a = PACC + (db * 2 + qb) * 16
            for r in range(0, 16, 2):
                k.e(f"v_pk_mul_f32 v[{a+r}:{a+r+1}], v[{a+r}:{a+r+1}], s[14:15]")
            for r in range(0, 16, 2):
                q = QF + qb * 32 + (2 * db + (r >> 3)) * 4 + ((r & 7) >> 1)
                k.e(f"v_cvt_pk_bf16_f32 v{q}, v{a+r}, v{a+r+1}")
    h_phase(k)
    k(f"""
    v_mov_b32 v{UFL}, 0
    buffer_load_dword v{UFL}, v{UFL}, s[{DBG_SRD}:{DBG_SRD+3}], 0 offen sc1
    """)
    for t in range(4):
        for ins in k_read(0, t, t): k.e(ins)
    for t in range(8):
        k.e(f"s_waitcnt lgkmcnt({min(3, 7-t)})")
        for qb in range(2):
            d = Sbuf(0, qb)
            k.e(mfma(d, KF + (t & 3) * 4, QF + qb * 32 + t * 4, "0" if t == 0 else d))
        if t + 4 < 8:
            for ins in k_read(0, t + 4, t + 4): k.e(ins)
    for i in range(128):
        k.e(f"v_accvgpr_write_b32 a{OA+i}, 0")
    k.e(f"v_mov_b32 v{LL}, 0")
    k.e(f"v_mov_b32 v{LL+1}, 0")
    k.e(f"v_mov_b32 v{LS+2}, 0")
    k.e(f"v_mov_b32 v{LS+3}, 0")
    k.e(f"s_mov_b32 s{S_THR}, {f2h(2.0**THR_LOG2)}")
    for qb in range(2):
        S = Sbuf(0, qb)
        t, t2 = T0, T0 + 1
        k.e(f"v_max3_f32 v{t}, v{S}, v{S+1}, v{S+2}")
        for r in range(3, 15, 2):
            k.e(f"v_max3_f32 v{t}, v{t}, v{S+r}, v{S+r+1}")
        k.e(f"v_max_f32 v{t}, v{t}, v{S+15}")
        k.e(f"v_mov_b32 v{t2}, v{t}")
        k.e("s_nop 1")
        k.e(f"v_permlane32_swap_b32 v{t2}, v{t}")
        k.e(f"v_max_f32 v{t}, v{t}, v{t2}")
        for r in range(16):
            k.e(f"v_sub_f32 v{S+r}, v{S+r}, v{t}")
            k.e(f"v_sub_f32 v{NEGM+16*qb+r}, 0, v{t}")
    if M.SCHED2:
        k.e(f"v_exp_f32 v{ET}, v{Sbuf(0,0)}")
        k.e(f"v_exp_f32 v{ET+1}, v{Sbuf(0,0)+1}")
    k.e("s_waitcnt vmcnt(11)")
    k.e("s_barrier")
    stamp()
    for ins in k_read(1, 0, 0) + k_read(1, 1, 1): k.e(ins)
    rare_sites = []
    def dma_plan(lst):
        return {8: [lst[0]], 11: [lst[2]], 15: [lst[3]], 19: [lst[4]], 23: [lst[5]], 27: [lst[6]]}
    def step(u, rid, **kw):
        S = dict(do_qk=True, do_pv=True, qk_next=True, pv_next=True, dma=None, pre=None, prev7=3)
        S.update(kw)
        lk = Look(u, S['do_qk'], S['do_pv'], S['qk_next'], S['pv_next'])
        lk.prev7 = S['prev7']
        gen_step(k, u, S['do_qk'], S['do_pv'], True, lk, S['dma'], S['pre'], rid)
        rare_sites.append((rid, u & 1))
    d0 = dma_plan(kdma(3))
    d0[28] = [f"s_lshr_b32 s14, s{S_IDX}, 1", f"s_lshl_b32 s14, s14, 15", f"s_lshl_b32 s15, s{S_G}, 19", "s_add_u32 s14, s14, s15",
              f"buffer_load_dword v248, v251, s[{SRD_WO}:{SRD_WO+3}], s14 offen"]
    d0[29] = ["s_add_u32 s14, s14, 16384", f"buffer_load_dword v249, v251, s[{SRD_WO}:{SRD_WO+3}], s14 offen"]
    step(0, "s0", do_pv=False, dma=d0, prev7=1)
    k(f"""
    s_waitcnt vmcnt(6)
    s_barrier
    s_cmp_lg_u32 s{S_W}, 0
    s_cbranch_scc1 L_hsig_done
    v_readfirstlane_b32 s14, v{UFL}
    s_cmp_ge_u32 s14, 48
    s_cbranch_scc1 L_rdy_ok
    s_mov_b32 s{S_FLG}, {POLL_MAX}
    v_mov_b32 v1, 0
    L_rdy_poll:
    buffer_load_dword v4, v1, s[{DBG_SRD}:{DBG_SRD+3}], 0 offen sc1
    s_waitcnt vmcnt(0)
    v_readfirstlane_b32 s14, v4
    s_cmp_ge_u32 s14, 48
    s_cbranch_scc1 L_rdy_ok
    s_sleep 8
    s_sub_u32 s{S_FLG}, s{S_FLG}, 1
    s_cmp_lg_u32 s{S_FLG}, 0
    s_cbranch_scc1 L_rdy_poll
    L_rdy_ok:
    s_lshl_b32 s14, s{S_XCD}, 8
    s_add_u32 s14, s14, {HCNT_OFF}
    v_mov_b32 v1, 0
    v_mov_b32 v4, 1
    v_cmp_eq_u32 vcc, 0, v0
    s_and_saveexec_b64 s[12:13], vcc
    buffer_atomic_add v4, v1, s[{SRD_WS}:{SRD_WS+3}], s14 offen
    s_mov_b64 exec, s[12:13]
    L_hsig_done:
    """)
    k.e(f"s_mov_b32 s{S_CNT}, 7")
    k.lab("L_main")
    for uu in range(1, 9):
        j = uu >> 1
        pre = None
        if uu & 1 == 0:
            pre = ["s_waitcnt vmcnt(8)", "s_barrier"]
            dm = dma_plan(kdma((j + 3) & 3))
        else:
            dm = dma_plan(vdma((j + 2) & 3))
        step(uu, f"m{uu}", dma=dm, pre=pre)
    k.e(f"s_sub_u32 s{S_CNT}, s{S_CNT}, 1")
    k.e(f"s_cmp_lg_u32 s{S_CNT}, 0")
    k.e(f"s_cbranch_scc1 L_main")
    def ta(i):
        return [f"s_and_b32 s14, s{S_IDX}, 3", f"s_mul_i32 s14, s14, {512*3584}", f"s_lshl_b32 s15, s{S_MT}, 7",
                f"s_add_u32 s14, s14, s15", f"s_add_u32 s14, s14, {i*128*3584}",
                f"buffer_load_dword v{246+(i&1)}, v250, s[{SRD_W1}:{SRD_W1+3}], s14 offen"]
    def tb(i):
        return [f"s_lshl_b32 s14, s{S_NT}, 18", f"s_lshr_b32 s15, s{S_IDX}, 2", f"s_and_b32 s15, s15, 3", f"s_lshl_b32 s15, s15, 16",
                f"s_add_u32 s14, s14, s15", f"s_add_u32 s14, s14, {HF_OFF + i*16384}",
                f"buffer_load_dword v{248+(i&1)}, v251, s[{SRD_WS}:{SRD_WS+3}], s14 offen sc1"]
    def merge(d, g, lst):
        d = dict(d) if d else {}
        d[g] = d.get(g, []) + lst
        return d
    k(f"""
    v_and_b32 v{UFL}, 7, v0
    v_lshlrev_b32 v{UFL}, 8, v{UFL}
    s_mov_b32 s14, {HCNT_OFF}
    buffer_load_dword v{UFL}, v{UFL}, s[{SRD_WS}:{SRD_WS+3}], s14 offen sc1
    """)
    step(57, "t57", dma=merge(dma_plan(vdma((28 + 2) & 3)), 29, ta(0)))
    step(58, "t58", pre=["s_waitcnt vmcnt(5)", "s_barrier", f"v_cmp_le_u32 vcc, 32, v{UFL}", "s_cmp_eq_u64 vcc, -1", "s_cbranch_scc1 L_hok", "UPOLL", "L_hok:"],
         dma=merge(merge(merge(merge(None, 3, ta(1)), 11, tb(0)), 19, ta(2)), 27, tb(1)))
    step(59, "t59", dma=merge(merge(merge(dma_plan(vdma((29 + 2) & 3)), 28, ta(3)), 29, tb(2)), 30, tb(3)))
    step(60, "t60", pre=["s_waitcnt vmcnt(11)", "s_barrier"])
    step(61, "t61")
    step(62, "t62", pre=["s_waitcnt vmcnt(3)", "s_barrier"], qk_next=False)
    step(63, "t63", do_qk=False, qk_next=False, prev7=2)
    p = 63 & 1
    k.e(f"v_add_f32 v{LL}, v{LL}, v{LS+2*p}")
    k.e(f"v_add_f32 v{LL+1}, v{LL+1}, v{LS+2*p+1}")
    for i in range(8):
        nxt = v_read(63, i + 2, i + 2) if i + 2 < 8 else []
        prevn = 2 if (i == 0 or i + 1 < 8) else 0
        k.e(f"s_waitcnt lgkmcnt({prevn})")
        db, ks = i >> 1, i & 1
        for qb in range(2):
            d = OA + (db * 2 + qb) * 16
            k.e(mfma(d, VF + (i & 3) * 4, Pbuf(p, qb, ks), d, dfile='a'))
            if qb == 0:
                for ins in nxt: k.e(ins)
    k.e("s_waitcnt lgkmcnt(0)")
    stamp()
    k(f"""
    s_waitcnt lgkmcnt(0)
    s_barrier
    """)
    def wo_ring():
        k(f"""
        s_lshl_b32 s{S_WRING}, s{S_W}, 14
        v_lshrrev_b32 v1, 4, v0
        v_mul_u32_u24 v1, {1024-256}, v1
        v_add_u32 v{DW}, v{DV}, v1
        s_lshl_b32 s{S_WOFF}, s{S_G}, 19
        s_lshl_b32 s14, s{S_W}, 8
        s_add_u32 s{S_WOFF}, s{S_WOFF}, s14
        """)
        for t in range(4):
            for ins in wdma(t, SRD_WO, 1024): k.e(ins)
    k.e(f"s_cmp_ge_u32 s{S_IDX}, 28")
    k.e("s_cbranch_scc1 L_no_g1")
    g1_phase(k, stamp, wo_ring)
    g1_finish(k)
    k.e("s_branch L_g1_done")
    k.lab("L_no_g1")
    wo_ring()
    nst[0] -= 2
    stamp(); stamp()
    k.lab("L_g1_done")
    k.e(f"s_sub_u32 s14, s{S_WRING}, {VRING}")
    for db in range(4):
        k.e(f"v_add_u32 v{WA+db}, s14, v{VA+db}")
    for qb in range(2):
        k.e(f"v_mov_b32 v{T0+qb}, v{LL+qb}")
    k.e("s_nop 1")
    for qb in range(2):
        k.e(f"v_permlane32_swap_b32 v{T0+qb}, v{LL+qb}")
    for qb in range(2):
        k.e(f"v_add_f32 v{LL+qb}, v{LL+qb}, v{T0+qb}")
    for qb in range(2):
        k.e(f"v_rcp_f32 v{LL+qb}, v{LL+qb}")
    k(f"""
    s_lshl_b32 s14, s{S_W}, 14
    s_add_u32 s14, s14, {XT}
    v_lshlrev_b32 v15, 4, v0
    v_add_u32 v14, s14, v15
    v_add_u32 v{XA}, {XT}, v15
    """)
    for db in range(4):
        for qb in range(2):
            for ks in range(2):
                tb = S0 + ((db * 4 + qb * 2 + ks) & 3) * 16
                for r in range(8):
                    k.e(f"v_accvgpr_read_b32 v{tb+r}, a{OA+(db*2+qb)*16+ks*8+r}")
                for r in range(8):
                    k.e(f"v_mul_f32 v{tb+r}, v{tb+r}, v{LL+qb}")
                for r in range(0, 8, 2):
                    k.e(f"v_cvt_pk_bf16_f32 v{tb+8+r//2}, v{tb+r}, v{tb+r+1}")
                k.e(f"ds_write_b128 v14, v[{tb+8}:{tb+11}] offset:{(2*db+ks)*2048 + qb*1024}")
    if debug == "o":
        k("""
        s_waitcnt vmcnt(0) lgkmcnt(0)
        s_barrier
        """)
        k(f"""
        s_lshl_b32 s14, s{S_RB}, 16
        s_lshl_b32 s15, s{S_W}, 14
        s_add_u32 s14, s14, s15
        v_add_u32 v13, s15, v{XA}
        """)
        for i in range(16):
            k.e(f"ds_read_b128 v[16:19], v13 offset:{i*1024}")
            k.e("s_waitcnt lgkmcnt(0)")
            k.e(f"buffer_store_dwordx4 v[16:19], v15, s[{SRD_SL}:{SRD_SL+3}], s14 offen")
            k.e("s_add_u32 s14, s14, 1024")
            k.e("s_waitcnt vmcnt(0)")
        k.e("s_endpgm")
    k("""
    s_waitcnt vmcnt(0) lgkmcnt(0)
    s_barrier
    """)
    k.e(f"s_cmp_ge_u32 s{S_IDX}, 28")
    k.e("s_cbranch_scc1 L_no_usig")
    k.e(f"s_lshl_b32 s14, s{S_NT}, 8")
    k.e(f"s_add_u32 s14, s14, {UCNT_OFF}")
    k.e(f"s_mov_b32 s15, s{S_WRING}")
    signal(k, "u", 14)
    k.e(f"s_mov_b32 s{S_WRING}, s15")
    k.lab("L_no_usig")
    stamp()
    def tw(i):
        return [f"s_and_b32 s14, s{S_IDX}, 3", f"s_mul_i32 s14, s14, {448*4096}", f"s_lshl_b32 s15, s{S_MT2}, 7",
                f"s_add_u32 s14, s14, s15", f"s_add_u32 s14, s14, {i*128*4096}",
                f"buffer_load_dword v{246+(i&1)}, v253, s[{SRD_WQ}:{SRD_WQ+3}], s14 offen"]
    ufl = [f"s_lshl_b32 s14, s{S_NT2}, 8", f"s_add_u32 s14, s14, {UCNT_OFF}", f"v_mov_b32 v{UFL}, 0",
           f"buffer_load_dword v{UFL}, v{UFL}, s[{SRD_DBG}:{SRD_DBG+3}], s14 offen sc1"]
    gen_proj(k, "o", SRD_WO, 1024, False, True, ufl + tw(0) + tw(1) + tw(2) + tw(3))
    stamp()
    vm1 = Ctr(63)
    k.e("s_waitcnt vmcnt(4) lgkmcnt(0)")
    k.e(f"v_readfirstlane_b32 s14, v{UFL}")
    k.e("s_cmp_ge_u32 s14, 28")
    k.e("s_cbranch_scc1 L_u_nopoll")
    k.e(f"s_cmp_lg_u32 s{S_W}, 0")
    k.e("s_cbranch_scc1 L_u_nopoll")
    k.e(f"s_lshl_b32 s14, s{S_NT2}, 8")
    k.e(f"s_add_u32 s14, s14, {UCNT_OFF}")
    poll(k, "u", 14, 28)
    k.lab("L_u_nopoll")
    k.e("s_barrier")
    g2_setup(k, vm1)
    k(f"""
    v_lshlrev_b32 v1, 4, v0
    s_lshl_b32 s14, s{S_RB}, 16          ; rb*65536
    s_lshl_b32 s15, s{S_W}, 14           ; w*16384
    s_add_u32 s14, s14, s15
    """)
    for cb in range(4):
        for qb in range(2):
            a = PACC + (cb * 2 + qb) * 16
            o = a
            for r in range(0, 16, 2):
                k.e(f"v_cvt_pk_bf16_f32 v{o+r//2}, v{a+r}, v{a+r+1}")
            k.e("s_nop 1")
            for pr in range(2):
                k.e(f"v_permlane32_swap_b32 v{o+4*pr}, v{o+4*pr+2}")
                k.e(f"v_permlane32_swap_b32 v{o+4*pr+1}, v{o+4*pr+3}")
            for pr in range(2):
                idx = cb * 4 + qb * 2 + pr
                k.e(f"buffer_store_dwordx4 v[{o+4*pr}:{o+4*pr+3}], v1, s[{SRD_SL}:{SRD_SL+3}], s14 offen offset:{(idx&3)*1024} sc1")
                vm1.issue(("ST", 0))
                if (idx & 3) == 3: k.e("s_add_u32 s14, s14, 4096")
    stamp()
    g2_main(k, vm1, stamp)
    if prof:
        k.e("s_waitcnt vmcnt(0)")
        stamp()
        k.e(f"s_load_dwordx2 s[12:13], s[0:1], {KA_WS}")
        k.e("s_waitcnt lgkmcnt(0)")
        srd_off(k, 4, 12, 13, 64 << 20, 1 << 20)
        k.e(f"s_lshl_b32 s14, s2, 2")
        k.e(f"s_add_u32 s14, s14, s{S_W}")
        k.e(f"s_lshl_b32 s14, s14, 7")
        for i in range(nst[0]):
            k.e(f"v_mov_b32 v2, s{64+2*i}")
            k.e(f"v_mov_b32 v3, s{65+2*i}")
            k.e(f"v_mov_b32 v1, {8*i}")
            k.e(f"buffer_store_dwordx2 v[2:3], v1, s[4:7], s14 offen")
        tl_end(k, prof, kidx)
    k.lab("L_at_done")
    k.e("s_endpgm")
    for rid, p in rare_sites:
        k.lab(f"L_rare_{rid}")
        k.e(f"s_call_b64 s[{S_RET}:{S_RET+1}], L_raresub_{p}")
        k.e(f"s_branch L_back_{rid}")
    gen_rare(k, 0)
    gen_rare(k, 1)
    return k.text(), kernel_desc(name, 512, 102, 256), f"; @launch kernel={name} grid=(256,1,1) block=(256,1,1) lds=163840"
```

```python
from common import *
import struct, math
def f2h(x):
    return "0x%08x" % struct.unpack("<I", struct.pack("<f", x))[0]

S0, S1 = 16, 48
NEGM = 80
P0, P1 = 112, 128
QF = 144
ET = 208
LS = 216
LL = 220
KA = 222
VA = 230
DK = 234
DV = 238
WA = 240
XA = 244
DW = 245
T0 = 1
PACC = 16
OA = 0
KF = 128
VF = 144
WF = 128
XF = 160
KRING, VRING, SPARE = 0, 65536, 131072
XT = 65536
S_G, S_RB, S_W = 40, 41, 42
S_KOFF, S_VOFF = 43, 44
S_M0K, S_M0V = 45, 46
S_WOFF, S_WRING = 47, 48
S_THR = 49
S_CNT = 50
S_RET = 52
SRD_K, SRD_V, SRD_WQ, SRD_WO, SRD_X, SRD_SL = 16, 20, 24, 28, 32, 36
THR_LOG2 = 60
EXPF = set()
PRE_HOOK = None
SCHED2 = False
def POL():
    for x, y in (('nt','nt'),('sc1','sc1'),('sc01','sc0 sc1'),('sc0','sc0')):
        if x in EXPF: return y
    return ''

def Sbuf(p, qb): return (S0 if p == 0 else S1) + 16 * qb
def Pbuf(p, qb, ks): return (P0 if p == 0 else P1) + 8 * qb + 4 * ks

def mfma(d, a, b, c, dfile='v', afile='a', bfile='v'):
    cs = c if isinstance(c, str) else f"{dfile}[{c}:{c+15}]"
    return f"v_mfma_f32_32x32x16_bf16 {dfile}[{d}:{d+15}], {afile}[{a}:{a+3}], {bfile}[{b}:{b+3}], {cs}"

def k_read(unit, t, ring_i):
    tile = unit >> 1
    off = (tile & 3) * 16384 + (unit & 1) * 8192
    d = KF + (ring_i & 3) * 4
    return [f"ds_read_b128 a[{d}:{d+3}], v{KA+t} offset:{off}"]

def v_read(unit, i, ring_i):
    tile = unit >> 1
    db, ks = i >> 1, i & 1
    off = (tile & 3) * 16384 + (unit & 1) * 8192 + ks * 4096
    d = VF + (ring_i & 3) * 4
    return [f"ds_read_b64_tr_b16 a[{d}:{d+1}], v{VA+db} offset:{off}",
            f"ds_read_b64_tr_b16 a[{d+2}:{d+3}], v{VA+db} offset:{off+2048}"]

LSP = {(0,0):216, (0,1):218, (1,0):252, (1,1):254}
def softmax_ops(p):
    ex, ad, cv = [], [], []
    for n in range(32):
        qb, r = n >> 4, n & 15
        e = ET + (n & 7)
        ex.append(f"v_exp_f32 v{e}, v{Sbuf(p,qb)+r}")
        ls = LS + 2 * p + qb
        pk = Pbuf(p,qb,r>>3)+((r&7)>>1)
        if 'pkadd' in EXPF:
            lp = LSP[(p, qb)]
            if r & 1 == 0: ad.append(None)
            elif r == 1: ad.append(f"v_mov_b32 v{lp}, v{e-1}\nv_mov_b32 v{lp+1}, v{e}")
            else: ad.append(f"v_pk_add_f32 v[{lp}:{lp+1}], v[{lp}:{lp+1}], v[{e-1}:{e}]")
        elif 'dot2' in EXPF:
            ad.append(None)
        elif r == 0:
            ad.append(None)
        elif r == 1:
            ad.append(f"v_add_f32 v{ls}, v{ET+((n-1)&7)}, v{e}")
        else:
            ad.append(f"v_add_f32 v{ls}, v{ls}, v{e}")
        if r & 1:
            c = f"v_cvt_pk_bf16_f32 v{pk}, v{ET+((n-1)&7)}, v{e}"
            cv.append(c)
        else:
            cv.append(None)
    return ex, ad, cv

EXP_GAP = []
def _mk():
    g = 0; n = 0
    while n < 32:
        EXP_GAP.append(g); n += 1
        if g in (3, 7):
            EXP_GAP.append(g); n += 1
        g += 1
_mk()

def gen_step(k, u, do_qk=True, do_pv=True, do_sm=True, look=None, dma=None, pre=None, rare_id=None, prev_l=True, extra=None):
    p = u & 1
    gaps = [[] for _ in range(32)]
    for i in range(8):
        rd = look(i)
        nread = len(rd)
        if 'nolds' in EXPF: rd = []
        if 'nokread' in EXPF: rd = [x for x in rd if 'tr_b16' in x]
        if 'novread' in EXPF: rd = [x for x in rd if 'tr_b16' not in x]
        for j, ins in enumerate(rd):
            gaps[4 * i + min(j, 2)].append(ins)
    if do_sm and 'nosm' in EXPF:
        gaps[31].append(f"v_cmp_lt_f32 vcc, s{S_THR}, v{LL}")
    elif do_sm:
        ex, ad, cv = softmax_ops(p)
        EG = EXP_GAP if not SCHED2 else [n - 2 for n in range(32)]
        for n in range(32):
            g = EG[n]
            if g < 0: continue
            if 'noexp' not in EXPF: gaps[g].append(ex[n])
        for n in range(32):
            g = EG[n] + 1
            if n == 0: continue
            if ad[n] and 'noadd' not in EXPF: gaps[g] += ad[n].split("\n")
            if cv[n] and 'nocvt' not in EXPF: gaps[g].append(cv[n])
            if 'dot2' in EXPF and cv[n] and g + 1 < 32:
                qb, r = n >> 4, n & 15
                pk = Pbuf(p,qb,r>>3)+((r&7)>>1)
                ls = LS + 2 * p + qb
                if r == 1: gaps[g+1].append(f"v_dot2_f32_bf16 v{ls}, v{pk}, v239, 0")
                else: gaps[g+1].append(f"v_dot2_f32_bf16 v{ls}, v{pk}, v239, v{ls}")
        if 'pkadd' in EXPF:
            gaps[30].append(f"v_add_f32 v{LS+2*p}, v{LSP[(p,0)]}, v{LSP[(p,0)]+1}") if False else None
        gaps[31].insert(0, f"v_max_f32 v{T0}, v{LS+2*p}, v{LS+2*p+1}")
        gaps[31].append(f"v_cmp_lt_f32 vcc, s{S_THR}, v{T0}")
    if prev_l:
        pp = 1 - p
        ga, gb = (3, 7) if SCHED2 else (1, 2)
        gaps[ga].append(f"v_add_f32 v{LL}, v{LL}, v{LS+2*pp}")
        gaps[gb].append(f"v_add_f32 v{LL+1}, v{LL+1}, v{LS+2*pp+1}")
    if dma and 'nodma' not in EXPF:
        for g, lst in dma.items():
            gaps[g] += lst
    nxt0 = nxt1 = None
    if SCHED2 and do_sm and do_qk:
        exn, _, _ = softmax_ops(1 - p)
        nxt0, nxt1 = exn[0], exn[1]
    if pre:
        for ins in pre:
            if ins == "UPOLL":
                PRE_HOOK(k)
            elif ins.endswith(":"):
                k.lab(ins[:-1])
            else:
                k.e(ins)
    for g in range(32):
        i, sub = g >> 2, g & 3
        if sub == 0:
            k.e(f"s_waitcnt lgkmcnt({look.outstanding(i)})" if not (EXPF & {'nolds','nokread','novread'}) else "s_waitcnt lgkmcnt(2)")
        ins = None
        if sub < 2 and do_qk:
            qb = sub
            d = Sbuf(1 - p, qb)
            c = (NEGM + 16 * qb) if i == 0 else d
            ins = mfma(d, KF + (i & 3) * 4, QF + qb * 32 + i * 4, c)
        elif sub >= 2 and do_pv:
            qb = sub - 2
            db, ks = i >> 1, i & 1
            d = OA + (db * 2 + qb) * 16
            ins = mfma(d, VF + (i & 3) * 4, Pbuf(1 - p, qb, ks), d, dfile='a')
        if ins and 'noqk' in EXPF and sub < 2: ins = None
        if ins and 'nopv' in EXPF and sub >= 2: ins = None
        if ins: k.e(ins)
        if g == 28: mark = len(k.L) - (1 if do_qk else 0)
        for f in gaps[g]: k.e(f)
        if g == 30 and nxt0:
            dist = len(k.L) - mark - 1
            if dist < 12: k.e(f"s_nop {12 - dist - 1}")
            k.e(nxt0)
        if g == 31 and nxt1:
            k.e(nxt1)
    if do_sm:
        k.e(f"s_cbranch_vccnz L_rare_{rare_id}")
        k.lab(f"L_back_{rare_id}")

class Look:
    def __init__(self, u, qk_this=True, pv_this=True, qk_next=True, pv_next=True):
        self.u = u; self.qk_this = qk_this; self.pv_this = pv_this; self.qk_next = qk_next; self.pv_next = pv_next
        self.prev_counts = None
    def __call__(self, i):
        u = self.u
        out = []
        j = i + 2
        if j < 8:
            if self.qk_this: out += k_read(u + 1, j, j)
            if self.pv_this: out += v_read(u - 1, j, j)
        else:
            if self.qk_next: out += k_read(u + 2, j - 8, j)
            if self.pv_next: out += v_read(u, j - 8, j)
        return out
    def count(self, i):
        return len(self(i))
    def outstanding(self, i):
        if i == 0:
            return self.prev7
        return self.count(i - 1)

def gen_rare(k, p):
    k.lab(f"L_raresub_{p}")
    k.e("s_nop 15")
    k.e("s_nop 7")
    for qb in range(2):
        S = Sbuf(p, qb); SN = Sbuf(1 - p, qb)
        t, t2, f = T0, T0 + 1, T0 + 2
        k.e(f"v_max3_f32 v{t}, v{S}, v{S+1}, v{S+2}")
        for r in range(3, 15, 2):
            k.e(f"v_max3_f32 v{t}, v{t}, v{S+r}, v{S+r+1}")
        k.e(f"v_max_f32 v{t}, v{t}, v{S+15}")
        k.e(f"v_mov_b32 v{t2}, v{t}")
        k.e("s_nop 1")
        k.e(f"v_permlane32_swap_b32 v{t2}, v{t}")
        k.e(f"v_max3_f32 v{t}, v{t}, v{t2}, 0")
        k.e(f"v_exp_f32 v{f}, -v{t}")
        k.e("s_nop 0")
        k.e(f"v_mul_f32 v{LL+qb}, v{LL+qb}, v{f}")
        for db in range(4):
            for r in range(16):
                a = OA + (db * 2 + qb) * 16 + r
                k.e(f"v_accvgpr_read_b32 v{T0+3+(r&3)}, a{a}")
                k.e(f"v_mul_f32 v{T0+3+(r&3)}, v{T0+3+(r&3)}, v{f}")
                k.e(f"v_accvgpr_write_b32 a{a}, v{T0+3+(r&3)}")
        for r in range(16):
            k.e(f"v_sub_f32 v{NEGM+16*qb+r}, v{NEGM+16*qb+r}, v{t}")
            k.e(f"v_sub_f32 v{SN+r}, v{SN+r}, v{t}")
            k.e(f"v_sub_f32 v{S+r}, v{S+r}, v{t}")
        ls = LS + 2 * p + qb
        for r in range(0, 16, 2):
            k.e(f"v_exp_f32 v{ET}, v{S+r}")
            k.e(f"v_exp_f32 v{ET+1}, v{S+r+1}")
            k.e("s_nop 0")
            if r == 0:
                k.e(f"v_add_f32 v{ls}, v{ET}, v{ET+1}")
            else:
                k.e(f"v_add_f32 v{ls}, v{ls}, v{ET}")
                k.e(f"v_add_f32 v{ls}, v{ls}, v{ET+1}")
            k.e(f"v_cvt_pk_bf16_f32 v{Pbuf(p,qb,r>>3)+((r&7)>>1)}, v{ET}, v{ET+1}")
    if SCHED2:
        k.e(f"v_exp_f32 v{ET}, v{Sbuf(1-p,0)}")
        k.e(f"v_exp_f32 v{ET+1}, v{Sbuf(1-p,0)+1}")
    k.e("s_nop 1")
    k.e(f"s_setpc_b64 s[{S_RET}:{S_RET+1}]")

def gen_proj(k, tag, srd, RS, natural, dma_pre_issued, late=None, after_body0=None):
    bp_off = 1024 if natural else 2048
    def dma(t):
        out = [f"s_add_u32 m0, s{S_WRING}, {(t&3)*4096}"]
        for i in range(4):
            if i == 0:
                out.append("s_nop 0")
                out.append(f"buffer_load_dwordx4 v{DW}, s[{srd}:{srd+3}], s{S_WOFF} offen lds")
            else:
                out.append(f"s_add_u32 s{S_WOFF}, s{S_WOFF}, {4*RS-1024}")
                out.append(f"buffer_load_dwordx4 v{DW}, s[{srd}:{srd+3}], s{S_WOFF} offen offset:{1024*i} lds")
        out.append(f"s_add_u32 s{S_WOFF}, s{S_WOFF}, {4*RS+3072}")
        return out
    def reads(t, tt):
        st = t & 1
        out = []
        for qb in range(2):
            d = XF + st * 8 + qb * 4
            out.append(f"ds_read_b128 a[{d}:{d+3}], v{XA} offset:{tt*2048 + qb*1024}")
        for db in range(4):
            for bp in range(2):
                d = WF + st * 16 + db * 4 + bp * 2
                out.append(f"ds_read_b64_tr_b16 a[{d}:{d+1}], v{WA+db} offset:{(t&3)*4096 + bp*bp_off}")
        return out
    def kstep(t_in_body, first, do_read_next, do_dma, vmn):
        t = t_in_body
        st = t & 1
        k.e(f"s_waitcnt vmcnt({vmn}) lgkmcnt(0)")
        rd = reads(t + 1, t + 1) if do_read_next else []
        dm = dma(t) if do_dma else []
        fill = [[] for _ in range(8)]
        for j, ins in enumerate(rd):
            fill[j // 2].append(ins)
        per = [dm[0:3], dm[3:5], dm[5:7], dm[7:]] if dm else [[], [], [], []]
        for j in range(4):
            fill[4 + j] += per[j]
        for db in range(4):
            for qb in range(2):
                d = PACC + (db * 2 + qb) * 16
                c = "0" if first else d
                k.e(mfma(d, WF + st * 16 + db * 4, XF + st * 8 + qb * 4, c, dfile='v', afile='a', bfile='a'))
                for f in fill[db * 2 + qb]: k.e(f)
    if not dma_pre_issued:
        for t in range(4):
            for ins in dma(t): k.e(ins)
    k.e("s_waitcnt vmcnt(12)")
    for ins in reads(0, 0): k.e(ins)
    for t in range(4):
        kstep(t, t == 0, True, True, 8)
    if after_body0: after_body0()
    k.e(f"v_add_u32 v{XA}, 8192, v{XA}")
    k.e(f"s_mov_b32 s{S_CNT}, 6")
    k.lab(f"L_proj_{tag}")
    for t in range(4):
        kstep(t, False, True, True, 8)
    k.e(f"v_add_u32 v{XA}, 8192, v{XA}")
    k.e(f"s_sub_u32 s{S_CNT}, s{S_CNT}, 1")
    k.e(f"s_cmp_lg_u32 s{S_CNT}, 0")
    k.e(f"s_cbranch_scc1 L_proj_{tag}")
    nl = 0
    if late:
        for ins in late: k.e(ins)
        nl = sum(1 for x in late if x.startswith("buffer_load"))
    for t in range(4):
        kstep(t, False, t < 3, False, [8 + nl, 4 + nl, nl, nl][t])


LOG2E = 1.4426950408889634
SRD_W1, SRD_WS = 56, 60
S_MT, S_NT = 54, 55
S_TA, S_TB, S_TW = 51, 10, 11

def bf16r(k, a, b, t):
    k.e(f"v_cvt_pk_bf16_f32 v{t}, v{a}, v{b}")
    k.e(f"v_lshlrev_b32 v{a}, 16, v{t}")
    k.e(f"v_and_b32 v{b}, 0xffff0000, v{t}")

G1_PF = 10
def g1_prologue(k, vm):
    RS, NKS, NKST = 3584, 32, 128
    PF, NS, NB = G1_PF, G1_PF + 2, G1_PF + 1
    k(f"""
    s_load_dwordx2 s[8:9], s[0:1], {KA_B1}
    v_lshrrev_b32 v3, 3, v0
    v_and_b32 v4, 7, v0
    v_lshrrev_b32 v5, 1, v3
    v_and_b32 v5, 1, v5
    v_lshlrev_b32 v5, 2, v5
    v_xor_b32 v4, v4, v5
    s_movk_i32 s49, {RS}
    v_mul_lo_u32 v3, v3, s49
    v_lshl_add_u32 v208, v4, 4, v3       ; voffA
    v_lshlrev_b32 v209, 4, v0            ; voffB
    v_lshrrev_b32 v3, 5, v0             ; hf
    v_bfe_u32 v4, v0, 4, 1              ; csub
    v_bfe_u32 v5, v0, 2, 2              ; r
    v_and_b32 v6, 3, v0                 ; c
    v_lshlrev_b32 v7, 3, v3
    v_add_u32 v7, v7, v5
    v_lshlrev_b32 v7, 7, v7
    v_lshl_add_u32 v7, v4, 5, v7
    v_lshl_add_u32 v7, v6, 3, v7
    s_mul_i32 s46, s{S_W}, {NS*2048}
    v_add_u32 v7, s46, v7
    v_lshrrev_b32 v8, 1, v5
    v_lshlrev_b32 v9, 6, v8
    v_add_u32 v210, v7, v9
    v_xor_b32 v9, 64, v9
    v_add_u32 v211, v7, v9
    v_lshlrev_b32 v212, 3, v3            ; hf*8
    s_mul_i32 s43, s{S_W}, {NKS*16*RS}
    s_lshl_b32 s49, s{S_MT}, 7
    s_add_u32 s43, s43, s49
    s_add_u32 s47, s43, {8*RS-1024}
    s_lshl_b32 s44, s{S_NT}, 1
    s_mul_i32 s44, s44, {NKST}
    s_mul_i32 s49, s{S_W}, {NKS}
    s_add_u32 s44, s44, s49
    s_lshl_b32 s44, s44, 10
    s_add_u32 s44, s44, {HF_OFF}
    s_add_u32 s45, s44, {NKST*1024}
    """)
    for ks in range(PF):
        g1_issue(k, vm, ks)
    k(f"""
    s_lshr_b32 s48, s{S_W}, 1
    s_lshl_b32 s48, s48, 6
    s_lshl_b32 s49, s{S_MT}, 7
    s_add_u32 s48, s48, s49
    s_waitcnt lgkmcnt(0)
    s_mov_b32 s4, s8
    s_mov_b32 s5, s9
    s_mov_b32 s6, {1792*2}
    s_mov_b32 s7, 0x00020000
    """)
    for b in range(4):
        k.e(f"buffer_load_dwordx2 v[{214+2*b}:{215+2*b}], v212, s[4:7], s48 offen offset:{16*b}")
        vm.issue(("E", 0))

def g1_issue(k, vm, ks):
    RS = 3584
    NS, NB = G1_PF + 2, G1_PF + 1
    slot = ks % NS
    k.e(f"s_add_u32 m0, s46, {slot*2048}")
    bs = (ks % NB) * 8
    k.e(f"buffer_load_dwordx4 a[{bs}:{bs+3}], v209, s[{SRD_WS}:{SRD_WS+3}], s44 offen")
    vm.issue(("B", ks))
    k.e(f"buffer_load_dwordx4 v208, s[{SRD_W1}:{SRD_W1+3}], s43 offen lds")
    vm.issue(("A", ks))
    k.e(f"buffer_load_dwordx4 v208, s[{SRD_W1}:{SRD_W1+3}], s47 offen offset:1024 lds")
    vm.issue(("A", ks))
    k.e(f"buffer_load_dwordx4 a[{bs+4}:{bs+7}], v209, s[{SRD_WS}:{SRD_WS+3}], s45 offen")
    vm.issue(("B", ks))
    k.e(f"s_add_u32 s43, s43, {16*RS}")
    k.e(f"s_add_u32 s47, s47, {16*RS}")
    k.e(f"s_add_u32 s44, s44, 1024")
    k.e(f"s_add_u32 s45, s45, 1024")

def g1_main(k, vm):
    NKS = 32
    PF, NS, NB = G1_PF, G1_PF + 2, G1_PF + 1
    ACC, AF = 16, 96
    def tr(ks):
        slot = ks % NS
        out = []
        for mb in range(2):
            for bp in range(2):
                d = AF + (ks & 1) * 8 + mb * 4 + bp * 2
                out.append(f"ds_read_b64_tr_b16 a[{d}:{d+1}], v{210+mb} offset:{slot*2048 + bp*512}")
        return out
    n = vm.need(lambda t: t == ("A", 0))
    k.e(f"s_waitcnt vmcnt({n})")
    for ins in tr(0): k.e(ins)
    for ks in range(NKS):
        n = vm.need(lambda t: (t[0] == "A" and t[1] <= ks + 1) or (t[0] == "B" and t[1] <= ks))
        k.e("s_waitcnt lgkmcnt(0)" if n is None else f"s_waitcnt vmcnt({n}) lgkmcnt(0)")
        bs = (ks % NB) * 8
        fill = tr(ks + 1) if ks + 1 < NKS else []
        mf = []
        for mb in range(2):
            for nb in range(2):
                d = ACC + (mb * 2 + nb) * 16
                mf.append(mfma(d, AF + (ks & 1) * 8 + mb * 4, bs + nb * 4, "0" if ks == 0 else d, dfile='v', afile='a', bfile='a'))
        k.e(mf[0])
        for ins in fill[:2]: k.e(ins)
        k.e(mf[1])
        for ins in fill[2:]: k.e(ins)
        k.e(mf[2])
        if ks + PF < NKS:
            g1_issue(k, vm, ks + PF)
        k.e(mf[3])
    k.e("s_nop 7")
    k.e("s_barrier")
    k(f"""
    s_lshl_b32 s48, s{S_W}, 14
    v_add_u32 v3, s48, v209
    s_nop 4
    """)
    for blk in range(4):
        for q in range(4):
            r = ACC + blk * 16 + q * 4
            k.e(f"ds_write_b128 v3, v[{r}:{r+3}] offset:{blk*4096 + q*1024}")
    k(f"""
    s_lshl_b32 s48, s{S_W}, 12
    v_add_u32 v3, s48, v209
    s_waitcnt vmcnt(0) lgkmcnt(0)
    s_barrier
    """)
    for src in range(4):
        for q in range(4):
            r = ACC + src * 16 + q * 4
            k.e(f"ds_read_b128 v[{r}:{r+3}], v3 offset:{src*16384 + q*1024}")
    for b in range(4):
        k.e(f"v_lshlrev_b32 v{80+4*b}, 16, v{214+2*b}")
        k.e(f"v_and_b32 v{81+4*b}, 0xffff0000, v{214+2*b}")
        k.e(f"v_lshlrev_b32 v{82+4*b}, 16, v{215+2*b}")
        k.e(f"v_and_b32 v{83+4*b}, 0xffff0000, v{215+2*b}")
    c1 = -2.0 * 0.7978845608028654 * LOG2E
    k.e(f"s_mov_b32 s48, {f2h(c1)}")
    k.e(f"s_mov_b32 s49, {f2h(c1*0.044715)}")
    k.e(f"v_mov_b32 v96, s48")
    k.e("s_waitcnt lgkmcnt(0)")
    Y = ACC
    for r in range(16):
        k.e(f"v_add_f32 v{Y+r}, v{Y+r}, v{Y+16+r}")
        k.e(f"v_add_f32 v{Y+32+r}, v{Y+32+r}, v{Y+48+r}")
    for r in range(16):
        k.e(f"v_add_f32 v{Y+r}, v{Y+r}, v{Y+32+r}")
    for r in range(0, 16, 2):
        bf16r(k, Y + r, Y + r + 1, 4 + (r & 2))
    for r in range(16):
        k.e(f"v_add_f32 v{Y+r}, v{Y+r}, v{80+r}")
    for r in range(0, 16, 2):
        bf16r(k, Y + r, Y + r + 1, 4 + (r & 2))
    T = Y + 16
    for r in range(16):
        k.e(f"v_mul_f32 v{T+r}, v{Y+r}, v{Y+r}")
    for r in range(16):
        k.e(f"v_fma_f32 v{T+r}, v{T+r}, s49, v96")
    for r in range(16):
        k.e(f"v_mul_f32 v{T+r}, v{T+r}, v{Y+r}")
    for r in range(16):
        k.e(f"v_exp_f32 v{T+r}, v{T+r}")
    for r in range(16):
        k.e(f"v_add_f32 v{T+r}, 1.0, v{T+r}")
    for r in range(16):
        k.e(f"v_rcp_f32 v{T+r}, v{T+r}")
    for r in range(16):
        k.e(f"v_mul_f32 v{Y+r}, v{Y+r}, v{T+r}")
    for r in range(0, 16, 2):
        k.e(f"v_cvt_pk_bf16_f32 v{100 + r//2}, v{Y+r}, v{Y+r+1}")
    k(f"""
    s_and_b32 s48, s{S_W}, 1
    s_lshl_b32 s49, s{S_NT}, 1
    s_add_u32 s48, s48, s49
    s_mul_i32 s48, s48, 112
    s_lshl_b32 s49, s{S_MT}, 2
    s_add_u32 s48, s48, s49
    s_lshr_b32 s49, s{S_W}, 1
    s_lshl_b32 s49, s49, 1
    s_add_u32 s48, s48, s49
    s_lshl_b32 s48, s48, 10
    s_add_u32 s48, s48, {UF_OFF}
    buffer_store_dwordx4 v[100:103], v209, s[{SRD_WS}:{SRD_WS+3}], s48 offen
    buffer_store_dwordx4 v[104:107], v209, s[{SRD_WS}:{SRD_WS+3}], s48 offen offset:1024
    """)

def gen_main(name="main_kernel", debug=None, prof=False, l2pf=True, kidx=1):
    k = Em()
    nst = [0]
    def stamp():
        if not prof: return
        i = nst[0]; nst[0] += 1
        k.e(f"s_memtime s[{64+2*i}:{65+2*i}]")
        k.e(f"s_memrealtime s[100:101]")
        k.e("s_waitcnt lgkmcnt(0)")
        k.e(f"s_mov_b32 s{65+2*i}, s100")
    k.L.append(kernel_header(name))
    cscale = math.log2(math.e) / math.sqrt(128.0)
    tl_begin(k, prof)
    k(f"""
    s_cmp_ge_u32 s2, 256
    s_cbranch_scc1 L_at_done
    s_load_dwordx2 s[4:5], s[0:1], {KA_K}
    s_load_dwordx2 s[6:7], s[0:1], {KA_V}
    s_load_dwordx2 s[8:9], s[0:1], {KA_WQ}
    s_load_dwordx2 s[10:11], s[0:1], {KA_WO}
    s_load_dwordx2 s[12:13], s[0:1], {KA_WS}
    v_lshrrev_b32 v1, 6, v0
    v_and_b32 v0, 63, v0
    s_and_b32 s{S_G}, s2, 7
    v_readfirstlane_b32 s{S_W}, v1
    s_lshr_b32 s{S_RB}, s2, 3
    s_lshl_b32 s14, s{S_G}, 19          ; g*524288
    s_lshl_b32 s15, s{S_RB}, 16         ; rb*65536
    s_lshl_b32 s3, s{S_G}, 21           ; g*2MB
    s_add_u32 s3, s3, {SLAB_OFF}
    s_waitcnt lgkmcnt(0)
    """)
    stamp()
    srd_off(k, SRD_K, 4, 5, "s14", 524288)
    srd_off(k, SRD_V, 6, 7, "s14", 524288)
    srd(k, SRD_WQ, 8, 9, 4194304)
    srd(k, SRD_WO, 10, 11, 4194304)
    srd_off(k, SRD_X, 12, 13, "s15", 65536)
    srd_off(k, SRD_SL, 12, 13, "s3", 2097152)
    srd(k, SRD_WS, 12, 13, 8 << 20)
    k(f"""
    s_load_dwordx2 s[4:5], s[0:1], {KA_W1}
    s_load_dwordx2 s[6:7], s[0:1], {KA_W2}
    s_and_b32 s{S_NT}, s{S_G}, 1
    s_lshl_b32 s{S_NT}, s{S_NT}, 2
    s_and_b32 s14, s{S_RB}, 3
    s_add_u32 s{S_NT}, s{S_NT}, s14
    s_lshr_b32 s{S_MT}, s{S_G}, 1
    s_mul_i32 s{S_MT}, s{S_MT}, 7
    s_lshr_b32 s14, s{S_RB}, 2
    s_add_u32 s{S_MT}, s{S_MT}, s14
    s_waitcnt lgkmcnt(0)
    """)
    srd(k, SRD_W1, 4, 5, 2048 * 3584)
    k.e("s_mov_b32 s8, s6")
    k.e("s_mov_b32 s9, s7")
    if l2pf:
        k(f"""
        s_lshl_b32 s14, s{S_W}, 6
        v_add_u32 v1, s14, v0               ; tid
        v_lshrrev_b32 v2, 4, v1
        v_and_b32 v3, 15, v1
        v_lshlrev_b32 v2, 13, v2
        v_lshl_add_u32 v250, v3, 6, v2
        s_lshl_b32 s14, s{S_RB}, 17         ; rb*16*8192
        s_lshl_b32 s15, s{S_G}, 10
        s_add_u32 s14, s14, s15
        buffer_load_dword v246, v250, s[{SRD_WQ}:{SRD_WQ+3}], s14 offen
        v_lshlrev_b32 v251, 6, v1           ; tid*64
        """)
    k(f"""
    v_lshrrev_b32 v1, 4, v0             ; l>>4 (0..3)
    v_and_b32 v2, 15, v0                ; p = l&15
    ; DV: (l>>4)*256 + ((p ^ ((l>>4)<<2))*16)
    v_lshlrev_b32 v3, 2, v1
    v_xor_b32 v3, v2, v3
    v_lshlrev_b32 v3, 4, v3
    v_lshl_add_u32 v{DV}, v1, 8, v3
    v_lshl_add_u32 v{DW}, v1, 13, v3
    """)
    for i in range(4):
        k(f"""
        v_add_u32 v4, {4*i}, v1
        v_xor_b32 v4, v2, v4
        v_lshlrev_b32 v4, 4, v4
        v_lshl_add_u32 v{DK+i}, v1, 8, v4
        """)
    k(f"""
    v_and_b32 v4, 31, v0
    v_lshrrev_b32 v5, 5, v0             ; hf
    v_xor_b32 v6, v5, v2
    v_lshlrev_b32 v7, 8, v4
    """)
    for t in range(8):
        k.e(f"v_xor_b32 v8, {2*t}, v6")
        k.e(f"v_lshl_add_u32 v{KA+t}, v8, 4, v7")
    k(f"""
    v_bfe_u32 v8, v0, 2, 2              ; r
    v_bfe_u32 v9, v0, 4, 1              ; csub
    v_and_b32 v10, 3, v0                ; c
    v_lshl_add_u32 v11, v5, 2, v8       ; 4hf + r
    v_lshlrev_b32 v11, 8, v11
    v_lshl_add_u32 v11, v9, 5, v11
    v_lshl_add_u32 v12, v10, 3, v11
    """)
    for db in range(4):
        k.e(f"v_xor_b32 v13, {db}, v8")
        k.e(f"v_lshl_add_u32 v13, v13, 6, v12")
        k.e(f"v_add_u32 v{VA+db}, {VRING}, v13")
    k(f"""
    s_and_b32 s14, s{S_W}, 1
    s_lshl_b32 s14, s14, 14
    s_lshr_b32 s15, s{S_W}, 1
    s_mul_i32 s15, s15, {131072-32768}
    s_add_u32 s{S_WRING}, s14, s15
    s_add_u32 s{S_WRING}, s{S_WRING}, 32768
    v_lshl_add_u32 v11, v5, 3, v8
    v_lshlrev_b32 v11, 8, v11
    v_lshl_add_u32 v11, v9, 5, v11
    v_and_b32 v13, 1, v10
    v_lshrrev_b32 v14, 1, v10
    v_lshl_or_b32 v13, v13, 1, v14      ; sigma(c)
    v_lshl_add_u32 v11, v13, 3, v11
    v_add_u32 v11, s{S_WRING}, v11
    """)
    for db in range(4):
        k.e(f"v_xor_b32 v13, {db}, v8")
        k.e(f"v_lshl_add_u32 v{WA+db}, v13, 6, v11")
    k(f"""
    v_lshlrev_b32 v15, 4, v0            ; lane*16
    v_add_u32 v{XA}, {XT}, v15
    s_lshl_b32 s14, s{S_W}, 14
    s_add_u32 m0, s14, {XT}
    s_nop 0
    """)
    for c4 in range(4):
        for i in range(4):
            so = "s14"
            k.e(f"buffer_load_dwordx4 v15, s[{SRD_X}:{SRD_X+3}], s14 offen offset:{1024*i} lds")
        if c4 < 3:
            k.e("s_add_u32 s14, s14, 4096")
            k.e("s_add_u32 m0, m0, 4096")
            k.e("s_nop 0")
    k(f"""
    s_lshl_b32 s14, s{S_G}, 2
    s_add_u32 s14, s14, s{S_W}
    s_lshl_b32 s{S_WOFF}, s14, 8
    """)
    def wdma(t, srd, RS):
        out = [f"s_add_u32 m0, s{S_WRING}, {(t&3)*4096}"]
        for i in range(4):
            if i == 0:
                out.append("s_nop 0")
                out.append(f"buffer_load_dwordx4 v{DW}, s[{srd}:{srd+3}], s{S_WOFF} offen lds")
            else:
                out.append(f"s_add_u32 s{S_WOFF}, s{S_WOFF}, {4*RS-1024}")
                out.append(f"buffer_load_dwordx4 v{DW}, s[{srd}:{srd+3}], s{S_WOFF} offen offset:{1024*i} lds")
        out.append(f"s_add_u32 s{S_WOFF}, s{S_WOFF}, {4*RS+3072}")
        return out
    k(f"""
    s_lshl_b32 s{S_KOFF}, s{S_W}, 12          ; w*4096
    s_mov_b32 s{S_M0K}, s{S_KOFF}
    s_add_u32 s{S_M0V}, s{S_KOFF}, {VRING}
    s_mov_b32 s{S_VOFF}, s{S_KOFF}
    """)
    def kdma(slot):
        out = [f"s_add_u32 m0, s{S_M0K}, {slot*16384}", "s_nop 0"]
        for i in range(4):
            out.append(f"buffer_load_dwordx4 v{DK+i}, s[{SRD_K}:{SRD_K+3}], s{S_KOFF} offen offset:{1024*i} {POL()} lds")
        out.append(f"s_add_u32 s{S_KOFF}, s{S_KOFF}, 16384")
        return out
    def vdma(slot):
        out = [f"s_add_u32 m0, s{S_M0V}, {slot*16384}", "s_nop 0"]
        for i in range(4):
            out.append(f"buffer_load_dwordx4 v{DV}, s[{SRD_V}:{SRD_V+3}], s{S_VOFF} offen offset:{1024*i} {POL()} lds")
        out.append(f"s_add_u32 s{S_VOFF}, s{S_VOFF}, 16384")
        return out
    for ins in kdma(0) + kdma(1): k.e(ins)
    for t in range(4):
        for ins in wdma(t, SRD_WQ, 8192): k.e(ins)
    k.e("s_waitcnt vmcnt(16)")
    k.e("s_barrier")
    stamp()
    late = []
    if l2pf:
        late = [f"s_lshl_b32 s14, s{S_RB}, 14",
                f"buffer_load_dword v247, v251, s[{SRD_K}:{SRD_K+3}], s14 offen",
                f"buffer_load_dword v248, v251, s[{SRD_V}:{SRD_V+3}], s14 offen",
                f"s_lshl_b32 s15, s{S_G}, 19",
                "s_add_u32 s14, s14, s15",
                f"buffer_load_dword v249, v251, s[{SRD_WO}:{SRD_WO+3}], s14 offen"]
    gen_proj(k, "q", SRD_WQ, 8192, True, True, late)
    stamp()
    k(f"""
    s_waitcnt vmcnt({3 if l2pf else 0}) lgkmcnt(0)
    s_barrier
    """)
    for ins in vdma(0) + kdma(2) + vdma(1): k.e(ins)
    srd(k, SRD_WQ, 8, 9, 1792 * 4096)
    k(f"""
    s_lshl_b32 s14, s{S_W}, 6
    v_add_u32 v1, s14, v0                       ; tid
    v_lshrrev_b32 v2, 1, v1
    s_movk_i32 s14, 3584
    v_mul_lo_u32 v2, v2, s14
    v_and_b32 v3, 1, v1
    v_lshl_add_u32 v250, v3, 6, v2
    s_and_b32 s14, s{S_RB}, 3
    s_mul_i32 s{S_TA}, s14, {512*3584}
    s_lshl_b32 s14, s{S_MT}, 7
    s_add_u32 s{S_TA}, s{S_TA}, s14
    s_lshl_b32 s{S_TB}, s{S_NT}, 18             ; nt*2*128*1024
    s_add_u32 s{S_TB}, s{S_TB}, {HF_OFF}
    s_lshr_b32 s14, s{S_RB}, 2
    s_and_b32 s14, s14, 3
    s_lshl_b32 s14, s14, 16
    s_add_u32 s{S_TB}, s{S_TB}, s14
    s_lshl_b32 s{S_TW}, s2, 15                  ; wg*32768
    """)
    k.e(f"s_mov_b32 s14, {f2h(cscale)}")
    k.e(f"s_mov_b32 s15, {f2h(cscale)}")
    k.e("s_nop 7")
    for db in range(4):
        for qb in range(2):
            a = PACC + (db * 2 + qb) * 16
            for r in range(0, 16, 2):
                k.e(f"v_pk_mul_f32 v[{a+r}:{a+r+1}], v[{a+r}:{a+r+1}], s[14:15]")
            for r in range(0, 16, 2):
                q = QF + qb * 32 + (2 * db + (r >> 3)) * 4 + ((r & 7) >> 1)
                k.e(f"v_cvt_pk_bf16_f32 v{q}, v{a+r}, v{a+r+1}")
    if debug == "q":
        k(f"""
        s_lshl_b32 s14, s{S_RB}, 2
        s_add_u32 s14, s14, s{S_W}
        s_mul_i32 s14, s14, 16384
        v_lshlrev_b32 v1, 2, v0
        """)
        for i in range(64):
            k.e(f"buffer_store_dword v{QF+i}, v1, s[{SRD_SL}:{SRD_SL+3}], s14 offen offset:{(i&15)*256}")
            if (i & 15) == 15: k.e("s_add_u32 s14, s14, 4096")
        k.e("s_waitcnt vmcnt(0)")
        k.e("s_endpgm")
    for t in range(4):
        for ins in k_read(0, t, t): k.e(ins)
    for t in range(8):
        k.e(f"s_waitcnt lgkmcnt({min(3, 7-t)})")
        for qb in range(2):
            d = Sbuf(0, qb)
            k.e(mfma(d, KF + (t & 3) * 4, QF + qb * 32 + t * 4, "0" if t == 0 else d))
        if t + 4 < 8:
            for ins in k_read(0, t + 4, t + 4): k.e(ins)
    for i in range(128):
        k.e(f"v_accvgpr_write_b32 a{OA+i}, 0")
    k.e(f"v_mov_b32 v{LL}, 0")
    k.e(f"v_mov_b32 v{LL+1}, 0")
    k.e(f"v_mov_b32 v{LS+2}, 0")
    k.e(f"v_mov_b32 v{LS+3}, 0")
    k.e(f"s_mov_b32 s{S_THR}, {f2h(2.0**THR_LOG2)}")
    k.e("v_mov_b32 v239, 0x3f803f80")
    for qb in range(2):
        S = Sbuf(0, qb)
        t, t2 = T0, T0 + 1
        k.e(f"v_max3_f32 v{t}, v{S}, v{S+1}, v{S+2}")
        for r in range(3, 15, 2):
            k.e(f"v_max3_f32 v{t}, v{t}, v{S+r}, v{S+r+1}")
        k.e(f"v_max_f32 v{t}, v{t}, v{S+15}")
        k.e(f"v_mov_b32 v{t2}, v{t}")
        k.e("s_nop 1")
        k.e(f"v_permlane32_swap_b32 v{t2}, v{t}")
        k.e(f"v_max_f32 v{t}, v{t}, v{t2}")
        for r in range(16):
            k.e(f"v_sub_f32 v{S+r}, v{S+r}, v{t}")
            k.e(f"v_sub_f32 v{NEGM+16*qb+r}, 0, v{t}")
    k.e("s_waitcnt vmcnt(8)")
    k.e("s_barrier")
    stamp()
    for ins in k_read(1, 0, 0) + k_read(1, 1, 1): k.e(ins)
    rare_sites = []
    def dma_plan(lst):
        return {8: [lst[0]], 11: [lst[2]], 15: [lst[3]], 19: [lst[4]], 23: [lst[5]], 27: [lst[6]]}
    def step(u, rid, **kw):
        S = dict(do_qk=True, do_pv=True, qk_next=True, pv_next=True, dma=None, pre=None, prev7=3)
        S.update(kw)
        lk = Look(u, S['do_qk'], S['do_pv'], S['qk_next'], S['pv_next'])
        lk.prev7 = S['prev7']
        gen_step(k, u, S['do_qk'], S['do_pv'], True, lk, S['dma'], S['pre'], rid)
        rare_sites.append((rid, u & 1))
    step(0, "s0", do_pv=False, dma=dma_plan(kdma(3)), prev7=1)
    k.e(f"s_mov_b32 s{S_CNT}, 7")
    k.lab("L_main")
    for uu in range(1, 9):
        j = uu >> 1
        pre = None
        if uu & 1 == 0:
            pre = ["s_waitcnt vmcnt(8)", "s_barrier"]
            dm = dma_plan(kdma((j + 3) & 3))
        else:
            dm = dma_plan(vdma((j + 2) & 3))
        step(uu, f"m{uu}", dma=dm, pre=pre)
        if l2pf and uu == 3:
            k(f"""
            s_cmp_gt_u32 s{S_CNT}, 4
            s_cbranch_scc1 L_notA
            s_cmp_ge_u32 s{S_RB}, 28
            s_cbranch_scc1 L_notA
            buffer_load_dword v246, v250, s[{SRD_W1}:{SRD_W1+3}], s{S_TA} offen
            buffer_load_dword v247, v251, s[{SRD_WS}:{SRD_WS+3}], s{S_TB} offen
            s_add_u32 s{S_TA}, s{S_TA}, {128*3584}
            s_add_u32 s{S_TB}, s{S_TB}, 16384
            L_notA:
            """)
        if l2pf and uu == 7:
            k(f"""
            s_cmp_gt_u32 s{S_CNT}, 2
            s_cbranch_scc1 L_notW
            s_cmp_ge_u32 s2, 224
            s_cbranch_scc1 L_notW
            buffer_load_dword v248, v251, s[{SRD_WQ}:{SRD_WQ+3}], s{S_TW} offen
            s_add_u32 s{S_TW}, s{S_TW}, 16384
            L_notW:
            """)
    k.e(f"s_sub_u32 s{S_CNT}, s{S_CNT}, 1")
    k.e(f"s_cmp_lg_u32 s{S_CNT}, 0")
    k.e(f"s_cbranch_scc1 L_main")
    step(57, "t57", dma=dma_plan(vdma((28 + 2) & 3)))
    step(58, "t58", pre=["s_waitcnt vmcnt(8)", "s_barrier"])
    step(59, "t59", dma=dma_plan(vdma((29 + 2) & 3)))
    step(60, "t60", pre=["s_waitcnt vmcnt(4)", "s_barrier"])
    step(61, "t61")
    step(62, "t62", pre=["s_waitcnt vmcnt(0)", "s_barrier"], qk_next=False)
    step(63, "t63", do_qk=False, qk_next=False, prev7=2)
    p = 63 & 1
    k.e(f"v_add_f32 v{LL}, v{LL}, v{LS+2*p}")
    k.e(f"v_add_f32 v{LL+1}, v{LL+1}, v{LS+2*p+1}")
    for i in range(8):
        nxt = v_read(63, i + 2, i + 2) if i + 2 < 8 else []
        prevn = 2 if (i == 0 or i + 1 < 8) else 0
        k.e(f"s_waitcnt lgkmcnt({prevn})")
        db, ks = i >> 1, i & 1
        for qb in range(2):
            d = OA + (db * 2 + qb) * 16
            k.e(mfma(d, VF + (i & 3) * 4, Pbuf(p, qb, ks), d, dfile='a'))
            if qb == 0:
                for ins in nxt: k.e(ins)
    k.e("s_waitcnt lgkmcnt(0)")
    stamp()
    k(f"""
    s_waitcnt lgkmcnt(0)
    s_barrier
    s_lshl_b32 s{S_WRING}, s{S_W}, 14
    v_lshrrev_b32 v1, 4, v0
    v_mul_u32_u24 v1, {1024-256}, v1
    v_add_u32 v{DW}, v{DV}, v1
    ; soffset = g*512*1024 + w*256
    s_lshl_b32 s{S_WOFF}, s{S_G}, 19
    s_lshl_b32 s14, s{S_W}, 8
    s_add_u32 s{S_WOFF}, s{S_WOFF}, s14
    """)
    for t in range(4):
        for ins in wdma(t, SRD_WO, 1024): k.e(ins)
    k.e(f"s_sub_u32 s14, s{S_WRING}, {VRING}")
    for db in range(4):
        k.e(f"v_add_u32 v{WA+db}, s14, v{VA+db}")
    for qb in range(2):
        k.e(f"v_mov_b32 v{T0+qb}, v{LL+qb}")
    k.e("s_nop 1")
    for qb in range(2):
        k.e(f"v_permlane32_swap_b32 v{T0+qb}, v{LL+qb}")
    for qb in range(2):
        k.e(f"v_add_f32 v{LL+qb}, v{LL+qb}, v{T0+qb}")
    for qb in range(2):
        k.e(f"v_rcp_f32 v{LL+qb}, v{LL+qb}")
    k(f"""
    s_lshl_b32 s14, s{S_W}, 14
    s_add_u32 s14, s14, {XT}
    v_lshlrev_b32 v15, 4, v0
    v_add_u32 v14, s14, v15
    v_add_u32 v{XA}, {XT}, v15
    """)
    for db in range(4):
        for qb in range(2):
            for ks in range(2):
                tb = S0 + ((db * 4 + qb * 2 + ks) & 3) * 16
                for r in range(8):
                    k.e(f"v_accvgpr_read_b32 v{tb+r}, a{OA+(db*2+qb)*16+ks*8+r}")
                for r in range(8):
                    k.e(f"v_mul_f32 v{tb+r}, v{tb+r}, v{LL+qb}")
                for r in range(0, 8, 2):
                    k.e(f"v_cvt_pk_bf16_f32 v{tb+8+r//2}, v{tb+r}, v{tb+r+1}")
                k.e(f"ds_write_b128 v14, v[{tb+8}:{tb+11}] offset:{(2*db+ks)*2048 + qb*1024}")
    if debug == "o":
        k("""
        s_waitcnt vmcnt(0) lgkmcnt(0)
        s_barrier
        """)
        k(f"""
        s_lshl_b32 s14, s{S_RB}, 16
        s_lshl_b32 s15, s{S_W}, 14
        s_add_u32 s14, s14, s15
        v_add_u32 v13, s15, v{XA}
        """)
        for i in range(16):
            k.e(f"ds_read_b128 v[16:19], v13 offset:{i*1024}")
            k.e("s_waitcnt lgkmcnt(0)")
            k.e(f"buffer_store_dwordx4 v[16:19], v15, s[{SRD_SL}:{SRD_SL+3}], s14 offen")
            k.e("s_add_u32 s14, s14, 1024")
            k.e("s_waitcnt vmcnt(0)")
        k.e("s_endpgm")
    k("""
    s_waitcnt lgkmcnt(0)
    s_barrier
    """)
    stamp()
    gen_proj(k, "o", SRD_WO, 1024, False, True)
    stamp()
    vm1 = Ctr(63)
    k.e("s_waitcnt lgkmcnt(0)")
    k.e("s_barrier")
    k.e(f"s_cmp_ge_u32 s{S_RB}, 28")
    k.e(f"s_cbranch_scc1 L_skip_g1p")
    g1_prologue(k, vm1)
    k.lab("L_skip_g1p")
    k(f"""
    v_lshlrev_b32 v1, 4, v0
    s_lshl_b32 s14, s{S_RB}, 16          ; rb*65536
    s_lshl_b32 s15, s{S_W}, 14           ; w*16384
    s_add_u32 s14, s14, s15
    s_nop 7
    """)
    for cb in range(4):
        for qb in range(2):
            a = PACC + (cb * 2 + qb) * 16
            o = QF + (cb * 2 + qb) * 8
            for r in range(0, 16, 2):
                k.e(f"v_cvt_pk_bf16_f32 v{o+r//2}, v{a+r}, v{a+r+1}")
            k.e("s_nop 1")
            for pr in range(2):
                k.e(f"v_permlane32_swap_b32 v{o+4*pr}, v{o+4*pr+2}")
                k.e(f"v_permlane32_swap_b32 v{o+4*pr+1}, v{o+4*pr+3}")
            for pr in range(2):
                idx = cb * 4 + qb * 2 + pr
                k.e(f"buffer_store_dwordx4 v[{o+4*pr}:{o+4*pr+3}], v1, s[{SRD_SL}:{SRD_SL+3}], s14 offen offset:{(idx&3)*1024}")
                vm1.issue(("S", 0))
                if (idx & 3) == 3: k.e("s_add_u32 s14, s14, 4096")
    stamp()
    k.e(f"s_cmp_ge_u32 s{S_RB}, 28")
    k.e(f"s_cbranch_scc1 L_skip_g1")
    g1_main(k, vm1)
    k.lab("L_skip_g1")
    if prof:
        k.e("s_waitcnt vmcnt(0)")
        stamp()
        k.e(f"s_load_dwordx2 s[12:13], s[0:1], {KA_WS}")
        k.e("s_waitcnt lgkmcnt(0)")
        srd_off(k, 4, 12, 13, 64 << 20, 1 << 20)
        k.e(f"s_lshl_b32 s14, s2, 2")
        k.e(f"s_add_u32 s14, s14, s{S_W}")
        k.e(f"s_lshl_b32 s14, s14, 7")
        for i in range(nst[0]):
            k.e(f"v_mov_b32 v2, s{64+2*i}")
            k.e(f"v_mov_b32 v3, s{65+2*i}")
            k.e(f"v_mov_b32 v1, {8*i}")
            k.e(f"buffer_store_dwordx2 v[2:3], v1, s[4:7], s14 offen")
        tl_end(k, prof, kidx)
    k.lab("L_at_done")
    k.e("s_endpgm")
    for rid, p in rare_sites:
        k.lab(f"L_rare_{rid}")
        k.e(f"s_call_b64 s[{S_RET}:{S_RET+1}], L_raresub_{p}")
        k.e(f"s_branch L_back_{rid}")
    gen_rare(k, 0)
    gen_rare(k, 1)
    return k.text(), kernel_desc(name, 512, 102, 256), f"; @launch kernel={name} grid=(256,1,1) block=(256,1,1) lds=163840"
```

```python
import sys
sys.path.insert(0, 'gen')
from common import *
from k_ln import gen_ln
from k_g import gen_g
from k_attn import gen_attn
from k_main import gen_main
from k_fin import gen_fin
from k_m2 import gen_m2
from k_m3 import gen_m3
from k_m4 import gen_m4
from k_m5 import gen_m5

HEADER = open('recurrent_scan__gqa_block_cached__mixer_token_mlp__prompt.s.ref').read().split("; Override launch")[0]

def build(kernels, path):
    launches = [x[2] for x in kernels]
    s = HEADER + "\n".join(launches) + "\n"
    s += '.amdgcn_target "amdgcn-amd-amdhsa--gfx950"\n.text\n'
    for t, d, l in kernels:
        s += t + "\n"
    s += '.section .rodata,"a"\n'
    for t, d, l in kernels:
        s += ".p2align 6\n" + d
    open(path, "w").write(s)

OFFICIAL = "recurrent_scan__gqa_block_cached__mixer_token_mlp__prompt_kernel"
def build_single(kern, path):
    t, d, l = kern
    t = t.replace("main_kernel", OFFICIAL); d = d.replace("main_kernel", OFFICIAL)
    geo = l.split("main_kernel ")[1]
    s = HEADER + "; @launch " + geo + "\n"
    s += '.amdgcn_target "amdgcn-amd-amdhsa--gfx950"\n.text\n' + t + "\n"
    s += '.section .rodata,"a"\n.p2align 6\n' + d
    open(path, "w").write(s)

if __name__ == "__main__":
    dbg = sys.argv[2] if len(sys.argv) > 2 else None
    out = sys.argv[1] if len(sys.argv) > 1 else 'recurrent_scan__gqa_block_cached__mixer_token_mlp__prompt.s'
    pf = (dbg=='prof')
    if dbg == 'single' or out.startswith('cdna_kernels'):
        build_single(gen_m5(), out)
    else:
        build([gen_m5(debug=(None if pf else dbg), prof=pf)], out)
    print("wrote", out)
```

```python
from common import *
import k_main as M
from k_main import *
from k_ln import ln_rows
import math

S_MT2, S_NT2 = 10, 11
S_IDX, S_XCD = 32, 33
HCNT_OFF = CNT_OFF + 16384
DBG_SRD = 4
S_FLG = 51
SRD_DBG = 60
UCNT_OFF = CNT_OFF + 8192
POLL_MAX = 1 << 20

def poll(k, tag, off_sgpr, target):
    k(f"""
    s_mov_b32 s{S_FLG}, {POLL_MAX}
    v_mov_b32 v1, 0
    L_poll_{tag}:
    buffer_load_dword v4, v1, s[{SRD_DBG}:{SRD_DBG+3}], s{off_sgpr} offen sc1
    s_waitcnt vmcnt(0)
    v_readfirstlane_b32 s3, v4
    s_cmp_ge_u32 s3, {target}
    s_cbranch_scc1 L_polld_{tag}
    s_sleep 16
    s_sub_u32 s{S_FLG}, s{S_FLG}, 1
    s_cmp_lg_u32 s{S_FLG}, 0
    s_cbranch_scc1 L_poll_{tag}
    L_polld_{tag}:
    """)

def signal(k, tag, off_sgpr):
    k(f"""
    s_cmp_lg_u32 s{S_W}, 0
    s_cbranch_scc1 L_sig_{tag}
    v_mov_b32 v1, 0
    v_mov_b32 v4, 1
    v_cmp_eq_u32 vcc, 0, v0
    s_and_saveexec_b64 s[48:49], vcc
    buffer_atomic_add v4, v1, s[{SRD_DBG}:{SRD_DBG+3}], s{off_sgpr} offen
    s_mov_b64 exec, s[48:49]
    L_sig_{tag}:
    """)


def zip_streams(k, a, b):
    A = [l.strip() for l in a]; B = [l.strip() for l in b]
    assert len(A) == len(B)
    for x, y in zip(A, B):
        if x.startswith("s_nop"):
            if x == "s_nop 1": k.e("s_nop 0")
            continue
        k.e(x); k.e(y)

def local_ln(k):
    SUMA, SQA = 128, 130
    T = 132
    for i in range(16):
        k.e(f"s_waitcnt vmcnt({XYOUNG + 15 - i})")
        for j in range(4):
            src = 64 + 4 * i + j
            t = T + 2 * j
            k.e(f"v_lshlrev_b32 v{t}, 16, v{src}")
            k.e(f"v_and_b32 v{t+1}, 0xffff0000, v{src}")
        for j in range(4):
            t = T + 2 * j
            if i == 0 and j == 0:
                k.e(f"v_pk_mul_f32 v[{SQA}:{SQA+1}], v[{t}:{t+1}], v[{t}:{t+1}]")
                k.e(f"v_mov_b32 v{SUMA}, v{t}")
                k.e(f"v_mov_b32 v{SUMA+1}, v{t+1}")
            else:
                k.e(f"v_pk_add_f32 v[{SUMA}:{SUMA+1}], v[{SUMA}:{SUMA+1}], v[{t}:{t+1}]")
                k.e(f"v_pk_fma_f32 v[{SQA}:{SQA+1}], v[{t}:{t+1}], v[{t}:{t+1}], v[{SQA}:{SQA+1}]")
    S, Q, t1, t2 = 140, 141, 142, 143
    k.e(f"v_add_f32 v{S}, v{SUMA}, v{SUMA+1}")
    k.e(f"v_add_f32 v{Q}, v{SQA}, v{SQA+1}")
    for sw in ("v_permlane16_swap_b32", "v_permlane32_swap_b32"):
        k.e(f"v_mov_b32 v{t1}, v{S}")
        k.e(f"v_mov_b32 v{t2}, v{Q}")
        k.e("s_nop 1")
        k.e(f"{sw} v{t1}, v{S}")
        k.e(f"{sw} v{t2}, v{Q}")
        k.e(f"v_add_f32 v{S}, v{S}, v{t1}")
        k.e(f"v_add_f32 v{Q}, v{Q}, v{t2}")
    MB, R = 144, 146
    k(f"""
    v_mul_f32 v{S}, 0x3b000000, v{S}           ; mean
    v_mul_f32 v{Q}, 0x3b000000, v{Q}           ; E[x^2]
    v_fma_f32 v{Q}, -v{S}, v{S}, v{Q}          ; var
    v_max_f32 v{Q}, 0, v{Q}
    v_cvt_pk_bf16_f32 v{MB}, v{S}, v{S}
    v_lshlrev_b32 v{MB}, 16, v{MB}
    v_mov_b32 v{MB+1}, v{MB}
    v_cvt_pk_bf16_f32 v{Q}, v{Q}, v{Q}
    v_lshlrev_b32 v{Q}, 16, v{Q}
    v_add_f32 v{Q}, 0x3727c5ac, v{Q}
    v_cvt_pk_bf16_f32 v{Q}, v{Q}, v{Q}
    v_lshlrev_b32 v{Q}, 16, v{Q}
    v_sqrt_f32 v{Q}, v{Q}
    s_nop 0
    v_cvt_pk_bf16_f32 v{Q}, v{Q}, v{Q}
    v_lshlrev_b32 v{Q}, 16, v{Q}
    v_rcp_f32 v{R}, v{Q}
    s_nop 0
    v_fma_f32 v{t1}, -v{Q}, v{R}, 1.0
    v_fma_f32 v{R}, v{t1}, v{R}, v{R}
    v_mov_b32 v{R+1}, v{R}
    v_lshrrev_b32 v1, 4, v0                     ; part
    v_and_b32 v2, 15, v0                        ; r
    v_lshrrev_b32 v3, 1, v1
    v_lshlrev_b32 v3, 11, v3                    ; (part>>1)*2048
    v_and_b32 v4, 1, v1
    v_lshl_add_u32 v3, v4, 9, v3                ; + (part&1)*512
    v_lshl_add_u32 v3, v2, 4, v3                ; + r*16
    s_lshr_b32 s3, s{S_W}, 1
    s_lshl_b32 s3, s3, 10                       ; qb*1024
    s_and_b32 s14, s{S_W}, 1
    s_lshl_b32 s14, s14, 8                      ; 16*(w&1)*16
    s_add_u32 s3, s3, s14
    s_add_u32 s3, s3, {XT}
    v_add_u32 v3, s3, v3
    """)
    for i in range(16):
        O = 148 + (i & 1) * 4
        for j in range(4):
            src = 64 + 4 * i + j
            t = T + 2 * j
            k.e(f"v_lshlrev_b32 v{t}, 16, v{src}")
            k.e(f"v_and_b32 v{t+1}, 0xffff0000, v{src}")
        for j in range(4):
            t = T + 2 * j
            k.e(f"v_pk_add_f32 v[{t}:{t+1}], v[{t}:{t+1}], v[{MB}:{MB+1}] neg_lo:[0,1] neg_hi:[0,1]")
        for j in range(4):
            t = T + 2 * j
            k.e(f"v_cvt_pk_bf16_f32 v{156+j}, v{t}, v{t+1}")
        for j in range(4):
            t = T + 2 * j
            k.e(f"v_lshlrev_b32 v{t}, 16, v{156+j}")
            k.e(f"v_and_b32 v{t+1}, 0xffff0000, v{156+j}")
        for j in range(4):
            t = T + 2 * j
            k.e(f"v_pk_mul_f32 v[{t}:{t+1}], v[{t}:{t+1}], v[{R}:{R+1}]")
        for j in range(4):
            t = T + 2 * j
            k.e(f"v_cvt_pk_bf16_f32 v{O+j}, v{t}, v{t+1}")
        k.e(f"ds_write_b128 v3, v[{O}:{O+3}] offset:{i*4096}")

HROW = 208
def h_read(k):
    k(f"""
    s_lshl_b32 s3, s{S_G}, 3
    s_lshl_b32 s14, s{S_W}, 1
    s_add_u32 s3, s3, s14                       ; row_local
    s_lshr_b32 s14, s3, 5
    s_lshl_b32 s14, s14, 10                     ; qb*1024
    s_and_b32 s3, s3, 31
    s_lshl_b32 s3, s3, 4                        ; q*16
    s_add_u32 s3, s3, s14
    s_add_u32 s3, s3, {XT}
    v_lshrrev_b32 v1, 1, v0
    v_lshlrev_b32 v1, 11, v1
    v_and_b32 v2, 1, v0
    v_lshl_add_u32 v1, v2, 9, v1
    v_add_u32 v1, s3, v1
    ds_read_b128 v[{HROW}:{HROW+3}], v1
    ds_read_b128 v[{HROW+4}:{HROW+7}], v1 offset:16
    """)

H_LDS = 131072
def h_phase(k):
    streams = []
    for r in range(2):
        kk = Em()
        base = HB + r * 20
        X = list(range(base, base + 8))
        src = HROW + 4 * r
        for i in range(4):
            kk.e(f"v_lshlrev_b32 v{X[2*i]}, 16, v{src+i}")
            kk.e(f"v_and_b32 v{X[2*i+1]}, 0xffff0000, v{src+i}")
        ln_rows(kk, X, base + 8, base + 12)
        kk.e(f"ds_write_b128 v{HB+40+r}, v[{base+8}:{base+11}]")
        streams.append(kk.L)
    k(f"""
    v_lshlrev_b32 v{HB+40}, 4, v0
    s_lshl_b32 s3, s{S_W}, 11
    s_add_u32 s3, s3, {H_LDS}
    v_add_u32 v{HB+40}, s3, v{HB+40}
    v_add_u32 v{HB+41}, 1024, v{HB+40}
    """)
    zip_streams(k, streams[0], streams[1])
    k(f"""
    s_lshl_b32 s3, s{S_W}, 6
    v_add_u32 v{HB+42}, s3, v0                 ; tid
    v_lshlrev_b32 v{HB+43}, 1, v{HB+42}
    v_add_u32 v{HB+43}, {H_LDS}, v{HB+43}
    s_waitcnt lgkmcnt(0)
    s_barrier
    """)
    for p in range(2):
        for r in range(8):
            k.e(f"ds_read_u16 v{HB+p*8+r}, v{HB+43} offset:{r*1024 + p*512}")
    k(f"""
    s_lshl_b32 s13, s{S_RB}, 2
    s_lshr_b32 s14, s{S_G}, 1
    s_add_u32 s13, s13, s14
    s_lshl_b32 s13, s13, 10
    s_and_b32 s14, s{S_G}, 1
    s_lshl_b32 s14, s14, 9
    s_add_u32 s13, s13, s14
    s_add_u32 s13, s13, {HF_OFF}
    v_lshrrev_b32 v{HB+44}, 5, v{HB+42}
    v_lshlrev_b32 v{HB+44}, 17, v{HB+44}
    v_and_b32 v{HB+45}, 31, v{HB+42}
    v_lshl_add_u32 v{HB+44}, v{HB+45}, 4, v{HB+44}
    s_add_u32 s15, s13, {8*131072}
    s_waitcnt lgkmcnt(0)
    """)
    for p in range(2):
        for j in range(4):
            k.e(f"v_lshl_or_b32 v{HB+20+p*4+j}, v{HB+p*8+2*j+1}, 16, v{HB+p*8+2*j}")
    k.e(f"buffer_store_dwordx4 v[{HB+20}:{HB+23}], v{HB+44}, s[{SRD_WS}:{SRD_WS+3}], s13 offen sc1")
    k.e(f"buffer_store_dwordx4 v[{HB+24}:{HB+27}], v{HB+44}, s[{SRD_WS}:{SRD_WS+3}], s15 offen sc1")

HB = 16
XYOUNG = 26

def poll8(k, tag, off, target):
    k(f"""
    s_mov_b32 s{S_FLG}, {POLL_MAX}
    v_and_b32 v1, 7, v0
    v_lshlrev_b32 v1, 8, v1
    s_mov_b32 s3, {off}
    L_poll8_{tag}:
    buffer_load_dword v4, v1, s[{SRD_WS}:{SRD_WS+3}], s3 offen sc1
    s_waitcnt vmcnt(0)
    v_cmp_le_u32 vcc, {target}, v4
    s_cmp_eq_u64 vcc, -1
    s_cbranch_scc1 L_poll8d_{tag}
    s_sleep 16
    s_sub_u32 s{S_FLG}, s{S_FLG}, 1
    s_cmp_lg_u32 s{S_FLG}, 0
    s_cbranch_scc1 L_poll8_{tag}
    L_poll8d_{tag}:
    """)

def g1_phase(k, stamp, after_exchange):
    RS, NKS, NKST = 3584, 32, 128
    PF, NS, NB = 8, 10, 9
    ACC, AF, BF = 64, 128, 144
    vm = Ctr(63)
    k(f"""
    s_load_dwordx2 s[8:9], s[0:1], {KA_B1}
    v_lshrrev_b32 v3, 3, v0
    v_and_b32 v4, 7, v0
    v_lshrrev_b32 v5, 1, v3
    v_and_b32 v5, 1, v5
    v_lshlrev_b32 v5, 2, v5
    v_xor_b32 v4, v4, v5
    s_movk_i32 s49, {RS}
    v_mul_lo_u32 v3, v3, s49
    v_lshl_add_u32 v10, v4, 4, v3       ; voffA
    v_lshlrev_b32 v11, 4, v0            ; voffB
    v_lshrrev_b32 v3, 5, v0             ; hf
    v_bfe_u32 v4, v0, 4, 1
    v_bfe_u32 v5, v0, 2, 2
    v_and_b32 v6, 3, v0
    v_lshlrev_b32 v7, 3, v3
    v_add_u32 v7, v7, v5
    v_lshlrev_b32 v7, 7, v7
    v_lshl_add_u32 v7, v4, 5, v7
    v_lshl_add_u32 v7, v6, 3, v7
    s_mul_i32 s46, s{S_W}, {NS*2048}
    v_add_u32 v7, s46, v7
    v_lshrrev_b32 v8, 1, v5
    v_lshlrev_b32 v9, 6, v8
    v_add_u32 v12, v7, v9
    v_xor_b32 v9, 64, v9
    v_add_u32 v13, v7, v9
    v_lshlrev_b32 v14, 3, v3            ; hf*8
    s_mul_i32 s43, s{S_W}, {NKS*16*RS}
    s_lshl_b32 s49, s{S_MT}, 7
    s_add_u32 s43, s43, s49
    s_add_u32 s47, s43, {8*RS-1024}
    s_lshl_b32 s44, s{S_NT}, 1
    s_mul_i32 s44, s44, {NKST}
    s_mul_i32 s49, s{S_W}, {NKS}
    s_add_u32 s44, s44, s49
    s_lshl_b32 s44, s44, 10
    s_add_u32 s44, s44, {HF_OFF}
    s_add_u32 s45, s44, {NKST*1024}
    """)
    def issue(ks):
        slot = ks % NS
        k.e(f"s_add_u32 m0, s46, {slot*2048}")
        bs = BF + (ks % NB) * 8
        k.e(f"buffer_load_dwordx4 v[{bs}:{bs+3}], v11, s[{SRD_WS}:{SRD_WS+3}], s44 offen sc1"); vm.issue(("B", ks))
        k.e(f"buffer_load_dwordx4 v10, s[{SRD_W1}:{SRD_W1+3}], s43 offen lds"); vm.issue(("A", ks))
        k.e(f"buffer_load_dwordx4 v10, s[{SRD_W1}:{SRD_W1+3}], s47 offen offset:1024 lds"); vm.issue(("A", ks))
        k.e(f"buffer_load_dwordx4 v[{bs+4}:{bs+7}], v11, s[{SRD_WS}:{SRD_WS+3}], s45 offen sc1"); vm.issue(("B", ks))
        k.e(f"s_add_u32 s43, s43, {16*RS}")
        k.e(f"s_add_u32 s47, s47, {16*RS}")
        k.e(f"s_add_u32 s44, s44, 1024")
        k.e(f"s_add_u32 s45, s45, 1024")
    def tr(ks):
        slot = ks % NS
        out = []
        for mb in range(2):
            for bp in range(2):
                d = AF + (ks & 1) * 8 + mb * 4 + bp * 2
                out.append(f"ds_read_b64_tr_b16 v[{d}:{d+1}], v{12+mb} offset:{slot*2048 + bp*512}")
        return out
    for ks in range(PF):
        issue(ks)
    k(f"""
    s_lshr_b32 s48, s{S_W}, 1
    s_lshl_b32 s48, s48, 6
    s_lshl_b32 s49, s{S_MT}, 7
    s_add_u32 s48, s48, s49
    s_waitcnt lgkmcnt(0)
    s_mov_b32 s12, s8
    s_mov_b32 s13, s9
    s_mov_b32 s14, {1792*2}
    s_mov_b32 s15, 0x00020000
    """)
    for b in range(4):
        k.e(f"buffer_load_dwordx2 v[{20+2*b}:{21+2*b}], v14, s[12:15], s48 offen offset:{16*b}"); vm.issue(("E", 0))
    n = vm.need(lambda t: t == ("A", 0))
    k.e(f"s_waitcnt vmcnt({n})")
    stamp()
    for ins in tr(0): k.e(ins)
    for ks in range(NKS):
        n = vm.need(lambda t: (t[0] == "A" and t[1] <= ks + 1) or (t[0] == "B" and t[1] <= ks))
        k.e("s_waitcnt lgkmcnt(0)" if n is None else f"s_waitcnt vmcnt({n}) lgkmcnt(0)")
        bs = BF + (ks % NB) * 8
        fill = tr(ks + 1) if ks + 1 < NKS else []
        mf = []
        for mb in range(2):
            for nb in range(2):
                d = ACC + (mb * 2 + nb) * 16
                mf.append(mfma(d, AF + (ks & 1) * 8 + mb * 4, bs + nb * 4, "0" if ks == 0 else d, dfile='v', afile='v', bfile='v'))
        k.e(mf[0])
        for ins in fill[:2]: k.e(ins)
        k.e(mf[1])
        for ins in fill[2:]: k.e(ins)
        k.e(mf[2])
        if ks + PF < NKS:
            issue(ks + PF)
        k.e(mf[3])
    stamp()
    k.e("s_nop 7")
    k.e("s_barrier")
    k(f"""
    s_lshl_b32 s48, s{S_W}, 14
    v_add_u32 v3, s48, v11
    s_nop 4
    """)
    for blk in range(4):
        for q in range(4):
            r = ACC + blk * 16 + q * 4
            k.e(f"ds_write_b128 v3, v[{r}:{r+3}] offset:{blk*4096 + q*1024}")
    k(f"""
    s_lshl_b32 s48, s{S_W}, 12
    v_add_u32 v3, s48, v11
    s_waitcnt lgkmcnt(0)
    s_barrier
    """)
    for src in range(4):
        for q in range(4):
            r = ACC + src * 16 + q * 4
            k.e(f"ds_read_b128 v[{r}:{r+3}], v3 offset:{src*16384 + q*1024}")
    n = vm.need(lambda t: t[0] == "E")
    if n is not None: k.e(f"s_waitcnt vmcnt({n})")
    for b in range(4):
        k.e(f"v_lshlrev_b32 v{32+4*b}, 16, v{20+2*b}")
        k.e(f"v_and_b32 v{33+4*b}, 0xffff0000, v{20+2*b}")
        k.e(f"v_lshlrev_b32 v{34+4*b}, 16, v{21+2*b}")
        k.e(f"v_and_b32 v{35+4*b}, 0xffff0000, v{21+2*b}")
    k.e("s_waitcnt lgkmcnt(0)")
    k.e("s_barrier")
    after_exchange()

def g1_finish(k):
    Y = 64
    c1 = -2.0 * 0.7978845608028654 * LOG2E
    k.e(f"s_mov_b32 s12, {f2h(c1)}")
    k.e(f"s_mov_b32 s13, {f2h(c1*0.044715)}")
    k.e(f"v_mov_b32 v48, s12")
    for r in range(0, 16, 2):
        k.e(f"v_pk_add_f32 v[{Y+r}:{Y+r+1}], v[{Y+r}:{Y+r+1}], v[{Y+16+r}:{Y+17+r}]")
        k.e(f"v_pk_add_f32 v[{Y+32+r}:{Y+33+r}], v[{Y+32+r}:{Y+33+r}], v[{Y+48+r}:{Y+49+r}]")
    for r in range(0, 16, 2):
        k.e(f"v_pk_add_f32 v[{Y+r}:{Y+r+1}], v[{Y+r}:{Y+r+1}], v[{Y+32+r}:{Y+33+r}]")
    for r in range(0, 16, 2):
        k.e(f"v_pk_add_f32 v[{Y+r}:{Y+r+1}], v[{Y+r}:{Y+r+1}], v[{32+r}:{33+r}]")
    T = Y + 16
    for r in range(0, 16, 2):
        k.e(f"v_pk_mul_f32 v[{T+r}:{T+r+1}], v[{Y+r}:{Y+r+1}], v[{Y+r}:{Y+r+1}]")
    for r in range(16):
        k.e(f"v_fma_f32 v{T+r}, v{T+r}, s13, v48")
    for r in range(0, 16, 2):
        k.e(f"v_pk_mul_f32 v[{T+r}:{T+r+1}], v[{T+r}:{T+r+1}], v[{Y+r}:{Y+r+1}]")
    for r in range(16):
        k.e(f"v_exp_f32 v{T+r}, v{T+r}")
    for r in range(16):
        k.e(f"v_add_f32 v{T+r}, 1.0, v{T+r}")
    for r in range(16):
        k.e(f"v_rcp_f32 v{T+r}, v{T+r}")
    k.e("s_nop 0")
    for r in range(0, 16, 2):
        k.e(f"v_pk_mul_f32 v[{Y+r}:{Y+r+1}], v[{Y+r}:{Y+r+1}], v[{T+r}:{T+r+1}]")
    for r in range(0, 16, 2):
        k.e(f"v_cvt_pk_bf16_f32 v{52 + r//2}, v{Y+r}, v{Y+r+1}")
    k(f"""
    s_and_b32 s12, s{S_W}, 1
    s_lshl_b32 s13, s{S_NT}, 1
    s_add_u32 s12, s12, s13
    s_mul_i32 s12, s12, 112
    s_lshl_b32 s13, s{S_MT}, 2
    s_add_u32 s12, s12, s13
    s_lshr_b32 s13, s{S_W}, 1
    s_lshl_b32 s13, s13, 1
    s_add_u32 s12, s12, s13
    s_lshl_b32 s12, s12, 10
    s_add_u32 s12, s12, {UF_OFF}
    buffer_store_dwordx4 v[52:55], v11, s[{SRD_WS}:{SRD_WS+3}], s12 offen sc1
    buffer_store_dwordx4 v[56:59], v11, s[{SRD_WS}:{SRD_WS+3}], s12 offen offset:1024 sc1
    """)

G2_PF = 10
def g2_setup(k, vm):
    RS, NKS, NKST = 4096, 28, 112
    PF, NS, NB = G2_PF, G2_PF + 2, G2_PF + 1
    k(f"""
    s_load_dwordx2 s[8:9], s[0:1], {KA_B2}
    s_load_dwordx2 s[12:13], s[0:1], {KA_X}
    s_load_dwordx2 s[14:15], s[0:1], {KA_OUT}
    s_load_dwordx2 s[48:49], s[0:1], {KA_WS}
    v_lshrrev_b32 v3, 3, v0
    v_and_b32 v4, 7, v0
    v_lshrrev_b32 v5, 1, v3
    v_and_b32 v5, 1, v5
    v_lshlrev_b32 v5, 2, v5
    v_xor_b32 v4, v4, v5
    v_lshlrev_b32 v3, 12, v3
    v_lshl_add_u32 v10, v4, 4, v3       ; voffA
    v_lshlrev_b32 v11, 4, v0
    v_lshrrev_b32 v3, 5, v0             ; hf
    v_bfe_u32 v4, v0, 4, 1
    v_bfe_u32 v5, v0, 2, 2
    v_and_b32 v6, 3, v0
    v_lshlrev_b32 v7, 2, v3
    v_add_u32 v7, v7, v5
    v_lshlrev_b32 v7, 7, v7
    v_lshl_add_u32 v7, v4, 5, v7
    v_lshl_add_u32 v7, v6, 3, v7
    s_mul_i32 s46, s{S_W}, {NS*2048}
    v_add_u32 v7, s46, v7
    v_lshrrev_b32 v8, 1, v5
    v_lshlrev_b32 v9, 6, v8
    v_add_u32 v12, v7, v9
    v_xor_b32 v9, 64, v9
    v_add_u32 v13, v7, v9
    s_mul_i32 s43, s{S_W}, {NKS*16*RS}
    s_lshl_b32 s47, s{S_MT2}, 7
    s_add_u32 s43, s43, s47
    s_add_u32 s47, s43, {8*RS-1024}
    s_lshl_b32 s44, s{S_NT2}, 1
    s_mul_i32 s44, s44, {NKST}
    s_mul_i32 s45, s{S_W}, {NKS}
    s_add_u32 s44, s44, s45
    s_lshl_b32 s44, s44, 10
    s_add_u32 s44, s44, {UF_OFF}
    s_add_u32 s45, s44, {NKST*1024}
    v_and_b32 v14, 31, v0
    s_lshr_b32 s54, s{S_W}, 1
    s_lshl_b32 s54, s54, 5
    v_add_u32 v14, s54, v14             ; row
    v_lshlrev_b32 v15, 1, v14           ; b2 offset
    v_lshlrev_b32 v2, 10, v14
    v_lshl_add_u32 v2, v3, 4, v2
    s_and_b32 s54, s{S_W}, 1
    s_lshl_b32 s54, s54, 5
    v_add_u32 v2, s54, v2
    """)
    for ks in range(PF):
        g2_issue(k, vm, ks)
    k("s_waitcnt lgkmcnt(0)")
    srd(k, 16, 8, 9, 2048 * 2)
    srd(k, 20, 12, 13, 2097152)
    srd(k, 28, 14, 15, 2097152)
    srd_off(k, 56, 48, 49, SLAB_OFF, 16 << 20)
    k(f"""
    s_lshl_b32 s54, s{S_MT2}, 16
    s_lshl_b32 s55, s{S_NT2}, 7
    s_add_u32 s54, s54, s55
    s_lshl_b32 s55, s{S_MT2}, 7         ; b2 base
    s_lshl_b32 s53, s{S_MT2}, 16
    s_lshr_b32 s52, s{S_NT2}, 1
    s_lshl_b32 s52, s52, 14
    s_add_u32 s53, s53, s52
    s_and_b32 s52, s{S_NT2}, 1
    s_lshl_b32 s52, s52, 13
    s_add_u32 s53, s53, s52
    s_lshl_b32 s52, s{S_W}, 10
    s_add_u32 s53, s53, s52
    """)
    k.e("buffer_load_ushort v9, v15, s[16:19], s55 offen"); vm.issue(("E", 0))
    k.e(f"buffer_load_dwordx4 v[248:251], v2, s[20:23], s54 offen"); vm.issue(("E", 0))
    k.e(f"buffer_load_dwordx4 v[252:255], v2, s[20:23], s54 offen offset:64"); vm.issue(("E", 0))

def g2_issue(k, vm, ks):
    RS = 4096
    NS, NB = G2_PF + 2, G2_PF + 1
    slot = ks % NS
    k.e(f"s_add_u32 m0, s46, {slot*2048}")
    bs = 144 + (ks % NB) * 8
    k.e(f"buffer_load_dwordx4 v[{bs}:{bs+3}], v11, s[{SRD_WS}:{SRD_WS+3}], s44 offen sc1"); vm.issue(("B", ks))
    k.e(f"buffer_load_dwordx4 v10, s[{SRD_WQ}:{SRD_WQ+3}], s43 offen lds"); vm.issue(("A", ks))
    k.e(f"buffer_load_dwordx4 v10, s[{SRD_WQ}:{SRD_WQ+3}], s47 offen offset:1024 lds"); vm.issue(("A", ks))
    k.e(f"buffer_load_dwordx4 v[{bs+4}:{bs+7}], v11, s[{SRD_WS}:{SRD_WS+3}], s45 offen sc1"); vm.issue(("B", ks))
    k.e(f"s_add_u32 s43, s43, {16*RS}")
    k.e(f"s_add_u32 s47, s47, {16*RS}")
    k.e(f"s_add_u32 s44, s44, 1024")
    k.e(f"s_add_u32 s45, s45, 1024")

def g2_main(k, vm, stamp, POLL_KS=10, SIG_KS=5):
    NKS = 28
    PF, NS, NB = G2_PF, G2_PF + 2, G2_PF + 1
    ACC, AF, BF = 64, 128, 144
    SL = 0
    SUM = 232
    def tr(ks):
        slot = ks % NS
        out = []
        for mb in range(2):
            for bp in range(2):
                d = AF + (ks & 1) * 8 + mb * 4 + bp * 2
                out.append(f"ds_read_b64_tr_b16 v[{d}:{d+1}], v{12+mb} offset:{slot*2048 + bp*1024}")
        return out
    n = vm.need(lambda t: t == ("A", 0))
    k.e(f"s_waitcnt vmcnt({n})")
    for ins in tr(0): k.e(ins)
    si = 0
    for ks in range(NKS):
        n = vm.need(lambda t: (t[0] == "A" and t[1] <= ks + 1) or (t[0] == "B" and t[1] <= ks))
        k.e("s_waitcnt lgkmcnt(0)" if n is None else f"s_waitcnt vmcnt({n}) lgkmcnt(0)")
        bs = BF + (ks % NB) * 8
        fill = tr(ks + 1) if ks + 1 < NKS else []
        mf = []
        for mb in range(2):
            for nb in range(2):
                a = AF + (ks & 1) * 8 + mb * 4
                b = bs + nb * 4
                d = ACC + (mb * 2 + nb) * 16
                c = "0" if ks == 0 else f"v[{d}:{d+15}]"
                mf.append(f"v_mfma_f32_32x32x16_bf16 v[{d}:{d+15}], v[{b}:{b+3}], v[{a}:{a+3}], {c}")
        k.e(mf[0])
        for ins in fill[:2]: k.e(ins)
        k.e(mf[1])
        for ins in fill[2:]: k.e(ins)
        k.e(mf[2])
        if ks + PF < NKS:
            g2_issue(k, vm, ks + PF)
        if ks == SIG_KS:
            n = vm.need(lambda t: t[0] == "ST")
            if n is not None: k.e(f"s_waitcnt vmcnt({n})")
            k.e("s_barrier")
            k.e(f"s_lshl_b32 s52, s{S_RB}, 8")
            k.e(f"s_add_u32 s52, s52, {CNT_OFF}")
            signal(k, "slab", 52)
        if ks == POLL_KS:
            k.e(f"s_lshl_b32 s52, s{S_MT2}, 8")
            k.e(f"s_add_u32 s52, s52, {CNT_OFF}")
            k.e(f"s_cmp_lg_u32 s{S_W}, 0")
            k.e("s_cbranch_scc1 L_slab_nopoll")
            poll(k, "slab", 52, 8)
            k.lab("L_slab_nopoll")
            k.e("s_barrier")
        if ks >= POLL_KS and si < 16:
            for rep in range(1 if ks < 26 else 2):
                if si < 16:
                    g, p = si >> 1, si & 1
                    k.e(f"s_add_u32 s52, s53, {g*2097152 + p*4096}")
                    k.e(f"buffer_load_dwordx4 a[{si*4}:{si*4+3}], v11, s[56:59], s52 offen sc1"); vm.issue(("S", si))
                    si += 1
        k.e(mf[3])
    assert si == 16
    stamp()
    PS = 64 * 272
    k(f"""
    v_and_b32 v3, 31, v0
    s_movk_i32 s52, 272
    v_mul_lo_u32 v3, v3, s52
    v_lshrrev_b32 v4, 5, v0
    v_lshl_add_u32 v3, v4, 4, v3
    s_mul_i32 s55, s{S_W}, {PS}
    v_add_u32 v3, s55, v3
    v_mul_lo_u32 v8, v14, s52
    v_lshl_add_u32 v8, v4, 5, v8
    s_and_b32 s52, s{S_W}, 1
    s_lshl_b32 s52, s52, 6
    v_add_u32 v8, s52, v8
    s_barrier
    """)
    for mb in range(2):
        for nb in range(2):
            for b in range(4):
                r = ACC + (mb * 2 + nb) * 16 + b * 4
                k.e(f"ds_write_b128 v3, v[{r}:{r+3}] offset:{mb*32*272 + nb*128 + b*32}")
    k(f"""
    s_waitcnt lgkmcnt(0)
    s_barrier
    """)
    for p in range(2):
        for src in range(4):
            r = ACC + p * 32 + src * 8
            k.e(f"ds_read_b128 v[{r}:{r+3}], v8 offset:{src*PS + p*128}")
            k.e(f"ds_read_b128 v[{r+4}:{r+7}], v8 offset:{src*PS + p*128 + 16}")
    for i in range(16):
        g, p = i >> 1, i & 1
        n = vm.need(lambda t: t[0] == "S" and t[1] <= i)
        if n is not None: k.e(f"s_waitcnt vmcnt({n})")
        for j in range(4):
            k.e(f"v_accvgpr_read_b32 v{20+j}, a{i*4+j}")
        for j in range(4):
            if g == 0:
                k.e(f"v_lshlrev_b32 v{SUM+p*8+2*j}, 16, v{20+j}")
                k.e(f"v_and_b32 v{SUM+p*8+2*j+1}, 0xffff0000, v{20+j}")
            else:
                k.e(f"v_lshlrev_b32 v{24+2*j}, 16, v{20+j}")
                k.e(f"v_and_b32 v{25+2*j}, 0xffff0000, v{20+j}")
        if g > 0:
            for j in range(4):
                k.e(f"v_pk_add_f32 v[{SUM+p*8+2*j}:{SUM+p*8+2*j+1}], v[{SUM+p*8+2*j}:{SUM+p*8+2*j+1}], v[{24+2*j}:{25+2*j}]")
    for p in range(2):
        for j in range(4):
            k.e(f"v_lshlrev_b32 v{128+p*8+2*j}, 16, v{248+p*4+j}")
            k.e(f"v_and_b32 v{129+p*8+2*j}, 0xffff0000, v{248+p*4+j}")
    k.e("v_lshlrev_b32 v18, 16, v9")
    k.e("v_mov_b32 v19, v18")
    k.e(f"s_mov_b32 s48, {f2h(-LOG2E)}")
    k.e(f"s_mov_b32 s49, {f2h(-LOG2E)}")
    k.e("s_waitcnt lgkmcnt(0)")
    for p in range(2):
        Y = ACC + p * 32
        for i in range(0, 8, 2):
            k.e(f"v_pk_add_f32 v[{Y+i}:{Y+i+1}], v[{Y+i}:{Y+i+1}], v[{Y+8+i}:{Y+9+i}]")
            k.e(f"v_pk_add_f32 v[{Y+16+i}:{Y+17+i}], v[{Y+16+i}:{Y+17+i}], v[{Y+24+i}:{Y+25+i}]")
        for i in range(0, 8, 2):
            k.e(f"v_pk_add_f32 v[{Y+i}:{Y+i+1}], v[{Y+i}:{Y+i+1}], v[{Y+16+i}:{Y+17+i}]")
        for i in range(0, 8, 2):
            k.e(f"v_pk_add_f32 v[{Y+i}:{Y+i+1}], v[{Y+i}:{Y+i+1}], v[18:19]")
    for p in range(2):
        Y = ACC + p * 32; T = Y + 8
        for i in range(0, 8, 2):
            k.e(f"v_pk_mul_f32 v[{T+i}:{T+i+1}], v[{Y+i}:{Y+i+1}], s[48:49]")
    for p in range(2):
        T = ACC + p * 32 + 8
        for i in range(8): k.e(f"v_exp_f32 v{T+i}, v{T+i}")
    for p in range(2):
        T = ACC + p * 32 + 8
        for i in range(8): k.e(f"v_add_f32 v{T+i}, 1.0, v{T+i}")
    for p in range(2):
        T = ACC + p * 32 + 8
        for i in range(8): k.e(f"v_rcp_f32 v{T+i}, v{T+i}")
    k.e("s_nop 0")
    for p in range(2):
        Y = ACC + p * 32; T = Y + 8
        for i in range(0, 8, 2):
            k.e(f"v_pk_mul_f32 v[{Y+i}:{Y+i+1}], v[{Y+i}:{Y+i+1}], v[{T+i}:{T+i+1}]")
    for p in range(2):
        Y = ACC + p * 32
        for i in range(0, 8, 2):
            k.e(f"v_pk_fma_f32 v[{Y+i}:{Y+i+1}], v[{Y+i}:{Y+i+1}], v[{SUM+p*8+i}:{SUM+p*8+i+1}], v[{128+p*8+i}:{129+p*8+i}]")
    for p in range(2):
        Y = ACC + p * 32
        for i in range(0, 8, 2):
            k.e(f"v_cvt_pk_bf16_f32 v{40+p*4+i//2}, v{Y+i}, v{Y+i+1}")
        k.e(f"buffer_store_dwordx4 v[{40+p*4}:{43+p*4}], v2, s[28:31], s54 offen offset:{64*p}")

XSRC = 239
UFL = 252

def gen_m5(name="main_kernel", debug=None, prof=False, l2pf=True, kidx=0, sched2=True):
    k = Em()
    M.SCHED2 = sched2
    M.PRE_HOOK = lambda kk: poll8(kk, 'h', HCNT_OFF, 32)
    nst = [0]
    def stamp():
        if prof is not True: return
        i = nst[0]; nst[0] += 1
        k.e(f"s_memtime s[{64+2*i}:{65+2*i}]")
        k.e(f"s_memrealtime s[100:101]")
        k.e("s_waitcnt lgkmcnt(0)")
        k.e(f"s_mov_b32 s{65+2*i}, s100")
    k.L.append(kernel_header(name))
    cscale = math.log2(math.e) / math.sqrt(128.0)
    tl_begin(k, prof)
    k(f"""
    s_cmp_ge_u32 s2, 256
    s_cbranch_scc1 L_at_done
    s_load_dwordx2 s[4:5], s[0:1], {KA_X}
    s_load_dwordx2 s[12:13], s[0:1], {KA_WS}
    s_load_dwordx2 s[14:15], s[0:1], {KA_DBG}
    v_lshrrev_b32 v1, 6, v0
    v_and_b32 v0, 63, v0
    s_and_b32 s{S_XCD}, s2, 7
    v_readfirstlane_b32 s{S_W}, v1
    s_lshr_b32 s{S_IDX}, s2, 3
    s_and_b32 s{S_G}, s{S_XCD}, 3
    s_lshl_b32 s{S_G}, s{S_G}, 1
    s_and_b32 s3, s{S_IDX}, 1
    s_add_u32 s{S_G}, s{S_G}, s3        ; g = 2*(x&3) + (idx&1)
    s_lshr_b32 s{S_RB}, s{S_XCD}, 2
    s_lshl_b32 s{S_RB}, s{S_RB}, 4
    s_lshr_b32 s3, s{S_IDX}, 1
    s_add_u32 s{S_RB}, s{S_RB}, s3
    v_and_b32 v2, 15, v0
    v_lshrrev_b32 v3, 4, v0
    v_lshlrev_b32 v2, 10, v2
    v_lshl_add_u32 v2, v3, 4, v2        ; r*1024 + part*16
    s_lshl_b32 s3, s{S_RB}, 16
    s_lshl_b32 s8, s{S_W}, 14
    s_add_u32 s3, s3, s8                ; (64rb + 16w)*1024
    s_waitcnt lgkmcnt(0)
    s_mov_b32 s16, s4
    s_mov_b32 s17, s5
    s_mov_b32 s18, 2097152
    s_mov_b32 s19, 0x00020000
    """)
    for i in range(16):
        k.e(f"buffer_load_dwordx4 v[{64+4*i}:{67+4*i}], v2, s[16:19], s3 offen offset:{64*i}")
    k(f"""
    s_load_dwordx2 s[16:17], s[0:1], {KA_K}
    s_load_dwordx2 s[20:21], s[0:1], {KA_V}
    s_load_dwordx2 s[8:9], s[0:1], {KA_WQ}
    s_load_dwordx2 s[10:11], s[0:1], {KA_WO}
    s_load_dwordx2 s[56:57], s[0:1], {KA_W1}
    """)
    stamp()
    srd(k, SRD_WS, 12, 13, 8 << 20)
    srd(k, DBG_SRD, 14, 15, 256)
    k(f"""
    s_cmp_ge_u32 s2, 48
    s_cbranch_scc1 L_nozero
    s_cmp_lg_u32 s{S_W}, 0
    s_cbranch_scc1 L_nozero
    s_lshl_b32 s3, s2, 8
    s_cmp_ge_u32 s2, 40
    s_cselect_b32 s14, {16384 - 40*256}, 0
    s_add_u32 s3, s3, s14
    s_add_u32 s3, s3, {CNT_OFF}
    v_mov_b32 v1, 0
    v_lshlrev_b32 v3, 2, v0
    buffer_store_dword v1, v3, s[{SRD_WS}:{SRD_WS+3}], s3 offen sc1
    s_waitcnt vmcnt(0)
    v_mov_b32 v3, 1
    v_cmp_eq_u32 vcc, 0, v0
    s_and_saveexec_b64 s[14:15], vcc
    buffer_atomic_add v3, v1, s[{DBG_SRD}:{DBG_SRD+3}], 0 offen
    s_mov_b64 exec, s[14:15]
    L_nozero:
    s_lshl_b32 s14, s{S_G}, 19          ; g*524288
    s_lshl_b32 s3, s{S_G}, 21           ; g*2MB
    s_add_u32 s3, s3, {SLAB_OFF}
    s_waitcnt lgkmcnt(0)
    s_add_u32 s16, s16, s14
    s_addc_u32 s17, s17, 0
    s_mov_b32 s18, 524288
    s_mov_b32 s19, 0x00020000
    s_add_u32 s20, s20, s14
    s_addc_u32 s21, s21, 0
    s_mov_b32 s22, 524288
    s_mov_b32 s23, 0x00020000
    s_mov_b32 s58, {2048*3584}
    s_mov_b32 s59, 0x00020000
    """)
    srd(k, SRD_WQ, 8, 9, 4194304)
    srd(k, SRD_WO, 10, 11, 4194304)
    srd_off(k, SRD_SL, 12, 13, "s3", 2097152)
    k(f"""
    s_and_b32 s{S_NT}, s{S_XCD}, 1
    s_lshl_b32 s{S_NT}, s{S_NT}, 2
    s_and_b32 s3, s{S_IDX}, 3
    s_add_u32 s{S_NT}, s{S_NT}, s3
    s_mov_b32 s{S_NT2}, s{S_NT}
    s_lshr_b32 s{S_MT}, s{S_XCD}, 1
    s_lshl_b32 s{S_MT2}, s{S_MT}, 3
    s_mul_i32 s{S_MT}, s{S_MT}, 7
    s_lshr_b32 s3, s{S_IDX}, 2
    s_add_u32 s{S_MT}, s{S_MT}, s3
    s_add_u32 s{S_MT2}, s{S_MT2}, s3
    s_lshl_b32 s14, s{S_W}, 6
    v_add_u32 v1, s14, v0               ; tid
    v_lshrrev_b32 v2, 4, v1
    v_and_b32 v3, 15, v1
    v_lshlrev_b32 v2, 13, v2
    v_lshl_add_u32 v250, v3, 6, v2
    v_lshlrev_b32 v251, 6, v1           ; tid*64
    """)
    k(f"""
    v_lshrrev_b32 v1, 4, v0             ; l>>4 (0..3)
    v_and_b32 v2, 15, v0                ; p = l&15
    ; DV: (l>>4)*256 + ((p ^ ((l>>4)<<2))*16)
    v_lshlrev_b32 v3, 2, v1
    v_xor_b32 v3, v2, v3
    v_lshlrev_b32 v3, 4, v3
    v_lshl_add_u32 v{DV}, v1, 8, v3
    v_lshl_add_u32 v{DW}, v1, 13, v3
    """)
    for i in range(4):
        k(f"""
        v_add_u32 v4, {4*i}, v1
        v_xor_b32 v4, v2, v4
        v_lshlrev_b32 v4, 4, v4
        v_lshl_add_u32 v{DK+i}, v1, 8, v4
        """)
    k(f"""
    v_and_b32 v4, 31, v0
    v_lshrrev_b32 v5, 5, v0             ; hf
    v_xor_b32 v6, v5, v2
    v_lshlrev_b32 v7, 8, v4
    """)
    for t in range(8):
        k.e(f"v_xor_b32 v8, {2*t}, v6")
        k.e(f"v_lshl_add_u32 v{KA+t}, v8, 4, v7")
    k(f"""
    v_bfe_u32 v8, v0, 2, 2              ; r
    v_bfe_u32 v9, v0, 4, 1              ; csub
    v_and_b32 v10, 3, v0                ; c
    v_lshl_add_u32 v11, v5, 2, v8       ; 4hf + r
    v_lshlrev_b32 v11, 8, v11
    v_lshl_add_u32 v11, v9, 5, v11
    v_lshl_add_u32 v12, v10, 3, v11
    """)
    for db in range(4):
        k.e(f"v_xor_b32 v13, {db}, v8")
        k.e(f"v_lshl_add_u32 v13, v13, 6, v12")
        k.e(f"v_add_u32 v{VA+db}, {VRING}, v13")
    k(f"""
    s_and_b32 s14, s{S_W}, 1
    s_lshl_b32 s14, s14, 14
    s_lshr_b32 s15, s{S_W}, 1
    s_mul_i32 s15, s15, {131072-32768}
    s_add_u32 s{S_WRING}, s14, s15
    s_add_u32 s{S_WRING}, s{S_WRING}, 32768
    v_lshl_add_u32 v11, v5, 3, v8
    v_lshlrev_b32 v11, 8, v11
    v_lshl_add_u32 v11, v9, 5, v11
    v_and_b32 v13, 1, v10
    v_lshrrev_b32 v14, 1, v10
    v_lshl_or_b32 v13, v13, 1, v14      ; sigma(c)
    v_lshl_add_u32 v11, v13, 3, v11
    v_add_u32 v11, s{S_WRING}, v11
    """)
    for db in range(4):
        k.e(f"v_xor_b32 v13, {db}, v8")
        k.e(f"v_lshl_add_u32 v{WA+db}, v13, 6, v11")
    k(f"""
    v_lshlrev_b32 v15, 4, v0            ; lane*16
    v_add_u32 v{XA}, {XT}, v15
    s_lshr_b32 s14, s{S_IDX}, 1
    s_lshl_b32 s14, s14, 18             ; 32*8192*j
    s_lshl_b32 s15, s{S_G}, 10
    s_add_u32 s14, s14, s15
    """)
    k(f"""
    s_and_b32 s14, s{S_W}, 1
    s_lshl_b32 s14, s14, 14
    s_lshr_b32 s15, s{S_W}, 1
    s_mul_i32 s15, s15, {131072-32768}
    s_add_u32 s{S_WRING}, s14, s15
    s_add_u32 s{S_WRING}, s{S_WRING}, 32768
    """)
    k(f"""
    s_lshl_b32 s14, s{S_G}, 2
    s_add_u32 s14, s14, s{S_W}
    s_lshl_b32 s{S_WOFF}, s14, 8
    """)
    def wdma(t, srd, RS):
        out = [f"s_add_u32 m0, s{S_WRING}, {(t&3)*4096}"]
        for i in range(4):
            if i == 0:
                out.append("s_nop 0")
                out.append(f"buffer_load_dwordx4 v{DW}, s[{srd}:{srd+3}], s{S_WOFF} offen lds")
            else:
                out.append(f"s_add_u32 s{S_WOFF}, s{S_WOFF}, {4*RS-1024}")
                out.append(f"buffer_load_dwordx4 v{DW}, s[{srd}:{srd+3}], s{S_WOFF} offen offset:{1024*i} lds")
        out.append(f"s_add_u32 s{S_WOFF}, s{S_WOFF}, {4*RS+3072}")
        return out
    k(f"""
    s_lshl_b32 s{S_KOFF}, s{S_W}, 12          ; w*4096
    s_mov_b32 s{S_M0K}, s{S_KOFF}
    s_add_u32 s{S_M0V}, s{S_KOFF}, {VRING}
    s_mov_b32 s{S_VOFF}, s{S_KOFF}
    """)
    def kdma(slot):
        out = [f"s_add_u32 m0, s{S_M0K}, {slot*16384}", "s_nop 0"]
        for i in range(4):
            out.append(f"buffer_load_dwordx4 v{DK+i}, s[{SRD_K}:{SRD_K+3}], s{S_KOFF} offen offset:{1024*i} {POL()} lds")
        out.append(f"s_add_u32 s{S_KOFF}, s{S_KOFF}, 16384")
        return out
    def vdma(slot):
        out = [f"s_add_u32 m0, s{S_M0V}, {slot*16384}", "s_nop 0"]
        for i in range(4):
            out.append(f"buffer_load_dwordx4 v{DV}, s[{SRD_V}:{SRD_V+3}], s{S_VOFF} offen offset:{1024*i} {POL()} lds")
        out.append(f"s_add_u32 s{S_VOFF}, s{S_VOFF}, 16384")
        return out
    for ins in kdma(0) + kdma(1): k.e(ins)
    for t in range(4):
        for ins in wdma(t, SRD_WQ, 8192): k.e(ins)
    k(f"""
    s_lshr_b32 s14, s{S_IDX}, 1
    s_lshl_b32 s14, s14, 18
    s_lshl_b32 s15, s{S_G}, 10
    s_add_u32 s14, s14, s15
    buffer_load_dword v246, v250, s[{SRD_WQ}:{SRD_WQ+3}], s14 offen
    s_add_u32 s14, s14, {16*8192}
    buffer_load_dword v247, v250, s[{SRD_WQ}:{SRD_WQ+3}], s14 offen
    """)
    local_ln(k)
    k.e("s_waitcnt vmcnt(18) lgkmcnt(0)")
    k.e("s_barrier")
    h_read(k)
    stamp()
    late = []
    gen_proj(k, "q", SRD_WQ, 8192, True, True, late)
    stamp()
    k(f"""
    s_waitcnt vmcnt(0) lgkmcnt(0)
    s_barrier
    """)
    for ins in vdma(0) + kdma(2) + vdma(1): k.e(ins)
    k.e(f"s_load_dwordx2 s[8:9], s[0:1], {KA_W2}")
    k(f"""
    s_lshl_b32 s14, s{S_W}, 6
    v_add_u32 v1, s14, v0                       ; tid
    v_lshrrev_b32 v2, 1, v1
    v_and_b32 v3, 1, v1
    v_lshlrev_b32 v4, 12, v2
    v_lshl_add_u32 v253, v3, 6, v4
    s_movk_i32 s14, 3584
    v_mul_lo_u32 v2, v2, s14
    v_lshl_add_u32 v250, v3, 6, v2
    s_waitcnt lgkmcnt(0)
    """)
    srd(k, SRD_WQ, 8, 9, 1792 * 4096)
    k.e(f"s_mov_b32 s14, {f2h(cscale)}")
    k.e(f"s_mov_b32 s15, {f2h(cscale)}")
    k.e("s_nop 7")
    for db in range(4):
        for qb in range(2):
            a = PACC + (db * 2 + qb) * 16
            for r in range(0, 16, 2):
                k.e(f"v_pk_mul_f32 v[{a+r}:{a+r+1}], v[{a+r}:{a+r+1}], s[14:15]")
            for r in range(0, 16, 2):
                q = QF + qb * 32 + (2 * db + (r >> 3)) * 4 + ((r & 7) >> 1)
                k.e(f"v_cvt_pk_bf16_f32 v{q}, v{a+r}, v{a+r+1}")
    h_phase(k)
    k(f"""
    v_mov_b32 v{UFL}, 0
    buffer_load_dword v{UFL}, v{UFL}, s[{DBG_SRD}:{DBG_SRD+3}], 0 offen sc1
    """)
    for t in range(4):
        for ins in k_read(0, t, t): k.e(ins)
    for t in range(8):
        k.e(f"s_waitcnt lgkmcnt({min(3, 7-t)})")
        for qb in range(2):
            d = Sbuf(0, qb)
            k.e(mfma(d, KF + (t & 3) * 4, QF + qb * 32 + t * 4, "0" if t == 0 else d))
        if t + 4 < 8:
            for ins in k_read(0, t + 4, t + 4): k.e(ins)
    for i in range(128):
        k.e(f"v_accvgpr_write_b32 a{OA+i}, 0")
    k.e(f"v_mov_b32 v{LL}, 0")
    k.e(f"v_mov_b32 v{LL+1}, 0")
    k.e(f"v_mov_b32 v{LS+2}, 0")
    k.e(f"v_mov_b32 v{LS+3}, 0")
    k.e(f"s_mov_b32 s{S_THR}, {f2h(2.0**THR_LOG2)}")
    for qb in range(2):
        S = Sbuf(0, qb)
        t, t2 = T0, T0 + 1
        k.e(f"v_max3_f32 v{t}, v{S}, v{S+1}, v{S+2}")
        for r in range(3, 15, 2):
            k.e(f"v_max3_f32 v{t}, v{t}, v{S+r}, v{S+r+1}")
        k.e(f"v_max_f32 v{t}, v{t}, v{S+15}")
        k.e(f"v_mov_b32 v{t2}, v{t}")
        k.e("s_nop 1")
        k.e(f"v_permlane32_swap_b32 v{t2}, v{t}")
        k.e(f"v_max_f32 v{t}, v{t}, v{t2}")
        for r in range(16):
            k.e(f"v_sub_f32 v{S+r}, v{S+r}, v{t}")
            k.e(f"v_sub_f32 v{NEGM+16*qb+r}, 0, v{t}")
    if M.SCHED2:
        k.e(f"v_exp_f32 v{ET}, v{Sbuf(0,0)}")
        k.e(f"v_exp_f32 v{ET+1}, v{Sbuf(0,0)+1}")
    k.e("s_waitcnt vmcnt(11)")
    k.e("s_barrier")
    stamp()
    for ins in k_read(1, 0, 0) + k_read(1, 1, 1): k.e(ins)
    rare_sites = []
    def dma_plan(lst):
        return {8: [lst[0]], 11: [lst[2]], 15: [lst[3]], 19: [lst[4]], 23: [lst[5]], 27: [lst[6]]}
    def step(u, rid, **kw):
        S = dict(do_qk=True, do_pv=True, qk_next=True, pv_next=True, dma=None, pre=None, prev7=3)
        S.update(kw)
        lk = Look(u, S['do_qk'], S['do_pv'], S['qk_next'], S['pv_next'])
        lk.prev7 = S['prev7']
        gen_step(k, u, S['do_qk'], S['do_pv'], True, lk, S['dma'], S['pre'], rid)
        rare_sites.append((rid, u & 1))
    d0 = dma_plan(kdma(3))
    d0[28] = [f"s_lshr_b32 s14, s{S_IDX}, 1", f"s_lshl_b32 s14, s14, 15", f"s_lshl_b32 s15, s{S_G}, 19", "s_add_u32 s14, s14, s15",
              f"buffer_load_dword v248, v251, s[{SRD_WO}:{SRD_WO+3}], s14 offen"]
    d0[29] = ["s_add_u32 s14, s14, 16384", f"buffer_load_dword v249, v251, s[{SRD_WO}:{SRD_WO+3}], s14 offen"]
    step(0, "s0", do_pv=False, dma=d0, prev7=1)
    k(f"""
    s_waitcnt vmcnt(6)
    s_barrier
    s_cmp_lg_u32 s{S_W}, 0
    s_cbranch_scc1 L_hsig_done
    v_readfirstlane_b32 s14, v{UFL}
    s_cmp_ge_u32 s14, 48
    s_cbranch_scc1 L_rdy_ok
    s_mov_b32 s{S_FLG}, {POLL_MAX}
    v_mov_b32 v1, 0
    L_rdy_poll:
    buffer_load_dword v4, v1, s[{DBG_SRD}:{DBG_SRD+3}], 0 offen sc1
    s_waitcnt vmcnt(0)
    v_readfirstlane_b32 s14, v4
    s_cmp_ge_u32 s14, 48
    s_cbranch_scc1 L_rdy_ok
    s_sleep 8
    s_sub_u32 s{S_FLG}, s{S_FLG}, 1
    s_cmp_lg_u32 s{S_FLG}, 0
    s_cbranch_scc1 L_rdy_poll
    L_rdy_ok:
    s_lshl_b32 s14, s{S_XCD}, 8
    s_add_u32 s14, s14, {HCNT_OFF}
    v_mov_b32 v1, 0
    v_mov_b32 v4, 1
    v_cmp_eq_u32 vcc, 0, v0
    s_and_saveexec_b64 s[12:13], vcc
    buffer_atomic_add v4, v1, s[{SRD_WS}:{SRD_WS+3}], s14 offen
    s_mov_b64 exec, s[12:13]
    L_hsig_done:
    """)
    k.e(f"s_mov_b32 s{S_CNT}, 7")
    k.lab("L_main")
    for uu in range(1, 9):
        j = uu >> 1
        pre = None
        if uu & 1 == 0:
            pre = ["s_waitcnt vmcnt(8)", "s_barrier"]
            dm = dma_plan(kdma((j + 3) & 3))
        else:
            dm = dma_plan(vdma((j + 2) & 3))
        step(uu, f"m{uu}", dma=dm, pre=pre)
    k.e(f"s_sub_u32 s{S_CNT}, s{S_CNT}, 1")
    k.e(f"s_cmp_lg_u32 s{S_CNT}, 0")
    k.e(f"s_cbranch_scc1 L_main")
    def ta(i):
        return [f"s_and_b32 s14, s{S_IDX}, 3", f"s_mul_i32 s14, s14, {512*3584}", f"s_lshl_b32 s15, s{S_MT}, 7",
                f"s_add_u32 s14, s14, s15", f"s_add_u32 s14, s14, {i*128*3584}",
                f"buffer_load_dword v{246+(i&1)}, v250, s[{SRD_W1}:{SRD_W1+3}], s14 offen"]
    def tb(i):
        return [f"s_lshl_b32 s14, s{S_NT}, 18", f"s_lshr_b32 s15, s{S_IDX}, 2", f"s_and_b32 s15, s15, 3", f"s_lshl_b32 s15, s15, 16",
                f"s_add_u32 s14, s14, s15", f"s_add_u32 s14, s14, {HF_OFF + i*16384}",
                f"buffer_load_dword v{248+(i&1)}, v251, s[{SRD_WS}:{SRD_WS+3}], s14 offen sc1"]
    def merge(d, g, lst):
        d = dict(d) if d else {}
        d[g] = d.get(g, []) + lst
        return d
    k(f"""
    v_and_b32 v{UFL}, 7, v0
    v_lshlrev_b32 v{UFL}, 8, v{UFL}
    s_mov_b32 s14, {HCNT_OFF}
    buffer_load_dword v{UFL}, v{UFL}, s[{SRD_WS}:{SRD_WS+3}], s14 offen sc1
    """)
    step(57, "t57", dma=merge(dma_plan(vdma((28 + 2) & 3)), 29, ta(0)))
    step(58, "t58", pre=["s_waitcnt vmcnt(5)", "s_barrier", f"v_cmp_le_u32 vcc, 32, v{UFL}", "s_cmp_eq_u64 vcc, -1", "s_cbranch_scc1 L_hok", "UPOLL", "L_hok:"],
         dma=merge(merge(merge(merge(None, 3, ta(1)), 11, tb(0)), 19, ta(2)), 27, tb(1)))
    step(59, "t59", dma=merge(merge(merge(dma_plan(vdma((29 + 2) & 3)), 28, ta(3)), 29, tb(2)), 30, tb(3)))
    step(60, "t60", pre=["s_waitcnt vmcnt(11)", "s_barrier"])
    step(61, "t61")
    step(62, "t62", pre=["s_waitcnt vmcnt(3)", "s_barrier"], qk_next=False)
    step(63, "t63", do_qk=False, qk_next=False, prev7=2)
    p = 63 & 1
    k.e(f"v_add_f32 v{LL}, v{LL}, v{LS+2*p}")
    k.e(f"v_add_f32 v{LL+1}, v{LL+1}, v{LS+2*p+1}")
    for i in range(8):
        nxt = v_read(63, i + 2, i + 2) if i + 2 < 8 else []
        prevn = 2 if (i == 0 or i + 1 < 8) else 0
        k.e(f"s_waitcnt lgkmcnt({prevn})")
        db, ks = i >> 1, i & 1
        for qb in range(2):
            d = OA + (db * 2 + qb) * 16
            k.e(mfma(d, VF + (i & 3) * 4, Pbuf(p, qb, ks), d, dfile='a'))
            if qb == 0:
                for ins in nxt: k.e(ins)
    k.e("s_waitcnt lgkmcnt(0)")
    stamp()
    k(f"""
    s_waitcnt lgkmcnt(0)
    s_barrier
    """)
    def wo_ring():
        k(f"""
        s_lshl_b32 s{S_WRING}, s{S_W}, 14
        v_lshrrev_b32 v1, 4, v0
        v_mul_u32_u24 v1, {1024-256}, v1
        v_add_u32 v{DW}, v{DV}, v1
        s_lshl_b32 s{S_WOFF}, s{S_G}, 19
        s_lshl_b32 s14, s{S_W}, 8
        s_add_u32 s{S_WOFF}, s{S_WOFF}, s14
        """)
        for t in range(4):
            for ins in wdma(t, SRD_WO, 1024): k.e(ins)
    k.e(f"s_cmp_ge_u32 s{S_IDX}, 28")
    k.e("s_cbranch_scc1 L_no_g1")
    g1_phase(k, stamp, wo_ring)
    g1_finish(k)
    k.e("s_branch L_g1_done")
    k.lab("L_no_g1")
    wo_ring()
    nst[0] -= 2
    stamp(); stamp()
    k.lab("L_g1_done")
    k.e(f"s_sub_u32 s14, s{S_WRING}, {VRING}")
    for db in range(4):
        k.e(f"v_add_u32 v{WA+db}, s14, v{VA+db}")
    for qb in range(2):
        k.e(f"v_mov_b32 v{T0+qb}, v{LL+qb}")
    k.e("s_nop 1")
    for qb in range(2):
        k.e(f"v_permlane32_swap_b32 v{T0+qb}, v{LL+qb}")
    for qb in range(2):
        k.e(f"v_add_f32 v{LL+qb}, v{LL+qb}, v{T0+qb}")
    for qb in range(2):
        k.e(f"v_rcp_f32 v{LL+qb}, v{LL+qb}")
    k(f"""
    s_lshl_b32 s14, s{S_W}, 14
    s_add_u32 s14, s14, {XT}
    v_lshlrev_b32 v15, 4, v0
    v_add_u32 v14, s14, v15
    v_add_u32 v{XA}, {XT}, v15
    """)
    for db in range(4):
        for qb in range(2):
            for ks in range(2):
                tb = S0 + ((db * 4 + qb * 2 + ks) & 3) * 16
                for r in range(8):
                    k.e(f"v_accvgpr_read_b32 v{tb+r}, a{OA+(db*2+qb)*16+ks*8+r}")
                for r in range(8):
                    k.e(f"v_mul_f32 v{tb+r}, v{tb+r}, v{LL+qb}")
                for r in range(0, 8, 2):
                    k.e(f"v_cvt_pk_bf16_f32 v{tb+8+r//2}, v{tb+r}, v{tb+r+1}")
                k.e(f"ds_write_b128 v14, v[{tb+8}:{tb+11}] offset:{(2*db+ks)*2048 + qb*1024}")
    if debug == "o":
        k("""
        s_waitcnt vmcnt(0) lgkmcnt(0)
        s_barrier
        """)
        k(f"""
        s_lshl_b32 s14, s{S_RB}, 16
        s_lshl_b32 s15, s{S_W}, 14
        s_add_u32 s14, s14, s15
        v_add_u32 v13, s15, v{XA}
        """)
        for i in range(16):
            k.e(f"ds_read_b128 v[16:19], v13 offset:{i*1024}")
            k.e("s_waitcnt lgkmcnt(0)")
            k.e(f"buffer_store_dwordx4 v[16:19], v15, s[{SRD_SL}:{SRD_SL+3}], s14 offen")
            k.e("s_add_u32 s14, s14, 1024")
            k.e("s_waitcnt vmcnt(0)")
        k.e("s_endpgm")
    k("""
    s_waitcnt vmcnt(0) lgkmcnt(0)
    s_barrier
    """)
    k.e(f"s_cmp_ge_u32 s{S_IDX}, 28")
    k.e("s_cbranch_scc1 L_no_usig")
    k.e(f"s_lshl_b32 s14, s{S_NT}, 8")
    k.e(f"s_add_u32 s14, s14, {UCNT_OFF}")
    k.e(f"s_mov_b32 s15, s{S_WRING}")
    signal(k, "u", 14)
    k.e(f"s_mov_b32 s{S_WRING}, s15")
    k.lab("L_no_usig")
    stamp()
    def tw(i):
        return [f"s_and_b32 s14, s{S_IDX}, 3", f"s_mul_i32 s14, s14, {448*4096}", f"s_lshl_b32 s15, s{S_MT2}, 7",
                f"s_add_u32 s14, s14, s15", f"s_add_u32 s14, s14, {i*128*4096}",
                f"buffer_load_dword v{246+(i&1)}, v253, s[{SRD_WQ}:{SRD_WQ+3}], s14 offen"]
    ufl = [f"s_lshl_b32 s14, s{S_NT2}, 8", f"s_add_u32 s14, s14, {UCNT_OFF}", f"v_mov_b32 v{UFL}, 0",
           f"buffer_load_dword v{UFL}, v{UFL}, s[{SRD_DBG}:{SRD_DBG+3}], s14 offen sc1"]
    gen_proj(k, "o", SRD_WO, 1024, False, True, ufl + tw(0) + tw(1) + tw(2) + tw(3))
    stamp()
    vm1 = Ctr(63)
    k.e("s_waitcnt vmcnt(4) lgkmcnt(0)")
    k.e(f"v_readfirstlane_b32 s14, v{UFL}")
    k.e("s_cmp_ge_u32 s14, 28")
    k.e("s_cbranch_scc1 L_u_nopoll")
    k.e(f"s_cmp_lg_u32 s{S_W}, 0")
    k.e("s_cbranch_scc1 L_u_nopoll")
    k.e(f"s_lshl_b32 s14, s{S_NT2}, 8")
    k.e(f"s_add_u32 s14, s14, {UCNT_OFF}")
    poll(k, "u", 14, 28)
    k.lab("L_u_nopoll")
    k.e("s_barrier")
    g2_setup(k, vm1)
    k(f"""
    v_lshlrev_b32 v1, 4, v0
    s_lshl_b32 s14, s{S_RB}, 16          ; rb*65536
    s_lshl_b32 s15, s{S_W}, 14           ; w*16384
    s_add_u32 s14, s14, s15
    """)
    for cb in range(4):
        for qb in range(2):
            a = PACC + (cb * 2 + qb) * 16
            o = a
            for r in range(0, 16, 2):
                k.e(f"v_cvt_pk_bf16_f32 v{o+r//2}, v{a+r}, v{a+r+1}")
            k.e("s_nop 1")
            for pr in range(2):
                k.e(f"v_permlane32_swap_b32 v{o+4*pr}, v{o+4*pr+2}")
                k.e(f"v_permlane32_swap_b32 v{o+4*pr+1}, v{o+4*pr+3}")
            for pr in range(2):
                idx = cb * 4 + qb * 2 + pr
                k.e(f"buffer_store_dwordx4 v[{o+4*pr}:{o+4*pr+3}], v1, s[{SRD_SL}:{SRD_SL+3}], s14 offen offset:{(idx&3)*1024} sc1")
                vm1.issue(("ST", 0))
                if (idx & 3) == 3: k.e("s_add_u32 s14, s14, 4096")
    stamp()
    g2_main(k, vm1, stamp)
    if prof == 'tl':
        tl_end(k, prof, kidx)
    if prof is True:
        k.e("s_waitcnt vmcnt(0)")
        stamp()
        k.e(f"s_load_dwordx2 s[12:13], s[0:1], {KA_WS}")
        k.e("s_waitcnt lgkmcnt(0)")
        srd_off(k, 4, 12, 13, 64 << 20, 1 << 20)
        k.e(f"s_lshl_b32 s14, s2, 2")
        k.e(f"s_add_u32 s14, s14, s{S_W}")
        k.e(f"s_lshl_b32 s14, s14, 7")
        for i in range(nst[0]):
            k.e(f"v_mov_b32 v2, s{64+2*i}")
            k.e(f"v_mov_b32 v3, s{65+2*i}")
            k.e(f"v_mov_b32 v1, {8*i}")
            k.e(f"buffer_store_dwordx2 v[2:3], v1, s[4:7], s14 offen")
        tl_end(k, prof, kidx)
    k.lab("L_at_done")
    k.e("s_endpgm")
    for rid, p in rare_sites:
        k.lab(f"L_rare_{rid}")
        k.e(f"s_call_b64 s[{S_RET}:{S_RET+1}], L_raresub_{p}")
        k.e(f"s_branch L_back_{rid}")
    gen_rare(k, 0)
    gen_rare(k, 1)
    return k.text(), kernel_desc(name, 512, 102, 256), f"; @launch kernel={name} grid=(256,1,1) block=(256,1,1) lds=163840"
```

```python
from common import *
import k_main as M
from k_main import *
from k_ln import ln_rows
import math

S_MT2, S_NT2 = 10, 11
S_IDX, S_XCD = 32, 33
HCNT_OFF = CNT_OFF + 16384
DBG_SRD = 4
S_FLG = 51
SRD_DBG = 60
UCNT_OFF = CNT_OFF + 8192
POLL_MAX = 1 << 20

def poll(k, tag, off_sgpr, target):
    k(f"""
    s_mov_b32 s{S_FLG}, {POLL_MAX}
    v_mov_b32 v1, 0
    L_poll_{tag}:
    buffer_load_dword v4, v1, s[{SRD_DBG}:{SRD_DBG+3}], s{off_sgpr} offen sc1
    s_waitcnt vmcnt(0)
    v_readfirstlane_b32 s3, v4
    s_cmp_ge_u32 s3, {target}
    s_cbranch_scc1 L_polld_{tag}
    s_sleep 16
    s_sub_u32 s{S_FLG}, s{S_FLG}, 1
    s_cmp_lg_u32 s{S_FLG}, 0
    s_cbranch_scc1 L_poll_{tag}
    L_polld_{tag}:
    """)

def signal(k, tag, off_sgpr):
    k(f"""
    s_cmp_lg_u32 s{S_W}, 0
    s_cbranch_scc1 L_sig_{tag}
    v_mov_b32 v1, 0
    v_mov_b32 v4, 1
    v_cmp_eq_u32 vcc, 0, v0
    s_and_saveexec_b64 s[48:49], vcc
    buffer_atomic_add v4, v1, s[{SRD_DBG}:{SRD_DBG+3}], s{off_sgpr} offen
    s_mov_b64 exec, s[48:49]
    L_sig_{tag}:
    """)


def zip_streams(k, a, b):
    A = [l.strip() for l in a]; B = [l.strip() for l in b]
    assert len(A) == len(B)
    for x, y in zip(A, B):
        if x.startswith("s_nop"):
            if x == "s_nop 1": k.e("s_nop 0")
            continue
        k.e(x); k.e(y)

def local_ln(k):
    SUMA, SQA = 128, 130
    T = 132
    for i in range(16):
        k.e(f"s_waitcnt vmcnt({XYOUNG + 15 - i})")
        for j in range(4):
            src = 64 + 4 * i + j
            t = T + 2 * j
            k.e(f"v_lshlrev_b32 v{t}, 16, v{src}")
            k.e(f"v_and_b32 v{t+1}, 0xffff0000, v{src}")
        for j in range(4):
            t = T + 2 * j
            if i == 0 and j == 0:
                k.e(f"v_pk_mul_f32 v[{SQA}:{SQA+1}], v[{t}:{t+1}], v[{t}:{t+1}]")
                k.e(f"v_mov_b32 v{SUMA}, v{t}")
                k.e(f"v_mov_b32 v{SUMA+1}, v{t+1}")
            else:
                k.e(f"v_pk_add_f32 v[{SUMA}:{SUMA+1}], v[{SUMA}:{SUMA+1}], v[{t}:{t+1}]")
                k.e(f"v_pk_fma_f32 v[{SQA}:{SQA+1}], v[{t}:{t+1}], v[{t}:{t+1}], v[{SQA}:{SQA+1}]")
    S, Q, t1, t2 = 140, 141, 142, 143
    k.e(f"v_add_f32 v{S}, v{SUMA}, v{SUMA+1}")
    k.e(f"v_add_f32 v{Q}, v{SQA}, v{SQA+1}")
    for sw in ("v_permlane16_swap_b32", "v_permlane32_swap_b32"):
        k.e(f"v_mov_b32 v{t1}, v{S}")
        k.e(f"v_mov_b32 v{t2}, v{Q}")
        k.e("s_nop 1")
        k.e(f"{sw} v{t1}, v{S}")
        k.e(f"{sw} v{t2}, v{Q}")
        k.e(f"v_add_f32 v{S}, v{S}, v{t1}")
        k.e(f"v_add_f32 v{Q}, v{Q}, v{t2}")
    MB, R = 144, 146
    k(f"""
    v_mul_f32 v{S}, 0x3b000000, v{S}           ; mean
    v_mul_f32 v{Q}, 0x3b000000, v{Q}           ; E[x^2]
    v_fma_f32 v{Q}, -v{S}, v{S}, v{Q}          ; var
    v_max_f32 v{Q}, 0, v{Q}
    v_cvt_pk_bf16_f32 v{MB}, v{S}, v{S}
    v_lshlrev_b32 v{MB}, 16, v{MB}
    v_mov_b32 v{MB+1}, v{MB}
    v_cvt_pk_bf16_f32 v{Q}, v{Q}, v{Q}
    v_lshlrev_b32 v{Q}, 16, v{Q}
    v_add_f32 v{Q}, 0x3727c5ac, v{Q}
    v_cvt_pk_bf16_f32 v{Q}, v{Q}, v{Q}
    v_lshlrev_b32 v{Q}, 16, v{Q}
    v_sqrt_f32 v{Q}, v{Q}
    s_nop 0
    v_cvt_pk_bf16_f32 v{Q}, v{Q}, v{Q}
    v_lshlrev_b32 v{Q}, 16, v{Q}
    v_rcp_f32 v{R}, v{Q}
    s_nop 0
    v_fma_f32 v{t1}, -v{Q}, v{R}, 1.0
    v_fma_f32 v{R}, v{t1}, v{R}, v{R}
    v_mov_b32 v{R+1}, v{R}
    v_lshrrev_b32 v1, 4, v0                     ; part
    v_and_b32 v2, 15, v0                        ; r
    v_lshrrev_b32 v3, 1, v1
    v_lshlrev_b32 v3, 11, v3                    ; (part>>1)*2048
    v_and_b32 v4, 1, v1
    v_lshl_add_u32 v3, v4, 9, v3                ; + (part&1)*512
    v_lshl_add_u32 v3, v2, 4, v3                ; + r*16
    s_lshr_b32 s3, s{S_W}, 1
    s_lshl_b32 s3, s3, 10                       ; qb*1024
    s_and_b32 s14, s{S_W}, 1
    s_lshl_b32 s14, s14, 8                      ; 16*(w&1)*16
    s_add_u32 s3, s3, s14
    s_add_u32 s3, s3, {XT}
    v_add_u32 v3, s3, v3
    """)
    for i in range(16):
        O = 148 + (i & 1) * 4
        for j in range(4):
            src = 64 + 4 * i + j
            t = T + 2 * j
            k.e(f"v_lshlrev_b32 v{t}, 16, v{src}")
            k.e(f"v_and_b32 v{t+1}, 0xffff0000, v{src}")
        for j in range(4):
            t = T + 2 * j
            k.e(f"v_pk_add_f32 v[{t}:{t+1}], v[{t}:{t+1}], v[{MB}:{MB+1}] neg_lo:[0,1] neg_hi:[0,1]")
        for j in range(4):
            t = T + 2 * j
            k.e(f"v_cvt_pk_bf16_f32 v{156+j}, v{t}, v{t+1}")
        for j in range(4):
            t = T + 2 * j
            k.e(f"v_lshlrev_b32 v{t}, 16, v{156+j}")
            k.e(f"v_and_b32 v{t+1}, 0xffff0000, v{156+j}")
        for j in range(4):
            t = T + 2 * j
            k.e(f"v_pk_mul_f32 v[{t}:{t+1}], v[{t}:{t+1}], v[{R}:{R+1}]")
        for j in range(4):
            t = T + 2 * j
            k.e(f"v_cvt_pk_bf16_f32 v{O+j}, v{t}, v{t+1}")
        k.e(f"ds_write_b128 v3, v[{O}:{O+3}] offset:{i*4096}")

HROW = 208
def h_read(k):
    k(f"""
    s_lshl_b32 s3, s{S_G}, 3
    s_lshl_b32 s14, s{S_W}, 1
    s_add_u32 s3, s3, s14                       ; row_local
    s_lshr_b32 s14, s3, 5
    s_lshl_b32 s14, s14, 10                     ; qb*1024
    s_and_b32 s3, s3, 31
    s_lshl_b32 s3, s3, 4                        ; q*16
    s_add_u32 s3, s3, s14
    s_add_u32 s3, s3, {XT}
    v_lshrrev_b32 v1, 1, v0
    v_lshlrev_b32 v1, 11, v1
    v_and_b32 v2, 1, v0
    v_lshl_add_u32 v1, v2, 9, v1
    v_add_u32 v1, s3, v1
    ds_read_b128 v[{HROW}:{HROW+3}], v1
    ds_read_b128 v[{HROW+4}:{HROW+7}], v1 offset:16
    """)

H_LDS = 131072
def h_phase(k):
    streams = []
    for r in range(2):
        kk = Em()
        base = HB + r * 20
        X = list(range(base, base + 8))
        src = HROW + 4 * r
        for i in range(4):
            kk.e(f"v_lshlrev_b32 v{X[2*i]}, 16, v{src+i}")
            kk.e(f"v_and_b32 v{X[2*i+1]}, 0xffff0000, v{src+i}")
        ln_rows(kk, X, base + 8, base + 12)
        kk.e(f"ds_write_b128 v{HB+40+r}, v[{base+8}:{base+11}]")
        streams.append(kk.L)
    k(f"""
    v_lshlrev_b32 v{HB+40}, 4, v0
    s_lshl_b32 s3, s{S_W}, 11
    s_add_u32 s3, s3, {H_LDS}
    v_add_u32 v{HB+40}, s3, v{HB+40}
    v_add_u32 v{HB+41}, 1024, v{HB+40}
    """)
    zip_streams(k, streams[0], streams[1])
    k(f"""
    s_lshl_b32 s3, s{S_W}, 6
    v_add_u32 v{HB+42}, s3, v0                 ; tid
    v_lshlrev_b32 v{HB+43}, 1, v{HB+42}
    v_add_u32 v{HB+43}, {H_LDS}, v{HB+43}
    s_waitcnt lgkmcnt(0)
    s_barrier
    """)
    for p in range(2):
        for r in range(8):
            k.e(f"ds_read_u16 v{HB+p*8+r}, v{HB+43} offset:{r*1024 + p*512}")
    k(f"""
    s_lshl_b32 s13, s{S_RB}, 2
    s_lshr_b32 s14, s{S_G}, 1
    s_add_u32 s13, s13, s14
    s_lshl_b32 s13, s13, 10
    s_and_b32 s14, s{S_G}, 1
    s_lshl_b32 s14, s14, 9
    s_add_u32 s13, s13, s14
    s_add_u32 s13, s13, {HF_OFF}
    v_lshrrev_b32 v{HB+44}, 5, v{HB+42}
    v_lshlrev_b32 v{HB+44}, 17, v{HB+44}
    v_and_b32 v{HB+45}, 31, v{HB+42}
    v_lshl_add_u32 v{HB+44}, v{HB+45}, 4, v{HB+44}
    s_add_u32 s15, s13, {8*131072}
    s_waitcnt lgkmcnt(0)
    """)
    for p in range(2):
        for j in range(4):
            k.e(f"v_lshl_or_b32 v{HB+20+p*4+j}, v{HB+p*8+2*j+1}, 16, v{HB+p*8+2*j}")
    k.e(f"buffer_store_dwordx4 v[{HB+20}:{HB+23}], v{HB+44}, s[{SRD_WS}:{SRD_WS+3}], s13 offen sc1")
    k.e(f"buffer_store_dwordx4 v[{HB+24}:{HB+27}], v{HB+44}, s[{SRD_WS}:{SRD_WS+3}], s15 offen sc1")

HB = 16
XYOUNG = 26

def poll8(k, tag, off, target):
    k(f"""
    s_mov_b32 s{S_FLG}, {POLL_MAX}
    v_and_b32 v1, 7, v0
    v_lshlrev_b32 v1, 8, v1
    s_mov_b32 s3, {off}
    L_poll8_{tag}:
    buffer_load_dword v4, v1, s[{SRD_WS}:{SRD_WS+3}], s3 offen sc1
    s_waitcnt vmcnt(0)
    v_cmp_le_u32 vcc, {target}, v4
    s_cmp_eq_u64 vcc, -1
    s_cbranch_scc1 L_poll8d_{tag}
    s_sleep 16
    s_sub_u32 s{S_FLG}, s{S_FLG}, 1
    s_cmp_lg_u32 s{S_FLG}, 0
    s_cbranch_scc1 L_poll8_{tag}
    L_poll8d_{tag}:
    """)

G1PF, G1NS, G1NB = 7, 8, 8
def g1_setup_v(k):
    RS = 3584
    k(f"""
    v_lshrrev_b32 v3, 3, v0
    v_and_b32 v4, 7, v0
    v_lshrrev_b32 v5, 1, v3
    v_and_b32 v5, 1, v5
    v_lshlrev_b32 v5, 2, v5
    v_xor_b32 v4, v4, v5
    v_mul_u32_u24 v3, {RS}, v3
    v_lshl_add_u32 v10, v4, 4, v3
    v_lshlrev_b32 v11, 4, v0
    v_lshrrev_b32 v3, 5, v0
    v_bfe_u32 v4, v0, 4, 1
    v_bfe_u32 v5, v0, 2, 2
    v_and_b32 v6, 3, v0
    v_lshlrev_b32 v7, 3, v3
    v_add_u32 v7, v7, v5
    v_lshlrev_b32 v7, 7, v7
    v_lshl_add_u32 v7, v4, 5, v7
    v_lshl_add_u32 v7, v6, 3, v7
    s_lshl_b32 s3, s{S_W}, 14
    s_cmp_eq_u32 s{S_W}, 3
    s_cselect_b32 s3, 131072, s3
    v_add_u32 v7, s3, v7
    v_lshrrev_b32 v8, 1, v5
    v_lshlrev_b32 v9, 6, v8
    v_add_u32 v12, v7, v9
    v_xor_b32 v9, 64, v9
    v_add_u32 v13, v7, v9
    v_lshlrev_b32 v14, 3, v3
    """)

def g1_setup_s():
    RS, NKS, NKST = 3584, 32, 128
    return [[f"s_lshl_b32 s46, s{S_W}, 14", f"s_cmp_eq_u32 s{S_W}, 3", "s_cselect_b32 s46, 131072, s46"],
            [f"s_mul_i32 s43, s{S_W}, {NKS*16*RS}", f"s_lshl_b32 s3, s{S_MT}, 7", "s_add_u32 s43, s43, s3"],
            [f"s_lshl_b32 s44, s{S_NT}, 1", f"s_mul_i32 s44, s44, {NKST}", f"s_mul_i32 s3, s{S_W}, {NKS}", "s_add_u32 s44, s44, s3"],
            ["s_lshl_b32 s44, s44, 10", f"s_add_u32 s44, s44, {HF_OFF}", f"s_add_u32 s45, s44, {NKST*1024}"]]

def g1_A(ks, vm=None):
    RS = 3584
    out = [f"s_add_u32 m0, s46, {(ks % G1NS)*2048}",
           f"s_add_u32 s47, s43, {8*RS-1024}",
           f"buffer_load_dwordx4 v10, s[{SRD_W1}:{SRD_W1+3}], s43 offen lds",
           f"buffer_load_dwordx4 v10, s[{SRD_W1}:{SRD_W1+3}], s47 offen offset:1024 lds",
           f"s_add_u32 s43, s43, {16*RS}"]
    if vm: vm.issue(("A", ks)); vm.issue(("A", ks))
    return out

def g1_B(ks, vm=None):
    bs = 144 + (ks % G1NB) * 8
    out = [f"buffer_load_dwordx4 v[{bs}:{bs+3}], v11, s[{SRD_WS}:{SRD_WS+3}], s44 offen sc1",
           f"buffer_load_dwordx4 v[{bs+4}:{bs+7}], v11, s[{SRD_WS}:{SRD_WS+3}], s45 offen sc1",
           "s_add_u32 s44, s44, 1024", "s_add_u32 s45, s45, 1024"]
    if vm: vm.issue(("B", ks)); vm.issue(("B", ks))
    return out

def g1_bias_list(vm=None):
    out = [f"s_lshr_b32 s3, s{S_W}, 1", "s_lshl_b32 s3, s3, 6", f"s_lshl_b32 s47, s{S_MT}, 7", "s_add_u32 s3, s3, s47",
           "s_mov_b32 s12, s34", "s_mov_b32 s13, s35", f"s_mov_b32 s14, {1792*2}", "s_mov_b32 s15, 0x00020000"]
    for b in range(4):
        out.append(f"buffer_load_dwordx2 a[{176+2*b}:{177+2*b}], v14, s[12:15], s3 offen offset:{16*b}")
        if vm: vm.issue(("E", 0))
    return out

def onorm_groups():
    groups = []
    for db in range(4):
        for qb in range(2):
            for ks in range(2):
                i = db * 4 + qb * 2 + ks
                tb = 28 + (i & 1) * 16
                g = []
                for r in range(8):
                    g.append(f"v_accvgpr_read_b32 v{tb+r}, a{OA+(db*2+qb)*16+ks*8+r}")
                for r in range(0, 8, 2):
                    g.append(f"v_pk_mul_f32 v[{tb+r}:{tb+r+1}], v[{tb+r}:{tb+r+1}], v[{LLP+2*qb}:{LLP+2*qb+1}]")
                for r in range(0, 8, 2):
                    g.append(f"v_cvt_pk_bf16_f32 v{tb+8+r//2}, v{tb+r}, v{tb+r+1}")
                g.append(f"ds_write_b128 v2, v[{tb+8}:{tb+11}] offset:{(2*db+ks)*2048 + qb*1024}")
                groups.append(g)
    return groups
LLP = 60

def l_final(k):
    for qb in range(2):
        k.e(f"v_mov_b32 v{T0+qb+2}, v{LL+qb}")
    k.e("s_nop 1")
    for qb in range(2):
        k.e(f"v_permlane32_swap_b32 v{T0+qb+2}, v{LL+qb}")
    for qb in range(2):
        k.e(f"v_add_f32 v{LL+qb}, v{LL+qb}, v{T0+qb+2}")
    for qb in range(2):
        k.e(f"v_rcp_f32 v{LLP+2*qb}, v{LL+qb}")
    k(f"""
    s_lshl_b32 s3, s{S_W}, 14
    s_add_u32 s3, s3, {XT}
    v_lshlrev_b32 v15, 4, v0
    v_add_u32 v2, s3, v15
    v_add_u32 v{XA}, {XT}, v15
    v_mov_b32 v{LLP+1}, v{LLP}
    v_mov_b32 v{LLP+3}, v{LLP+2}
    """)

def g1_phase(k, vm, stamp, after_exchange):
    NKS = 32
    PF, NS, NB = G1PF, G1NS, G1NB
    ACC, AF, BF = 64, 128, 144
    def tr(ks):
        slot = ks % NS
        out = []
        for mb in range(2):
            for bp in range(2):
                d = AF + (ks & 1) * 8 + mb * 4 + bp * 2
                out.append(f"ds_read_b64_tr_b16 v[{d}:{d+1}], v{12+mb} offset:{slot*2048 + bp*512}")
        return out
    n = vm.need(lambda t: t == ("A", 0))
    k.e(f"s_waitcnt vmcnt({n})")
    stamp()
    for ins in tr(0): k.e(ins)
    ng = onorm_groups()
    flat = [x for g in ng for x in g]
    per = (len(flat) + NKS - 1) // NKS
    for ks in range(NKS):
        n = vm.need(lambda t: (t[0] == "A" and t[1] <= ks + 1) or (t[0] == "B" and t[1] <= ks))
        k.e("s_waitcnt lgkmcnt(0)" if n is None else f"s_waitcnt vmcnt({n}) lgkmcnt(0)")
        bs = BF + (ks % NB) * 8
        fill = tr(ks + 1) if ks + 1 < NKS else []
        extra = flat[ks * per:(ks + 1) * per]
        mf = []
        for mb in range(2):
            for nb in range(2):
                d = ACC + (mb * 2 + nb) * 16
                mf.append(mfma(d, AF + (ks & 1) * 8 + mb * 4, bs + nb * 4, "0" if ks == 0 else d, dfile='v', afile='v', bfile='v'))
        k.e(mf[0])
        for ins in fill[:2]: k.e(ins)
        for ins in extra[:3]: k.e(ins)
        k.e(mf[1])
        for ins in fill[2:]: k.e(ins)
        for ins in extra[3:6]: k.e(ins)
        k.e(mf[2])
        for ins in extra[6:]: k.e(ins)
        k.e(mf[3])
        if ks + PF < NKS:
            for ins in g1_B(ks + PF, vm) + g1_A(ks + PF, vm): k.e(ins)
    stamp()
    k.e("s_nop 7")
    k.e("s_barrier")
    k(f"""
    s_lshl_b32 s3, s{S_W}, 14
    v_add_u32 v3, s3, v11
    s_nop 4
    """)
    for blk in range(4):
        for q in range(4):
            r = ACC + blk * 16 + q * 4
            k.e(f"ds_write_b128 v3, v[{r}:{r+3}] offset:{blk*4096 + q*1024}")
    k(f"""
    s_lshl_b32 s3, s{S_W}, 12
    v_add_u32 v3, s3, v11
    s_waitcnt lgkmcnt(0)
    s_barrier
    """)
    for src in range(4):
        for q in range(4):
            r = ACC + src * 16 + q * 4
            k.e(f"ds_read_b128 v[{r}:{r+3}], v3 offset:{src*16384 + q*1024}")
    n = vm.need(lambda t: t[0] == "E")
    if n is not None: k.e(f"s_waitcnt vmcnt({n})")
    for j in range(8):
        k.e(f"v_accvgpr_read_b32 v{20+j}, a{176+j}")
    for b in range(4):
        k.e(f"v_lshlrev_b32 v{32+4*b}, 16, v{20+2*b}")
        k.e(f"v_and_b32 v{33+4*b}, 0xffff0000, v{20+2*b}")
        k.e(f"v_lshlrev_b32 v{34+4*b}, 16, v{21+2*b}")
        k.e(f"v_and_b32 v{35+4*b}, 0xffff0000, v{21+2*b}")
    k.e("s_waitcnt lgkmcnt(0)")
    k.e("s_barrier")
    after_exchange()

def g1_finish(k):
    Y = 64
    c1 = -2.0 * 0.7978845608028654 * LOG2E
    k.e(f"s_mov_b32 s12, {f2h(c1)}")
    k.e(f"s_mov_b32 s13, {f2h(c1*0.044715)}")
    k.e(f"v_mov_b32 v48, s12")
    for r in range(0, 16, 2):
        k.e(f"v_pk_add_f32 v[{Y+r}:{Y+r+1}], v[{Y+r}:{Y+r+1}], v[{Y+16+r}:{Y+17+r}]")
        k.e(f"v_pk_add_f32 v[{Y+32+r}:{Y+33+r}], v[{Y+32+r}:{Y+33+r}], v[{Y+48+r}:{Y+49+r}]")
    for r in range(0, 16, 2):
        k.e(f"v_pk_add_f32 v[{Y+r}:{Y+r+1}], v[{Y+r}:{Y+r+1}], v[{Y+32+r}:{Y+33+r}]")
    for r in range(0, 16, 2):
        k.e(f"v_pk_add_f32 v[{Y+r}:{Y+r+1}], v[{Y+r}:{Y+r+1}], v[{32+r}:{33+r}]")
    T = Y + 16
    for r in range(0, 16, 2):
        k.e(f"v_pk_mul_f32 v[{T+r}:{T+r+1}], v[{Y+r}:{Y+r+1}], v[{Y+r}:{Y+r+1}]")
    for r in range(16):
        k.e(f"v_fma_f32 v{T+r}, v{T+r}, s13, v48")
    for r in range(0, 16, 2):
        k.e(f"v_pk_mul_f32 v[{T+r}:{T+r+1}], v[{T+r}:{T+r+1}], v[{Y+r}:{Y+r+1}]")
    for r in range(16):
        k.e(f"v_exp_f32 v{T+r}, v{T+r}")
    for r in range(16):
        k.e(f"v_add_f32 v{T+r}, 1.0, v{T+r}")
    for r in range(16):
        k.e(f"v_rcp_f32 v{T+r}, v{T+r}")
    k.e("s_nop 0")
    for r in range(0, 16, 2):
        k.e(f"v_pk_mul_f32 v[{Y+r}:{Y+r+1}], v[{Y+r}:{Y+r+1}], v[{T+r}:{T+r+1}]")
    for r in range(0, 16, 2):
        k.e(f"v_cvt_pk_bf16_f32 v{52 + r//2}, v{Y+r}, v{Y+r+1}")
    k(f"""
    s_and_b32 s12, s{S_W}, 1
    s_lshl_b32 s13, s{S_NT}, 1
    s_add_u32 s12, s12, s13
    s_mul_i32 s12, s12, 112
    s_lshl_b32 s13, s{S_MT}, 2
    s_add_u32 s12, s12, s13
    s_lshr_b32 s13, s{S_W}, 1
    s_lshl_b32 s13, s13, 1
    s_add_u32 s12, s12, s13
    s_lshl_b32 s12, s12, 10
    s_add_u32 s12, s12, {UF_OFF}
    buffer_store_dwordx4 v[52:55], v11, s[{SRD_WS}:{SRD_WS+3}], s12 offen sc1
    buffer_store_dwordx4 v[56:59], v11, s[{SRD_WS}:{SRD_WS+3}], s12 offen offset:1024 sc1
    """)

G2_PF = 10
def g2_setup(k, vm):
    RS, NKS, NKST = 4096, 28, 112
    PF, NS, NB = G2_PF, G2_PF + 2, G2_PF + 1
    k(f"""
    s_load_dwordx2 s[8:9], s[0:1], {KA_B2}
    s_load_dwordx2 s[12:13], s[0:1], {KA_X}
    s_load_dwordx2 s[14:15], s[0:1], {KA_OUT}
    s_load_dwordx2 s[48:49], s[0:1], {KA_WS}
    v_lshrrev_b32 v3, 3, v0
    v_and_b32 v4, 7, v0
    v_lshrrev_b32 v5, 1, v3
    v_and_b32 v5, 1, v5
    v_lshlrev_b32 v5, 2, v5
    v_xor_b32 v4, v4, v5
    v_lshlrev_b32 v3, 12, v3
    v_lshl_add_u32 v10, v4, 4, v3       ; voffA
    v_lshlrev_b32 v11, 4, v0
    v_lshrrev_b32 v3, 5, v0             ; hf
    v_bfe_u32 v4, v0, 4, 1
    v_bfe_u32 v5, v0, 2, 2
    v_and_b32 v6, 3, v0
    v_lshlrev_b32 v7, 2, v3
    v_add_u32 v7, v7, v5
    v_lshlrev_b32 v7, 7, v7
    v_lshl_add_u32 v7, v4, 5, v7
    v_lshl_add_u32 v7, v6, 3, v7
    s_mul_i32 s46, s{S_W}, {NS*2048}
    v_add_u32 v7, s46, v7
    v_lshrrev_b32 v8, 1, v5
    v_lshlrev_b32 v9, 6, v8
    v_add_u32 v12, v7, v9
    v_xor_b32 v9, 64, v9
    v_add_u32 v13, v7, v9
    s_mul_i32 s43, s{S_W}, {NKS*16*RS}
    s_lshl_b32 s47, s{S_MT2}, 7
    s_add_u32 s43, s43, s47
    s_add_u32 s47, s43, {8*RS-1024}
    s_lshl_b32 s44, s{S_NT2}, 1
    s_mul_i32 s44, s44, {NKST}
    s_mul_i32 s45, s{S_W}, {NKS}
    s_add_u32 s44, s44, s45
    s_lshl_b32 s44, s44, 10
    s_add_u32 s44, s44, {UF_OFF}
    s_add_u32 s45, s44, {NKST*1024}
    v_and_b32 v14, 31, v0
    s_lshr_b32 s54, s{S_W}, 1
    s_lshl_b32 s54, s54, 5
    v_add_u32 v14, s54, v14             ; row
    v_lshlrev_b32 v15, 1, v14           ; b2 offset
    v_lshlrev_b32 v2, 10, v14
    v_lshl_add_u32 v2, v3, 4, v2
    s_and_b32 s54, s{S_W}, 1
    s_lshl_b32 s54, s54, 5
    v_add_u32 v2, s54, v2
    """)
    for ks in range(PF):
        g2_issue(k, vm, ks)
    k("s_waitcnt lgkmcnt(0)")
    srd(k, 16, 8, 9, 2048 * 2)
    srd(k, 20, 12, 13, 2097152)
    srd(k, 28, 14, 15, 2097152)
    srd_off(k, 56, 48, 49, SLAB_OFF, 16 << 20)
    k(f"""
    s_lshl_b32 s54, s{S_MT2}, 16
    s_lshl_b32 s55, s{S_NT2}, 7
    s_add_u32 s54, s54, s55
    s_lshl_b32 s55, s{S_MT2}, 7         ; b2 base
    s_lshl_b32 s53, s{S_MT2}, 16
    s_lshr_b32 s52, s{S_NT2}, 1
    s_lshl_b32 s52, s52, 14
    s_add_u32 s53, s53, s52
    s_and_b32 s52, s{S_NT2}, 1
    s_lshl_b32 s52, s52, 13
    s_add_u32 s53, s53, s52
    s_lshl_b32 s52, s{S_W}, 10
    s_add_u32 s53, s53, s52
    """)
    k.e("buffer_load_ushort v9, v15, s[16:19], s55 offen"); vm.issue(("E", 0))
    k.e(f"buffer_load_dwordx4 v[248:251], v2, s[20:23], s54 offen"); vm.issue(("E", 0))
    k.e(f"buffer_load_dwordx4 v[252:255], v2, s[20:23], s54 offen offset:64"); vm.issue(("E", 0))

def g2_issue(k, vm, ks):
    RS = 4096
    NS, NB = G2_PF + 2, G2_PF + 1
    slot = ks % NS
    k.e(f"s_add_u32 m0, s46, {slot*2048}")
    bs = 144 + (ks % NB) * 8
    k.e(f"buffer_load_dwordx4 v[{bs}:{bs+3}], v11, s[{SRD_WS}:{SRD_WS+3}], s44 offen sc1"); vm.issue(("B", ks))
    k.e(f"buffer_load_dwordx4 v10, s[{SRD_WQ}:{SRD_WQ+3}], s43 offen lds"); vm.issue(("A", ks))
    k.e(f"buffer_load_dwordx4 v10, s[{SRD_WQ}:{SRD_WQ+3}], s47 offen offset:1024 lds"); vm.issue(("A", ks))
    k.e(f"buffer_load_dwordx4 v[{bs+4}:{bs+7}], v11, s[{SRD_WS}:{SRD_WS+3}], s45 offen sc1"); vm.issue(("B", ks))
    k.e(f"s_add_u32 s43, s43, {16*RS}")
    k.e(f"s_add_u32 s47, s47, {16*RS}")
    k.e(f"s_add_u32 s44, s44, 1024")
    k.e(f"s_add_u32 s45, s45, 1024")

def g2_main(k, vm, stamp, POLL_KS=10, SIG_KS=5):
    NKS = 28
    PF, NS, NB = G2_PF, G2_PF + 2, G2_PF + 1
    ACC, AF, BF = 64, 128, 144
    SL = 0
    SUM = 232
    def tr(ks):
        slot = ks % NS
        out = []
        for mb in range(2):
            for bp in range(2):
                d = AF + (ks & 1) * 8 + mb * 4 + bp * 2
                out.append(f"ds_read_b64_tr_b16 v[{d}:{d+1}], v{12+mb} offset:{slot*2048 + bp*1024}")
        return out
    n = vm.need(lambda t: t == ("A", 0))
    k.e(f"s_waitcnt vmcnt({n})")
    for ins in tr(0): k.e(ins)
    si = 0
    for ks in range(NKS):
        n = vm.need(lambda t: (t[0] == "A" and t[1] <= ks + 1) or (t[0] == "B" and t[1] <= ks))
        k.e("s_waitcnt lgkmcnt(0)" if n is None else f"s_waitcnt vmcnt({n}) lgkmcnt(0)")
        bs = BF + (ks % NB) * 8
        fill = tr(ks + 1) if ks + 1 < NKS else []
        mf = []
        for mb in range(2):
            for nb in range(2):
                a = AF + (ks & 1) * 8 + mb * 4
                b = bs + nb * 4
                d = ACC + (mb * 2 + nb) * 16
                c = "0" if ks == 0 else f"v[{d}:{d+15}]"
                mf.append(f"v_mfma_f32_32x32x16_bf16 v[{d}:{d+15}], v[{b}:{b+3}], v[{a}:{a+3}], {c}")
        k.e(mf[0])
        for ins in fill[:2]: k.e(ins)
        k.e(mf[1])
        for ins in fill[2:]: k.e(ins)
        k.e(mf[2])
        if ks + PF < NKS:
            g2_issue(k, vm, ks + PF)
        if ks == SIG_KS:
            n = vm.need(lambda t: t[0] == "ST")
            if n is not None: k.e(f"s_waitcnt vmcnt({n})")
            k.e("s_barrier")
            k.e(f"s_lshl_b32 s52, s{S_RB}, 8")
            k.e(f"s_add_u32 s52, s52, {CNT_OFF}")
            signal(k, "slab", 52)
        if ks == POLL_KS:
            k.e(f"s_lshl_b32 s52, s{S_MT2}, 8")
            k.e(f"s_add_u32 s52, s52, {CNT_OFF}")
            k.e(f"s_cmp_lg_u32 s{S_W}, 0")
            k.e("s_cbranch_scc1 L_slab_nopoll")
            poll(k, "slab", 52, 8)
            k.lab("L_slab_nopoll")
            k.e("s_barrier")
        if ks >= POLL_KS and si < 16:
            for rep in range(1 if ks < 26 else 2):
                if si < 16:
                    g, p = si >> 1, si & 1
                    k.e(f"s_add_u32 s52, s53, {g*2097152 + p*4096}")
                    k.e(f"buffer_load_dwordx4 a[{si*4}:{si*4+3}], v11, s[56:59], s52 offen sc1"); vm.issue(("S", si))
                    si += 1
        k.e(mf[3])
    assert si == 16
    stamp()
    PS = 64 * 272
    k(f"""
    v_and_b32 v3, 31, v0
    s_movk_i32 s52, 272
    v_mul_lo_u32 v3, v3, s52
    v_lshrrev_b32 v4, 5, v0
    v_lshl_add_u32 v3, v4, 4, v3
    s_mul_i32 s55, s{S_W}, {PS}
    v_add_u32 v3, s55, v3
    v_mul_lo_u32 v8, v14, s52
    v_lshl_add_u32 v8, v4, 5, v8
    s_and_b32 s52, s{S_W}, 1
    s_lshl_b32 s52, s52, 6
    v_add_u32 v8, s52, v8
    s_barrier
    """)
    for mb in range(2):
        for nb in range(2):
            for b in range(4):
                r = ACC + (mb * 2 + nb) * 16 + b * 4
                k.e(f"ds_write_b128 v3, v[{r}:{r+3}] offset:{mb*32*272 + nb*128 + b*32}")
    k(f"""
    s_waitcnt lgkmcnt(0)
    s_barrier
    """)
    for p in range(2):
        for src in range(4):
            r = ACC + p * 32 + src * 8
            k.e(f"ds_read_b128 v[{r}:{r+3}], v8 offset:{src*PS + p*128}")
            k.e(f"ds_read_b128 v[{r+4}:{r+7}], v8 offset:{src*PS + p*128 + 16}")
    for i in range(16):
        g, p = i >> 1, i & 1
        n = vm.need(lambda t: t[0] == "S" and t[1] <= i)
        if n is not None: k.e(f"s_waitcnt vmcnt({n})")
        for j in range(4):
            k.e(f"v_accvgpr_read_b32 v{20+j}, a{i*4+j}")
        for j in range(4):
            if g == 0:
                k.e(f"v_lshlrev_b32 v{SUM+p*8+2*j}, 16, v{20+j}")
                k.e(f"v_and_b32 v{SUM+p*8+2*j+1}, 0xffff0000, v{20+j}")
            else:
                k.e(f"v_lshlrev_b32 v{24+2*j}, 16, v{20+j}")
                k.e(f"v_and_b32 v{25+2*j}, 0xffff0000, v{20+j}")
        if g > 0:
            for j in range(4):
                k.e(f"v_pk_add_f32 v[{SUM+p*8+2*j}:{SUM+p*8+2*j+1}], v[{SUM+p*8+2*j}:{SUM+p*8+2*j+1}], v[{24+2*j}:{25+2*j}]")
    for p in range(2):
        for j in range(4):
            k.e(f"v_lshlrev_b32 v{128+p*8+2*j}, 16, v{248+p*4+j}")
            k.e(f"v_and_b32 v{129+p*8+2*j}, 0xffff0000, v{248+p*4+j}")
    k.e("v_lshlrev_b32 v18, 16, v9")
    k.e("v_mov_b32 v19, v18")
    k.e(f"s_mov_b32 s48, {f2h(-LOG2E)}")
    k.e(f"s_mov_b32 s49, {f2h(-LOG2E)}")
    k.e("s_waitcnt lgkmcnt(0)")
    for p in range(2):
        Y = ACC + p * 32
        for i in range(0, 8, 2):
            k.e(f"v_pk_add_f32 v[{Y+i}:{Y+i+1}], v[{Y+i}:{Y+i+1}], v[{Y+8+i}:{Y+9+i}]")
            k.e(f"v_pk_add_f32 v[{Y+16+i}:{Y+17+i}], v[{Y+16+i}:{Y+17+i}], v[{Y+24+i}:{Y+25+i}]")
        for i in range(0, 8, 2):
            k.e(f"v_pk_add_f32 v[{Y+i}:{Y+i+1}], v[{Y+i}:{Y+i+1}], v[{Y+16+i}:{Y+17+i}]")
        for i in range(0, 8, 2):
            k.e(f"v_pk_add_f32 v[{Y+i}:{Y+i+1}], v[{Y+i}:{Y+i+1}], v[18:19]")
    for p in range(2):
        Y = ACC + p * 32; T = Y + 8
        for i in range(0, 8, 2):
            k.e(f"v_pk_mul_f32 v[{T+i}:{T+i+1}], v[{Y+i}:{Y+i+1}], s[48:49]")
    for p in range(2):
        T = ACC + p * 32 + 8
        for i in range(8): k.e(f"v_exp_f32 v{T+i}, v{T+i}")
    for p in range(2):
        T = ACC + p * 32 + 8
        for i in range(8): k.e(f"v_add_f32 v{T+i}, 1.0, v{T+i}")
    for p in range(2):
        T = ACC + p * 32 + 8
        for i in range(8): k.e(f"v_rcp_f32 v{T+i}, v{T+i}")
    k.e("s_nop 0")
    for p in range(2):
        Y = ACC + p * 32; T = Y + 8
        for i in range(0, 8, 2):
            k.e(f"v_pk_mul_f32 v[{Y+i}:{Y+i+1}], v[{Y+i}:{Y+i+1}], v[{T+i}:{T+i+1}]")
    for p in range(2):
        Y = ACC + p * 32
        for i in range(0, 8, 2):
            k.e(f"v_pk_fma_f32 v[{Y+i}:{Y+i+1}], v[{Y+i}:{Y+i+1}], v[{SUM+p*8+i}:{SUM+p*8+i+1}], v[{128+p*8+i}:{129+p*8+i}]")
    for p in range(2):
        Y = ACC + p * 32
        for i in range(0, 8, 2):
            k.e(f"v_cvt_pk_bf16_f32 v{40+p*4+i//2}, v{Y+i}, v{Y+i+1}")
        k.e(f"buffer_store_dwordx4 v[{40+p*4}:{43+p*4}], v2, s[28:31], s54 offen offset:{64*p}")

XSRC = 239
UFL = 252

def gen_m6(name="main_kernel", debug=None, prof=False, l2pf=True, kidx=0, sched2=True):
    k = Em()
    M.SCHED2 = sched2
    M.PRE_HOOK = lambda kk: poll8(kk, 'h', HCNT_OFF, 32)
    nst = [0]
    def stamp():
        if prof is not True: return
        i = nst[0]; nst[0] += 1
        k.e(f"s_memtime s[{64+2*i}:{65+2*i}]")
        k.e(f"s_memrealtime s[100:101]")
        k.e("s_waitcnt lgkmcnt(0)")
        k.e(f"s_mov_b32 s{65+2*i}, s100")
    k.L.append(kernel_header(name))
    cscale = math.log2(math.e) / math.sqrt(128.0)
    tl_begin(k, prof)
    k(f"""
    s_cmp_ge_u32 s2, 256
    s_cbranch_scc1 L_at_done
    s_load_dwordx2 s[4:5], s[0:1], {KA_X}
    s_load_dwordx2 s[12:13], s[0:1], {KA_WS}
    s_load_dwordx2 s[14:15], s[0:1], {KA_DBG}
    v_lshrrev_b32 v1, 6, v0
    v_and_b32 v0, 63, v0
    s_and_b32 s{S_XCD}, s2, 7
    v_readfirstlane_b32 s{S_W}, v1
    s_lshr_b32 s{S_IDX}, s2, 3
    s_and_b32 s{S_G}, s{S_XCD}, 3
    s_lshl_b32 s{S_G}, s{S_G}, 1
    s_and_b32 s3, s{S_IDX}, 1
    s_add_u32 s{S_G}, s{S_G}, s3        ; g = 2*(x&3) + (idx&1)
    s_lshr_b32 s{S_RB}, s{S_XCD}, 2
    s_lshl_b32 s{S_RB}, s{S_RB}, 4
    s_lshr_b32 s3, s{S_IDX}, 1
    s_add_u32 s{S_RB}, s{S_RB}, s3
    v_and_b32 v2, 15, v0
    v_lshrrev_b32 v3, 4, v0
    v_lshlrev_b32 v2, 10, v2
    v_lshl_add_u32 v2, v3, 4, v2        ; r*1024 + part*16
    s_lshl_b32 s3, s{S_RB}, 16
    s_lshl_b32 s8, s{S_W}, 14
    s_add_u32 s3, s3, s8                ; (64rb + 16w)*1024
    s_waitcnt lgkmcnt(0)
    s_mov_b32 s16, s4
    s_mov_b32 s17, s5
    s_mov_b32 s18, 2097152
    s_mov_b32 s19, 0x00020000
    """)
    for i in range(16):
        k.e(f"buffer_load_dwordx4 v[{64+4*i}:{67+4*i}], v2, s[16:19], s3 offen offset:{64*i}")
    k(f"""
    s_load_dwordx2 s[16:17], s[0:1], {KA_K}
    s_load_dwordx2 s[20:21], s[0:1], {KA_V}
    s_load_dwordx2 s[8:9], s[0:1], {KA_WQ}
    s_load_dwordx2 s[10:11], s[0:1], {KA_WO}
    s_load_dwordx2 s[56:57], s[0:1], {KA_W1}
    s_load_dwordx2 s[34:35], s[0:1], {KA_B1}
    """)
    stamp()
    srd(k, SRD_WS, 12, 13, 8 << 20)
    srd(k, DBG_SRD, 14, 15, 256)
    k(f"""
    s_cmp_ge_u32 s2, 48
    s_cbranch_scc1 L_nozero
    s_cmp_lg_u32 s{S_W}, 0
    s_cbranch_scc1 L_nozero
    s_lshl_b32 s3, s2, 8
    s_cmp_ge_u32 s2, 40
    s_cselect_b32 s14, {16384 - 40*256}, 0
    s_add_u32 s3, s3, s14
    s_add_u32 s3, s3, {CNT_OFF}
    v_mov_b32 v1, 0
    v_lshlrev_b32 v3, 2, v0
    buffer_store_dword v1, v3, s[{SRD_WS}:{SRD_WS+3}], s3 offen sc1
    s_waitcnt vmcnt(0)
    v_mov_b32 v3, 1
    v_cmp_eq_u32 vcc, 0, v0
    s_and_saveexec_b64 s[14:15], vcc
    buffer_atomic_add v3, v1, s[{DBG_SRD}:{DBG_SRD+3}], 0 offen
    s_mov_b64 exec, s[14:15]
    L_nozero:
    s_lshl_b32 s14, s{S_G}, 19          ; g*524288
    s_lshl_b32 s3, s{S_G}, 21           ; g*2MB
    s_add_u32 s3, s3, {SLAB_OFF}
    s_waitcnt lgkmcnt(0)
    s_add_u32 s16, s16, s14
    s_addc_u32 s17, s17, 0
    s_mov_b32 s18, 524288
    s_mov_b32 s19, 0x00020000
    s_add_u32 s20, s20, s14
    s_addc_u32 s21, s21, 0
    s_mov_b32 s22, 524288
    s_mov_b32 s23, 0x00020000
    s_mov_b32 s58, {2048*3584}
    s_mov_b32 s59, 0x00020000
    """)
    srd(k, SRD_WQ, 8, 9, 4194304)
    srd(k, SRD_WO, 10, 11, 4194304)
    srd_off(k, SRD_SL, 12, 13, "s3", 2097152)
    k(f"""
    s_and_b32 s{S_NT}, s{S_XCD}, 1
    s_lshl_b32 s{S_NT}, s{S_NT}, 2
    s_and_b32 s3, s{S_IDX}, 3
    s_add_u32 s{S_NT}, s{S_NT}, s3
    s_mov_b32 s{S_NT2}, s{S_NT}
    s_lshr_b32 s{S_MT}, s{S_XCD}, 1
    s_lshl_b32 s{S_MT2}, s{S_MT}, 3
    s_mul_i32 s{S_MT}, s{S_MT}, 7
    s_lshr_b32 s3, s{S_IDX}, 2
    s_add_u32 s{S_MT}, s{S_MT}, s3
    s_add_u32 s{S_MT2}, s{S_MT2}, s3
    s_lshl_b32 s14, s{S_W}, 6
    v_add_u32 v1, s14, v0               ; tid
    v_lshrrev_b32 v2, 4, v1
    v_and_b32 v3, 15, v1
    v_lshlrev_b32 v2, 13, v2
    v_lshl_add_u32 v250, v3, 6, v2
    v_lshlrev_b32 v251, 6, v1           ; tid*64
    """)
    k(f"""
    v_lshrrev_b32 v1, 4, v0             ; l>>4 (0..3)
    v_and_b32 v2, 15, v0                ; p = l&15
    ; DV: (l>>4)*256 + ((p ^ ((l>>4)<<2))*16)
    v_lshlrev_b32 v3, 2, v1
    v_xor_b32 v3, v2, v3
    v_lshlrev_b32 v3, 4, v3
    v_lshl_add_u32 v{DV}, v1, 8, v3
    v_lshl_add_u32 v{DW}, v1, 13, v3
    """)
    for i in range(4):
        k(f"""
        v_add_u32 v4, {4*i}, v1
        v_xor_b32 v4, v2, v4
        v_lshlrev_b32 v4, 4, v4
        v_lshl_add_u32 v{DK+i}, v1, 8, v4
        """)
    k(f"""
    v_and_b32 v4, 31, v0
    v_lshrrev_b32 v5, 5, v0             ; hf
    v_xor_b32 v6, v5, v2
    v_lshlrev_b32 v7, 8, v4
    """)
    for t in range(8):
        k.e(f"v_xor_b32 v8, {2*t}, v6")
        k.e(f"v_lshl_add_u32 v{KA+t}, v8, 4, v7")
    k(f"""
    v_bfe_u32 v8, v0, 2, 2              ; r
    v_bfe_u32 v9, v0, 4, 1              ; csub
    v_and_b32 v10, 3, v0                ; c
    v_lshl_add_u32 v11, v5, 2, v8       ; 4hf + r
    v_lshlrev_b32 v11, 8, v11
    v_lshl_add_u32 v11, v9, 5, v11
    v_lshl_add_u32 v12, v10, 3, v11
    """)
    for db in range(4):
        k.e(f"v_xor_b32 v13, {db}, v8")
        k.e(f"v_lshl_add_u32 v13, v13, 6, v12")
        k.e(f"v_add_u32 v{VA+db}, {VRING}, v13")
    k(f"""
    s_and_b32 s14, s{S_W}, 1
    s_lshl_b32 s14, s14, 14
    s_lshr_b32 s15, s{S_W}, 1
    s_mul_i32 s15, s15, {131072-32768}
    s_add_u32 s{S_WRING}, s14, s15
    s_add_u32 s{S_WRING}, s{S_WRING}, 32768
    v_lshl_add_u32 v11, v5, 3, v8
    v_lshlrev_b32 v11, 8, v11
    v_lshl_add_u32 v11, v9, 5, v11
    v_and_b32 v13, 1, v10
    v_lshrrev_b32 v14, 1, v10
    v_lshl_or_b32 v13, v13, 1, v14      ; sigma(c)
    v_lshl_add_u32 v11, v13, 3, v11
    v_add_u32 v11, s{S_WRING}, v11
    """)
    for db in range(4):
        k.e(f"v_xor_b32 v13, {db}, v8")
        k.e(f"v_lshl_add_u32 v{WA+db}, v13, 6, v11")
    k(f"""
    v_lshlrev_b32 v15, 4, v0            ; lane*16
    v_add_u32 v{XA}, {XT}, v15
    s_lshr_b32 s14, s{S_IDX}, 1
    s_lshl_b32 s14, s14, 18             ; 32*8192*j
    s_lshl_b32 s15, s{S_G}, 10
    s_add_u32 s14, s14, s15
    """)
    k(f"""
    s_and_b32 s14, s{S_W}, 1
    s_lshl_b32 s14, s14, 14
    s_lshr_b32 s15, s{S_W}, 1
    s_mul_i32 s15, s15, {131072-32768}
    s_add_u32 s{S_WRING}, s14, s15
    s_add_u32 s{S_WRING}, s{S_WRING}, 32768
    """)
    k(f"""
    s_lshl_b32 s14, s{S_G}, 2
    s_add_u32 s14, s14, s{S_W}
    s_lshl_b32 s{S_WOFF}, s14, 8
    """)
    def wdma(t, srd, RS):
        out = [f"s_add_u32 m0, s{S_WRING}, {(t&3)*4096}"]
        for i in range(4):
            if i == 0:
                out.append("s_nop 0")
                out.append(f"buffer_load_dwordx4 v{DW}, s[{srd}:{srd+3}], s{S_WOFF} offen lds")
            else:
                out.append(f"s_add_u32 s{S_WOFF}, s{S_WOFF}, {4*RS-1024}")
                out.append(f"buffer_load_dwordx4 v{DW}, s[{srd}:{srd+3}], s{S_WOFF} offen offset:{1024*i} lds")
        out.append(f"s_add_u32 s{S_WOFF}, s{S_WOFF}, {4*RS+3072}")
        return out
    k(f"""
    s_lshl_b32 s{S_KOFF}, s{S_W}, 12          ; w*4096
    s_mov_b32 s{S_M0K}, s{S_KOFF}
    s_add_u32 s{S_M0V}, s{S_KOFF}, {VRING}
    s_mov_b32 s{S_VOFF}, s{S_KOFF}
    """)
    def kdma(slot):
        out = [f"s_add_u32 m0, s{S_M0K}, {slot*16384}", "s_nop 0"]
        for i in range(4):
            out.append(f"buffer_load_dwordx4 v{DK+i}, s[{SRD_K}:{SRD_K+3}], s{S_KOFF} offen offset:{1024*i} {POL()} lds")
        out.append(f"s_add_u32 s{S_KOFF}, s{S_KOFF}, 16384")
        return out
    def vdma(slot):
        out = [f"s_add_u32 m0, s{S_M0V}, {slot*16384}", "s_nop 0"]
        for i in range(4):
            out.append(f"buffer_load_dwordx4 v{DV}, s[{SRD_V}:{SRD_V+3}], s{S_VOFF} offen offset:{1024*i} {POL()} lds")
        out.append(f"s_add_u32 s{S_VOFF}, s{S_VOFF}, 16384")
        return out
    for ins in kdma(0) + kdma(1): k.e(ins)
    for t in range(4):
        for ins in wdma(t, SRD_WQ, 8192): k.e(ins)
    k(f"""
    s_lshr_b32 s14, s{S_IDX}, 1
    s_lshl_b32 s14, s14, 18
    s_lshl_b32 s15, s{S_G}, 10
    s_add_u32 s14, s14, s15
    buffer_load_dword v246, v250, s[{SRD_WQ}:{SRD_WQ+3}], s14 offen
    s_add_u32 s14, s14, {16*8192}
    buffer_load_dword v247, v250, s[{SRD_WQ}:{SRD_WQ+3}], s14 offen
    """)
    local_ln(k)
    k.e("s_waitcnt vmcnt(18) lgkmcnt(0)")
    k.e("s_barrier")
    h_read(k)
    stamp()
    late = []
    gen_proj(k, "q", SRD_WQ, 8192, True, True, late)
    stamp()
    k(f"""
    s_waitcnt vmcnt(0) lgkmcnt(0)
    s_barrier
    """)
    for ins in vdma(0) + kdma(2) + vdma(1): k.e(ins)
    k.e(f"s_load_dwordx2 s[8:9], s[0:1], {KA_W2}")
    k(f"""
    s_lshl_b32 s14, s{S_W}, 6
    v_add_u32 v1, s14, v0                       ; tid
    v_lshrrev_b32 v2, 1, v1
    v_and_b32 v3, 1, v1
    v_lshlrev_b32 v4, 12, v2
    v_lshl_add_u32 v253, v3, 6, v4
    s_movk_i32 s14, 3584
    v_mul_lo_u32 v2, v2, s14
    v_lshl_add_u32 v250, v3, 6, v2
    s_waitcnt lgkmcnt(0)
    """)
    srd(k, SRD_WQ, 8, 9, 1792 * 4096)
    k.e(f"s_mov_b32 s14, {f2h(cscale)}")
    k.e(f"s_mov_b32 s15, {f2h(cscale)}")
    k.e("s_nop 7")
    for db in range(4):
        for qb in range(2):
            a = PACC + (db * 2 + qb) * 16
            for r in range(0, 16, 2):
                k.e(f"v_pk_mul_f32 v[{a+r}:{a+r+1}], v[{a+r}:{a+r+1}], s[14:15]")
            for r in range(0, 16, 2):
                q = QF + qb * 32 + (2 * db + (r >> 3)) * 4 + ((r & 7) >> 1)
                k.e(f"v_cvt_pk_bf16_f32 v{q}, v{a+r}, v{a+r+1}")
    h_phase(k)
    g1_setup_v(k)
    k(f"""
    v_mov_b32 v{UFL}, 0
    buffer_load_dword v{UFL}, v{UFL}, s[{DBG_SRD}:{DBG_SRD+3}], 0 offen sc1
    """)
    for t in range(4):
        for ins in k_read(0, t, t): k.e(ins)
    for t in range(8):
        k.e(f"s_waitcnt lgkmcnt({min(3, 7-t)})")
        for qb in range(2):
            d = Sbuf(0, qb)
            k.e(mfma(d, KF + (t & 3) * 4, QF + qb * 32 + t * 4, "0" if t == 0 else d))
        if t + 4 < 8:
            for ins in k_read(0, t + 4, t + 4): k.e(ins)
    for i in range(128):
        k.e(f"v_accvgpr_write_b32 a{OA+i}, 0")
    k.e(f"v_mov_b32 v{LL}, 0")
    k.e(f"v_mov_b32 v{LL+1}, 0")
    k.e(f"v_mov_b32 v{LS+2}, 0")
    k.e(f"v_mov_b32 v{LS+3}, 0")
    k.e(f"s_mov_b32 s{S_THR}, {f2h(2.0**THR_LOG2)}")
    for qb in range(2):
        S = Sbuf(0, qb)
        t, t2 = T0, T0 + 1
        k.e(f"v_max3_f32 v{t}, v{S}, v{S+1}, v{S+2}")
        for r in range(3, 15, 2):
            k.e(f"v_max3_f32 v{t}, v{t}, v{S+r}, v{S+r+1}")
        k.e(f"v_max_f32 v{t}, v{t}, v{S+15}")
        k.e(f"v_mov_b32 v{t2}, v{t}")
        k.e("s_nop 1")
        k.e(f"v_permlane32_swap_b32 v{t2}, v{t}")
        k.e(f"v_max_f32 v{t}, v{t}, v{t2}")
        for r in range(16):
            k.e(f"v_sub_f32 v{S+r}, v{S+r}, v{t}")
            k.e(f"v_sub_f32 v{NEGM+16*qb+r}, 0, v{t}")
    if M.SCHED2:
        k.e(f"v_exp_f32 v{ET}, v{Sbuf(0,0)}")
        k.e(f"v_exp_f32 v{ET+1}, v{Sbuf(0,0)+1}")
    k.e("s_waitcnt vmcnt(11)")
    k.e("s_barrier")
    stamp()
    for ins in k_read(1, 0, 0) + k_read(1, 1, 1): k.e(ins)
    rare_sites = []
    def dma_plan(lst):
        return {8: [lst[0]], 11: [lst[2]], 15: [lst[3]], 19: [lst[4]], 23: [lst[5]], 27: [lst[6]]}
    def step(u, rid, **kw):
        S = dict(do_qk=True, do_pv=True, qk_next=True, pv_next=True, dma=None, pre=None, prev7=3)
        S.update(kw)
        lk = Look(u, S['do_qk'], S['do_pv'], S['qk_next'], S['pv_next'])
        lk.prev7 = S['prev7']
        gen_step(k, u, S['do_qk'], S['do_pv'], True, lk, S['dma'], S['pre'], rid)
        rare_sites.append((rid, u & 1))
    d0 = dma_plan(kdma(3))
    d0[28] = [f"s_lshr_b32 s14, s{S_IDX}, 1", f"s_lshl_b32 s14, s14, 15", f"s_lshl_b32 s15, s{S_G}, 19", "s_add_u32 s14, s14, s15",
              f"buffer_load_dword v248, v251, s[{SRD_WO}:{SRD_WO+3}], s14 offen"]
    d0[29] = ["s_add_u32 s14, s14, 16384", f"buffer_load_dword v249, v251, s[{SRD_WO}:{SRD_WO+3}], s14 offen"]
    step(0, "s0", do_pv=False, dma=d0, prev7=1)
    k(f"""
    s_waitcnt vmcnt(6)
    s_barrier
    s_cmp_lg_u32 s{S_W}, 0
    s_cbranch_scc1 L_hsig_done
    v_readfirstlane_b32 s14, v{UFL}
    s_cmp_ge_u32 s14, 48
    s_cbranch_scc1 L_rdy_ok
    s_mov_b32 s{S_FLG}, {POLL_MAX}
    v_mov_b32 v1, 0
    L_rdy_poll:
    buffer_load_dword v4, v1, s[{DBG_SRD}:{DBG_SRD+3}], 0 offen sc1
    s_waitcnt vmcnt(0)
    v_readfirstlane_b32 s14, v4
    s_cmp_ge_u32 s14, 48
    s_cbranch_scc1 L_rdy_ok
    s_sleep 8
    s_sub_u32 s{S_FLG}, s{S_FLG}, 1
    s_cmp_lg_u32 s{S_FLG}, 0
    s_cbranch_scc1 L_rdy_poll
    L_rdy_ok:
    s_lshl_b32 s14, s{S_XCD}, 8
    s_add_u32 s14, s14, {HCNT_OFF}
    v_mov_b32 v1, 0
    v_mov_b32 v4, 1
    v_cmp_eq_u32 vcc, 0, v0
    s_and_saveexec_b64 s[12:13], vcc
    buffer_atomic_add v4, v1, s[{SRD_WS}:{SRD_WS+3}], s14 offen
    s_mov_b64 exec, s[12:13]
    L_hsig_done:
    """)
    k.e(f"s_mov_b32 s{S_CNT}, 7")
    k.lab("L_main")
    for uu in range(1, 9):
        j = uu >> 1
        pre = None
        if uu & 1 == 0:
            pre = ["s_waitcnt vmcnt(8)", "s_barrier"]
            dm = dma_plan(kdma((j + 3) & 3))
        else:
            dm = dma_plan(vdma((j + 2) & 3))
        step(uu, f"m{uu}", dma=dm, pre=pre)
    k.e(f"s_sub_u32 s{S_CNT}, s{S_CNT}, 1")
    k.e(f"s_cmp_lg_u32 s{S_CNT}, 0")
    k.e(f"s_cbranch_scc1 L_main")
    def ta(i):
        return [f"s_and_b32 s14, s{S_IDX}, 3", f"s_mul_i32 s14, s14, {512*3584}", f"s_lshl_b32 s15, s{S_MT}, 7",
                f"s_add_u32 s14, s14, s15", f"s_add_u32 s14, s14, {i*128*3584}",
                f"buffer_load_dword v{246+(i&1)}, v250, s[{SRD_W1}:{SRD_W1+3}], s14 offen"]
    def tb(i):
        return [f"s_lshl_b32 s14, s{S_NT}, 18", f"s_lshr_b32 s15, s{S_IDX}, 2", f"s_and_b32 s15, s15, 3", f"s_lshl_b32 s15, s15, 16",
                f"s_add_u32 s14, s14, s15", f"s_add_u32 s14, s14, {HF_OFF + i*16384}",
                f"buffer_load_dword v{248+(i&1)}, v251, s[{SRD_WS}:{SRD_WS+3}], s14 offen sc1"]
    def merge(d, g, lst):
        d = dict(d) if d else {}
        d[g] = d.get(g, []) + lst
        return d
    k(f"""
    v_and_b32 v{UFL}, 7, v0
    v_lshlrev_b32 v{UFL}, 8, v{UFL}
    s_mov_b32 s14, {HCNT_OFF}
    buffer_load_dword v{UFL}, v{UFL}, s[{SRD_WS}:{SRD_WS+3}], s14 offen sc1
    """)
    step(57, "t57", dma=merge(dma_plan(vdma((28 + 2) & 3)), 29, ta(0)))
    step(58, "t58", pre=["s_waitcnt vmcnt(5)", "s_barrier", f"v_cmp_le_u32 vcc, 32, v{UFL}", "s_cmp_eq_u64 vcc, -1", "s_cbranch_scc1 L_hok", "UPOLL", "L_hok:"],
         dma=merge(merge(merge(merge(None, 3, ta(1)), 11, tb(0)), 19, ta(2)), 27, tb(1)))
    step(59, "t59", dma=merge(merge(merge(dma_plan(vdma((29 + 2) & 3)), 28, ta(3)), 29, tb(2)), 30, tb(3)))
    vmg = Ctr(63)
    def spread(lst, gaps_):
        d = {}
        per = (len(lst) + len(gaps_) - 1) // len(gaps_)
        for j, g in enumerate(gaps_):
            d[g] = lst[j * per:(j + 1) * per]
        return d
    ss = g1_setup_s()
    step(60, "t60", pre=["s_waitcnt vmcnt(11)", "s_barrier"])
    step(61, "t61", dma={5: ss[0], 13: ss[1], 21: ss[2], 29: ss[3]})
    la = []
    for ks in range(G1PF): la += g1_A(ks, vmg)
    step(62, "t62", pre=["s_waitcnt vmcnt(3)", "s_barrier"], qk_next=False, dma=spread(la, [1, 3, 5, 7, 9, 11, 13, 15, 17, 19, 21, 23, 25, 27]))
    lb = []
    for ks in range(G1PF): lb += g1_B(ks, vmg)
    lb += g1_bias_list(vmg)
    step(63, "t63", do_qk=False, qk_next=False, prev7=2, dma=spread(lb, [0, 1, 4, 5, 8, 9, 12, 13, 16, 17, 20, 21, 24, 25, 28, 29]))
    p = 63 & 1
    k.e(f"v_add_f32 v{LL}, v{LL}, v{LS+2*p}")
    k.e(f"v_add_f32 v{LL+1}, v{LL+1}, v{LS+2*p+1}")
    for i in range(8):
        nxt = v_read(63, i + 2, i + 2) if i + 2 < 8 else []
        prevn = 2 if (i == 0 or i + 1 < 8) else 0
        k.e(f"s_waitcnt lgkmcnt({prevn})")
        db, ks = i >> 1, i & 1
        for qb in range(2):
            d = OA + (db * 2 + qb) * 16
            k.e(mfma(d, VF + (i & 3) * 4, Pbuf(p, qb, ks), d, dfile='a'))
            if qb == 0:
                for ins in nxt: k.e(ins)
    k.e("s_waitcnt lgkmcnt(0)")
    stamp()
    k(f"""
    s_waitcnt lgkmcnt(0)
    s_barrier
    """)
    def wo_ring():
        k(f"""
        s_lshl_b32 s{S_WRING}, s{S_W}, 14
        v_lshrrev_b32 v1, 4, v0
        v_mul_u32_u24 v1, {1024-256}, v1
        v_add_u32 v{DW}, v{DV}, v1
        s_lshl_b32 s{S_WOFF}, s{S_G}, 19
        s_lshl_b32 s14, s{S_W}, 8
        s_add_u32 s{S_WOFF}, s{S_WOFF}, s14
        """)
        for t in range(4):
            for ins in wdma(t, SRD_WO, 1024): k.e(ins)
    l_final(k)
    k.e(f"s_cmp_ge_u32 s{S_IDX}, 28")
    k.e("s_cbranch_scc1 L_no_g1")
    g1_phase(k, vmg, stamp, wo_ring)
    g1_finish(k)
    k.e("s_branch L_g1_done")
    k.lab("L_no_g1")
    k.e("s_waitcnt vmcnt(0)")
    k.e("s_barrier")
    wo_ring()
    for g in onorm_groups():
        for ins in g: k.e(ins)
    nst[0] -= 2
    stamp(); stamp()
    k.lab("L_g1_done")
    k.e(f"s_sub_u32 s14, s{S_WRING}, {VRING}")
    for db in range(4):
        k.e(f"v_add_u32 v{WA+db}, s14, v{VA+db}")
    k("""
    s_waitcnt vmcnt(0) lgkmcnt(0)
    s_barrier
    """)
    k.e(f"s_cmp_ge_u32 s{S_IDX}, 28")
    k.e("s_cbranch_scc1 L_no_usig")
    k.e(f"s_lshl_b32 s14, s{S_NT}, 8")
    k.e(f"s_add_u32 s14, s14, {UCNT_OFF}")
    k.e(f"s_mov_b32 s15, s{S_WRING}")
    signal(k, "u", 14)
    k.e(f"s_mov_b32 s{S_WRING}, s15")
    k.lab("L_no_usig")
    stamp()
    def tw(i):
        return [f"s_and_b32 s14, s{S_IDX}, 3", f"s_mul_i32 s14, s14, {448*4096}", f"s_lshl_b32 s15, s{S_MT2}, 7",
                f"s_add_u32 s14, s14, s15", f"s_add_u32 s14, s14, {i*128*4096}",
                f"buffer_load_dword v{246+(i&1)}, v253, s[{SRD_WQ}:{SRD_WQ+3}], s14 offen"]
    ufl = [f"s_lshl_b32 s14, s{S_NT2}, 8", f"s_add_u32 s14, s14, {UCNT_OFF}", f"v_mov_b32 v{UFL}, 0",
           f"buffer_load_dword v{UFL}, v{UFL}, s[{SRD_DBG}:{SRD_DBG+3}], s14 offen sc1"]
    gen_proj(k, "o", SRD_WO, 1024, False, True, ufl + tw(0) + tw(1) + tw(2) + tw(3))
    stamp()
    vm1 = Ctr(63)
    k.e("s_waitcnt vmcnt(4) lgkmcnt(0)")
    k.e(f"v_readfirstlane_b32 s14, v{UFL}")
    k.e("s_cmp_ge_u32 s14, 28")
    k.e("s_cbranch_scc1 L_u_nopoll")
    k.e(f"s_cmp_lg_u32 s{S_W}, 0")
    k.e("s_cbranch_scc1 L_u_nopoll")
    k.e(f"s_lshl_b32 s14, s{S_NT2}, 8")
    k.e(f"s_add_u32 s14, s14, {UCNT_OFF}")
    poll(k, "u", 14, 28)
    k.lab("L_u_nopoll")
    k.e("s_barrier")
    g2_setup(k, vm1)
    k(f"""
    v_lshlrev_b32 v1, 4, v0
    s_lshl_b32 s14, s{S_RB}, 16          ; rb*65536
    s_lshl_b32 s15, s{S_W}, 14           ; w*16384
    s_add_u32 s14, s14, s15
    """)
    for cb in range(4):
        for qb in range(2):
            a = PACC + (cb * 2 + qb) * 16
            o = a
            for r in range(0, 16, 2):
                k.e(f"v_cvt_pk_bf16_f32 v{o+r//2}, v{a+r}, v{a+r+1}")
            k.e("s_nop 1")
            for pr in range(2):
                k.e(f"v_permlane32_swap_b32 v{o+4*pr}, v{o+4*pr+2}")
                k.e(f"v_permlane32_swap_b32 v{o+4*pr+1}, v{o+4*pr+3}")
            for pr in range(2):
                idx = cb * 4 + qb * 2 + pr
                k.e(f"buffer_store_dwordx4 v[{o+4*pr}:{o+4*pr+3}], v1, s[{SRD_SL}:{SRD_SL+3}], s14 offen offset:{(idx&3)*1024} sc1")
                vm1.issue(("ST", 0))
                if (idx & 3) == 3: k.e("s_add_u32 s14, s14, 4096")
    stamp()
    g2_main(k, vm1, stamp)
    if prof == 'tl':
        tl_end(k, prof, kidx)
    if prof is True:
        k.e("s_waitcnt vmcnt(0)")
        stamp()
        k.e(f"s_load_dwordx2 s[12:13], s[0:1], {KA_WS}")
        k.e("s_waitcnt lgkmcnt(0)")
        srd_off(k, 4, 12, 13, 64 << 20, 1 << 20)
        k.e(f"s_lshl_b32 s14, s2, 2")
        k.e(f"s_add_u32 s14, s14, s{S_W}")
        k.e(f"s_lshl_b32 s14, s14, 7")
        for i in range(nst[0]):
            k.e(f"v_mov_b32 v2, s{64+2*i}")
            k.e(f"v_mov_b32 v3, s{65+2*i}")
            k.e(f"v_mov_b32 v1, {8*i}")
            k.e(f"buffer_store_dwordx2 v[2:3], v1, s[4:7], s14 offen")
        tl_end(k, prof, kidx)
    k.lab("L_at_done")
    k.e("s_endpgm")
    for rid, p in rare_sites:
        k.lab(f"L_rare_{rid}")
        k.e(f"s_call_b64 s[{S_RET}:{S_RET+1}], L_raresub_{p}")
        k.e(f"s_branch L_back_{rid}")
    gen_rare(k, 0)
    gen_rare(k, 1)
    return k.text(), kernel_desc(name, 512, 102, 256), f"; @launch kernel={name} grid=(256,1,1) block=(256,1,1) lds=163840"
```

```python
from common import *
import k_main as M
from k_main import *
from k_ln import ln_rows
import math

S_MT2, S_NT2 = 10, 11
S_IDX, S_XCD = 32, 33
HCNT_OFF = CNT_OFF + 16384
DBG_SRD = 4
S_FLG = 51
SRD_DBG = 60
UCNT_OFF = CNT_OFF + 8192
POLL_MAX = 1 << 20

def poll(k, tag, off_sgpr, target):
    k(f"""
    s_mov_b32 s{S_FLG}, {POLL_MAX}
    v_mov_b32 v1, 0
    L_poll_{tag}:
    buffer_load_dword v4, v1, s[{SRD_DBG}:{SRD_DBG+3}], s{off_sgpr} offen sc1
    s_waitcnt vmcnt(0)
    v_readfirstlane_b32 s3, v4
    s_cmp_ge_u32 s3, {target}
    s_cbranch_scc1 L_polld_{tag}
    s_sleep 16
    s_sub_u32 s{S_FLG}, s{S_FLG}, 1
    s_cmp_lg_u32 s{S_FLG}, 0
    s_cbranch_scc1 L_poll_{tag}
    L_polld_{tag}:
    """)

def signal(k, tag, off_sgpr):
    k(f"""
    s_cmp_lg_u32 s{S_W}, 0
    s_cbranch_scc1 L_sig_{tag}
    v_mov_b32 v1, 0
    v_mov_b32 v4, 1
    v_cmp_eq_u32 vcc, 0, v0
    s_and_saveexec_b64 s[48:49], vcc
    buffer_atomic_add v4, v1, s[{SRD_DBG}:{SRD_DBG+3}], s{off_sgpr} offen
    s_mov_b64 exec, s[48:49]
    L_sig_{tag}:
    """)


def zip_streams(k, a, b):
    A = [l.strip() for l in a]; B = [l.strip() for l in b]
    assert len(A) == len(B)
    for x, y in zip(A, B):
        if x.startswith("s_nop"):
            if x == "s_nop 1": k.e("s_nop 0")
            continue
        k.e(x); k.e(y)

def local_ln(k):
    SUMA, SQA = 128, 130
    T = 132
    for i in range(16):
        k.e(f"s_waitcnt vmcnt({XYOUNG + 15 - i})")
        for j in range(4):
            src = 64 + 4 * i + j
            t = T + 2 * j
            k.e(f"v_lshlrev_b32 v{t}, 16, v{src}")
            k.e(f"v_and_b32 v{t+1}, 0xffff0000, v{src}")
        for j in range(4):
            t = T + 2 * j
            if i == 0 and j == 0:
                k.e(f"v_pk_mul_f32 v[{SQA}:{SQA+1}], v[{t}:{t+1}], v[{t}:{t+1}]")
                k.e(f"v_mov_b32 v{SUMA}, v{t}")
                k.e(f"v_mov_b32 v{SUMA+1}, v{t+1}")
            else:
                k.e(f"v_pk_add_f32 v[{SUMA}:{SUMA+1}], v[{SUMA}:{SUMA+1}], v[{t}:{t+1}]")
                k.e(f"v_pk_fma_f32 v[{SQA}:{SQA+1}], v[{t}:{t+1}], v[{t}:{t+1}], v[{SQA}:{SQA+1}]")
    S, Q, t1, t2 = 140, 141, 142, 143
    k.e(f"v_add_f32 v{S}, v{SUMA}, v{SUMA+1}")
    k.e(f"v_add_f32 v{Q}, v{SQA}, v{SQA+1}")
    for sw in ("v_permlane16_swap_b32", "v_permlane32_swap_b32"):
        k.e(f"v_mov_b32 v{t1}, v{S}")
        k.e(f"v_mov_b32 v{t2}, v{Q}")
        k.e("s_nop 1")
        k.e(f"{sw} v{t1}, v{S}")
        k.e(f"{sw} v{t2}, v{Q}")
        k.e(f"v_add_f32 v{S}, v{S}, v{t1}")
        k.e(f"v_add_f32 v{Q}, v{Q}, v{t2}")
    MB, R = 144, 146
    k(f"""
    v_mul_f32 v{S}, 0x3b000000, v{S}           ; mean
    v_mul_f32 v{Q}, 0x3b000000, v{Q}           ; E[x^2]
    v_fma_f32 v{Q}, -v{S}, v{S}, v{Q}          ; var
    v_max_f32 v{Q}, 0, v{Q}
    v_cvt_pk_bf16_f32 v{MB}, v{S}, v{S}
    v_lshlrev_b32 v{MB}, 16, v{MB}
    v_mov_b32 v{MB+1}, v{MB}
    v_cvt_pk_bf16_f32 v{Q}, v{Q}, v{Q}
    v_lshlrev_b32 v{Q}, 16, v{Q}
    v_add_f32 v{Q}, 0x3727c5ac, v{Q}
    v_cvt_pk_bf16_f32 v{Q}, v{Q}, v{Q}
    v_lshlrev_b32 v{Q}, 16, v{Q}
    v_sqrt_f32 v{Q}, v{Q}
    s_nop 0
    v_cvt_pk_bf16_f32 v{Q}, v{Q}, v{Q}
    v_lshlrev_b32 v{Q}, 16, v{Q}
    v_rcp_f32 v{R}, v{Q}
    s_nop 0
    v_fma_f32 v{t1}, -v{Q}, v{R}, 1.0
    v_fma_f32 v{R}, v{t1}, v{R}, v{R}
    v_mov_b32 v{R+1}, v{R}
    v_lshrrev_b32 v1, 4, v0                     ; part
    v_and_b32 v2, 15, v0                        ; r
    v_lshrrev_b32 v3, 1, v1
    v_lshlrev_b32 v3, 11, v3                    ; (part>>1)*2048
    v_and_b32 v4, 1, v1
    v_lshl_add_u32 v3, v4, 9, v3                ; + (part&1)*512
    v_lshl_add_u32 v3, v2, 4, v3                ; + r*16
    s_lshr_b32 s3, s{S_W}, 1
    s_lshl_b32 s3, s3, 10                       ; qb*1024
    s_and_b32 s14, s{S_W}, 1
    s_lshl_b32 s14, s14, 8                      ; 16*(w&1)*16
    s_add_u32 s3, s3, s14
    s_add_u32 s3, s3, {XT}
    v_add_u32 v3, s3, v3
    """)
    k.e("s_barrier")
    for i in range(16):
        O = 148 + (i & 1) * 4
        for j in range(4):
            src = 64 + 4 * i + j
            t = T + 2 * j
            k.e(f"v_lshlrev_b32 v{t}, 16, v{src}")
            k.e(f"v_and_b32 v{t+1}, 0xffff0000, v{src}")
        for j in range(4):
            t = T + 2 * j
            k.e(f"v_pk_add_f32 v[{t}:{t+1}], v[{t}:{t+1}], v[{MB}:{MB+1}] neg_lo:[0,1] neg_hi:[0,1]")
        for j in range(4):
            t = T + 2 * j
            k.e(f"v_cvt_pk_bf16_f32 v{156+j}, v{t}, v{t+1}")
        for j in range(4):
            t = T + 2 * j
            k.e(f"v_lshlrev_b32 v{t}, 16, v{156+j}")
            k.e(f"v_and_b32 v{t+1}, 0xffff0000, v{156+j}")
        for j in range(4):
            t = T + 2 * j
            k.e(f"v_pk_mul_f32 v[{t}:{t+1}], v[{t}:{t+1}], v[{R}:{R+1}]")
        for j in range(4):
            t = T + 2 * j
            k.e(f"v_cvt_pk_bf16_f32 v{O+j}, v{t}, v{t+1}")
        k.e(f"ds_write_b128 v3, v[{O}:{O+3}] offset:{i*4096}")

HROW = 160
H_LDS = 65536
def h_phase(k):
    streams = []
    for r in range(2):
        kk = Em()
        base = HB + r * 20
        X = list(range(base, base + 8))
        src = HROW + 4 * r
        for i in range(4):
            kk.e(f"v_lshlrev_b32 v{X[2*i]}, 16, v{src+i}")
            kk.e(f"v_and_b32 v{X[2*i+1]}, 0xffff0000, v{src+i}")
        ln_rows(kk, X, base + 8, base + 12)
        ln_rows(kk, X, base + 8, base + 12)
        kk.e(f"ds_write_b128 v{HB+40+r}, v[{base+8}:{base+11}]")
        streams.append(kk.L)
    k(f"""
    v_lshlrev_b32 v{HB+40}, 4, v0
    s_lshl_b32 s3, s{S_W}, 11
    s_add_u32 s3, s3, {H_LDS}
    v_add_u32 v{HB+40}, s3, v{HB+40}
    v_add_u32 v{HB+41}, 1024, v{HB+40}
    """)
    zip_streams(k, streams[0], streams[1])
    k(f"""
    s_lshl_b32 s3, s{S_W}, 6
    v_add_u32 v{HB+42}, s3, v0                 ; tid
    v_lshlrev_b32 v{HB+43}, 1, v{HB+42}
    v_add_u32 v{HB+43}, {H_LDS}, v{HB+43}
    s_waitcnt lgkmcnt(0)
    s_barrier
    """)
    for p in range(2):
        for r in range(8):
            k.e(f"ds_read_u16 v{HB+p*8+r}, v{HB+43} offset:{r*1024 + p*512}")
    k(f"""
    s_lshl_b32 s13, s{S_RB}, 2
    s_lshr_b32 s14, s{S_G}, 1
    s_add_u32 s13, s13, s14
    s_lshl_b32 s13, s13, 10
    s_and_b32 s14, s{S_G}, 1
    s_lshl_b32 s14, s14, 9
    s_add_u32 s13, s13, s14
    s_add_u32 s13, s13, {HF_OFF}
    v_lshrrev_b32 v{HB+44}, 5, v{HB+42}
    v_lshlrev_b32 v{HB+44}, 17, v{HB+44}
    v_and_b32 v{HB+45}, 31, v{HB+42}
    v_lshl_add_u32 v{HB+44}, v{HB+45}, 4, v{HB+44}
    s_add_u32 s15, s13, {8*131072}
    s_waitcnt lgkmcnt(0)
    """)
    for p in range(2):
        for j in range(4):
            k.e(f"v_lshl_or_b32 v{HB+20+p*4+j}, v{HB+p*8+2*j+1}, 16, v{HB+p*8+2*j}")
    k.e(f"buffer_store_dwordx4 v[{HB+20}:{HB+23}], v{HB+44}, s[{SRD_WS}:{SRD_WS+3}], s13 offen sc1")
    k.e(f"buffer_store_dwordx4 v[{HB+24}:{HB+27}], v{HB+44}, s[{SRD_WS}:{SRD_WS+3}], s15 offen sc1")

HB = 168
XYOUNG = 28

def poll8(k, tag, off, target):
    k(f"""
    s_mov_b32 s{S_FLG}, {POLL_MAX}
    v_and_b32 v1, 7, v0
    v_lshlrev_b32 v1, 8, v1
    s_mov_b32 s3, {off}
    L_poll8_{tag}:
    buffer_load_dword v4, v1, s[{SRD_WS}:{SRD_WS+3}], s3 offen sc1
    s_waitcnt vmcnt(0)
    v_cmp_le_u32 vcc, {target}, v4
    s_cmp_eq_u64 vcc, -1
    s_cbranch_scc1 L_poll8d_{tag}
    s_sleep 16
    s_sub_u32 s{S_FLG}, s{S_FLG}, 1
    s_cmp_lg_u32 s{S_FLG}, 0
    s_cbranch_scc1 L_poll8_{tag}
    L_poll8d_{tag}:
    """)

G1PF, G1NS, G1NB = 7, 8, 8
def g1_setup_v(k):
    RS = 3584
    k(f"""
    v_lshrrev_b32 v3, 3, v0
    v_and_b32 v4, 7, v0
    v_lshrrev_b32 v5, 1, v3
    v_and_b32 v5, 1, v5
    v_lshlrev_b32 v5, 2, v5
    v_xor_b32 v4, v4, v5
    v_mul_u32_u24 v3, {RS}, v3
    v_lshl_add_u32 v10, v4, 4, v3
    v_lshlrev_b32 v11, 4, v0
    v_lshrrev_b32 v3, 5, v0
    v_bfe_u32 v4, v0, 4, 1
    v_bfe_u32 v5, v0, 2, 2
    v_and_b32 v6, 3, v0
    v_lshlrev_b32 v7, 3, v3
    v_add_u32 v7, v7, v5
    v_lshlrev_b32 v7, 7, v7
    v_lshl_add_u32 v7, v4, 5, v7
    v_lshl_add_u32 v7, v6, 3, v7
    s_lshl_b32 s3, s{S_W}, 14
    s_cmp_eq_u32 s{S_W}, 3
    s_cselect_b32 s3, 131072, s3
    v_add_u32 v7, s3, v7
    v_lshrrev_b32 v8, 1, v5
    v_lshlrev_b32 v9, 6, v8
    v_add_u32 v12, v7, v9
    v_xor_b32 v9, 64, v9
    v_add_u32 v13, v7, v9
    v_lshlrev_b32 v14, 3, v3
    """)

def g1_setup_s():
    RS, NKS, NKST = 3584, 32, 128
    return [[f"s_lshl_b32 s46, s{S_W}, 14", f"s_cmp_eq_u32 s{S_W}, 3", "s_cselect_b32 s46, 131072, s46"],
            [f"s_mul_i32 s43, s{S_W}, {NKS*16*RS}", f"s_lshl_b32 s3, s{S_MT}, 7", "s_add_u32 s43, s43, s3"],
            [f"s_lshl_b32 s44, s{S_NT}, 1", f"s_mul_i32 s44, s44, {NKST}", f"s_mul_i32 s3, s{S_W}, {NKS}", "s_add_u32 s44, s44, s3"],
            ["s_lshl_b32 s44, s44, 10", f"s_add_u32 s44, s44, {HF_OFF}", f"s_add_u32 s45, s44, {NKST*1024}"]]

def g1_A(ks, vm=None):
    RS = 3584
    out = [f"s_add_u32 m0, s46, {(ks % G1NS)*2048}",
           f"s_add_u32 s47, s43, {8*RS-1024}",
           f"buffer_load_dwordx4 v10, s[{SRD_W1}:{SRD_W1+3}], s43 offen lds",
           f"buffer_load_dwordx4 v10, s[{SRD_W1}:{SRD_W1+3}], s47 offen offset:1024 lds",
           f"s_add_u32 s43, s43, {16*RS}"]
    if vm: vm.issue(("A", ks)); vm.issue(("A", ks))
    return out

def g1_B(ks, vm=None):
    bs = 144 + (ks % G1NB) * 8
    out = [f"buffer_load_dwordx4 v[{bs}:{bs+3}], v11, s[{SRD_WS}:{SRD_WS+3}], s44 offen sc1",
           f"buffer_load_dwordx4 v[{bs+4}:{bs+7}], v11, s[{SRD_WS}:{SRD_WS+3}], s45 offen sc1",
           "s_add_u32 s44, s44, 1024", "s_add_u32 s45, s45, 1024"]
    if vm: vm.issue(("B", ks)); vm.issue(("B", ks))
    return out

def g1_bias_list(vm=None):
    out = [f"s_lshr_b32 s3, s{S_W}, 1", "s_lshl_b32 s3, s3, 6", f"s_lshl_b32 s47, s{S_MT}, 7", "s_add_u32 s3, s3, s47",
           "s_mov_b32 s12, s34", "s_mov_b32 s13, s35", f"s_mov_b32 s14, {1792*2}", "s_mov_b32 s15, 0x00020000"]
    for b in range(4):
        out.append(f"buffer_load_dwordx2 a[{176+2*b}:{177+2*b}], v14, s[12:15], s3 offen offset:{16*b}")
        if vm: vm.issue(("E", 0))
    return out

def onorm_groups():
    groups = []
    for db in range(4):
        for qb in range(2):
            for ks in range(2):
                i = db * 4 + qb * 2 + ks
                tb = 28 + (i & 1) * 16
                g = []
                for r in range(8):
                    g.append(f"v_accvgpr_read_b32 v{tb+r}, a{OA+(db*2+qb)*16+ks*8+r}")
                for r in range(0, 8, 2):
                    g.append(f"v_pk_mul_f32 v[{tb+r}:{tb+r+1}], v[{tb+r}:{tb+r+1}], v[{LLP+2*qb}:{LLP+2*qb+1}]")
                for r in range(0, 8, 2):
                    g.append(f"v_cvt_pk_bf16_f32 v{tb+8+r//2}, v{tb+r}, v{tb+r+1}")
                g.append(f"ds_write_b128 v2, v[{tb+8}:{tb+11}] offset:{(2*db+ks)*2048 + qb*1024}")
                groups.append(g)
    return groups
LLP = 60

def l_final(k):
    for qb in range(2):
        k.e(f"v_mov_b32 v{T0+qb+2}, v{LL+qb}")
    k.e("s_nop 1")
    for qb in range(2):
        k.e(f"v_permlane32_swap_b32 v{T0+qb+2}, v{LL+qb}")
    for qb in range(2):
        k.e(f"v_add_f32 v{LL+qb}, v{LL+qb}, v{T0+qb+2}")
    for qb in range(2):
        k.e(f"v_rcp_f32 v{LLP+2*qb}, v{LL+qb}")
    k(f"""
    s_lshl_b32 s3, s{S_W}, 14
    s_add_u32 s3, s3, {XT}
    v_lshlrev_b32 v15, 4, v0
    v_add_u32 v2, s3, v15
    v_add_u32 v{XA}, {XT}, v15
    v_mov_b32 v{LLP+1}, v{LLP}
    v_mov_b32 v{LLP+3}, v{LLP+2}
    """)

def g1_phase(k, vm, stamp, after_exchange):
    NKS = 32
    PF, NS, NB = G1PF, G1NS, G1NB
    ACC, AF, BF = 64, 128, 144
    def tr(ks):
        slot = ks % NS
        out = []
        for mb in range(2):
            for bp in range(2):
                d = AF + (ks & 1) * 8 + mb * 4 + bp * 2
                out.append(f"ds_read_b64_tr_b16 v[{d}:{d+1}], v{12+mb} offset:{slot*2048 + bp*512}")
        return out
    n = vm.need(lambda t: t == ("A", 0))
    k.e(f"s_waitcnt vmcnt({n})")
    stamp()
    for ins in tr(0): k.e(ins)
    ng = onorm_groups()
    flat = [x for g in ng for x in g]
    per = (len(flat) + NKS - 1) // NKS
    for ks in range(NKS):
        n = vm.need(lambda t: (t[0] == "A" and t[1] <= ks + 1) or (t[0] == "B" and t[1] <= ks))
        k.e("s_waitcnt lgkmcnt(0)" if n is None else f"s_waitcnt vmcnt({n}) lgkmcnt(0)")
        bs = BF + (ks % NB) * 8
        fill = tr(ks + 1) if ks + 1 < NKS else []
        extra = flat[ks * per:(ks + 1) * per]
        mf = []
        for mb in range(2):
            for nb in range(2):
                d = ACC + (mb * 2 + nb) * 16
                mf.append(mfma(d, AF + (ks & 1) * 8 + mb * 4, bs + nb * 4, "0" if ks == 0 else d, dfile='v', afile='v', bfile='v'))
        k.e(mf[0])
        for ins in fill[:2]: k.e(ins)
        for ins in extra[:3]: k.e(ins)
        k.e(mf[1])
        for ins in fill[2:]: k.e(ins)
        for ins in extra[3:6]: k.e(ins)
        k.e(mf[2])
        for ins in extra[6:]: k.e(ins)
        k.e(mf[3])
        if ks + PF < NKS:
            for ins in g1_B(ks + PF, vm) + g1_A(ks + PF, vm): k.e(ins)
    stamp()
    k.e("s_nop 7")
    k.e("s_barrier")
    k(f"""
    s_lshl_b32 s3, s{S_W}, 14
    v_add_u32 v3, s3, v11
    s_nop 4
    """)
    for blk in range(4):
        for q in range(4):
            r = ACC + blk * 16 + q * 4
            k.e(f"ds_write_b128 v3, v[{r}:{r+3}] offset:{blk*4096 + q*1024}")
    k(f"""
    s_lshl_b32 s3, s{S_W}, 12
    v_add_u32 v3, s3, v11
    s_waitcnt lgkmcnt(0)
    s_barrier
    """)
    for src in range(4):
        for q in range(4):
            r = ACC + src * 16 + q * 4
            k.e(f"ds_read_b128 v[{r}:{r+3}], v3 offset:{src*16384 + q*1024}")
    n = vm.need(lambda t: t[0] == "E")
    if n is not None: k.e(f"s_waitcnt vmcnt({n})")
    for j in range(8):
        k.e(f"v_accvgpr_read_b32 v{20+j}, a{176+j}")
    for b in range(4):
        k.e(f"v_lshlrev_b32 v{32+4*b}, 16, v{20+2*b}")
        k.e(f"v_and_b32 v{33+4*b}, 0xffff0000, v{20+2*b}")
        k.e(f"v_lshlrev_b32 v{34+4*b}, 16, v{21+2*b}")
        k.e(f"v_and_b32 v{35+4*b}, 0xffff0000, v{21+2*b}")
    k.e("s_waitcnt lgkmcnt(0)")
    k.e("s_barrier")
    after_exchange()

def g1_finish(k):
    Y = 64
    c1 = -2.0 * 0.7978845608028654 * LOG2E
    k.e(f"s_mov_b32 s12, {f2h(c1)}")
    k.e(f"s_mov_b32 s13, {f2h(c1*0.044715)}")
    k.e(f"v_mov_b32 v48, s12")
    for r in range(0, 16, 2):
        k.e(f"v_pk_add_f32 v[{Y+r}:{Y+r+1}], v[{Y+r}:{Y+r+1}], v[{Y+16+r}:{Y+17+r}]")
        k.e(f"v_pk_add_f32 v[{Y+32+r}:{Y+33+r}], v[{Y+32+r}:{Y+33+r}], v[{Y+48+r}:{Y+49+r}]")
    for r in range(0, 16, 2):
        k.e(f"v_pk_add_f32 v[{Y+r}:{Y+r+1}], v[{Y+r}:{Y+r+1}], v[{Y+32+r}:{Y+33+r}]")
    for r in range(0, 16, 2):
        k.e(f"v_pk_add_f32 v[{Y+r}:{Y+r+1}], v[{Y+r}:{Y+r+1}], v[{32+r}:{33+r}]")
    T = Y + 16
    for r in range(0, 16, 2):
        k.e(f"v_pk_mul_f32 v[{T+r}:{T+r+1}], v[{Y+r}:{Y+r+1}], v[{Y+r}:{Y+r+1}]")
    for r in range(16):
        k.e(f"v_fma_f32 v{T+r}, v{T+r}, s13, v48")
    for r in range(0, 16, 2):
        k.e(f"v_pk_mul_f32 v[{T+r}:{T+r+1}], v[{T+r}:{T+r+1}], v[{Y+r}:{Y+r+1}]")
    for r in range(16):
        k.e(f"v_exp_f32 v{T+r}, v{T+r}")
    for r in range(16):
        k.e(f"v_add_f32 v{T+r}, 1.0, v{T+r}")
    for r in range(16):
        k.e(f"v_rcp_f32 v{T+r}, v{T+r}")
    k.e("s_nop 0")
    for r in range(0, 16, 2):
        k.e(f"v_pk_mul_f32 v[{Y+r}:{Y+r+1}], v[{Y+r}:{Y+r+1}], v[{T+r}:{T+r+1}]")
    for r in range(0, 16, 2):
        k.e(f"v_cvt_pk_bf16_f32 v{52 + r//2}, v{Y+r}, v{Y+r+1}")
    k(f"""
    s_and_b32 s12, s{S_W}, 1
    s_lshl_b32 s13, s{S_NT}, 1
    s_add_u32 s12, s12, s13
    s_mul_i32 s12, s12, 112
    s_lshl_b32 s13, s{S_MT}, 2
    s_add_u32 s12, s12, s13
    s_lshr_b32 s13, s{S_W}, 1
    s_lshl_b32 s13, s13, 1
    s_add_u32 s12, s12, s13
    s_lshl_b32 s12, s12, 10
    s_add_u32 s12, s12, {UF_OFF}
    buffer_store_dwordx4 v[52:55], v11, s[{SRD_WS}:{SRD_WS+3}], s12 offen sc1
    buffer_store_dwordx4 v[56:59], v11, s[{SRD_WS}:{SRD_WS+3}], s12 offen offset:1024 sc1
    """)

G2_PF = 10
def g2_setup(k, vm):
    RS, NKS, NKST = 4096, 28, 112
    PF, NS, NB = G2_PF, G2_PF + 2, G2_PF + 1
    k(f"""
    s_load_dwordx2 s[8:9], s[0:1], {KA_B2}
    s_load_dwordx2 s[12:13], s[0:1], {KA_X}
    s_load_dwordx2 s[14:15], s[0:1], {KA_OUT}
    s_load_dwordx2 s[48:49], s[0:1], {KA_WS}
    v_lshrrev_b32 v3, 3, v0
    v_and_b32 v4, 7, v0
    v_lshrrev_b32 v5, 1, v3
    v_and_b32 v5, 1, v5
    v_lshlrev_b32 v5, 2, v5
    v_xor_b32 v4, v4, v5
    v_lshlrev_b32 v3, 12, v3
    v_lshl_add_u32 v10, v4, 4, v3       ; voffA
    v_lshlrev_b32 v11, 4, v0
    v_lshrrev_b32 v3, 5, v0             ; hf
    v_bfe_u32 v4, v0, 4, 1
    v_bfe_u32 v5, v0, 2, 2
    v_and_b32 v6, 3, v0
    v_lshlrev_b32 v7, 2, v3
    v_add_u32 v7, v7, v5
    v_lshlrev_b32 v7, 7, v7
    v_lshl_add_u32 v7, v4, 5, v7
    v_lshl_add_u32 v7, v6, 3, v7
    s_mul_i32 s46, s{S_W}, {NS*2048}
    v_add_u32 v7, s46, v7
    v_lshrrev_b32 v8, 1, v5
    v_lshlrev_b32 v9, 6, v8
    v_add_u32 v12, v7, v9
    v_xor_b32 v9, 64, v9
    v_add_u32 v13, v7, v9
    s_mul_i32 s43, s{S_W}, {NKS*16*RS}
    s_lshl_b32 s47, s{S_MT2}, 7
    s_add_u32 s43, s43, s47
    s_add_u32 s47, s43, {8*RS-1024}
    s_lshl_b32 s44, s{S_NT2}, 1
    s_mul_i32 s44, s44, {NKST}
    s_mul_i32 s45, s{S_W}, {NKS}
    s_add_u32 s44, s44, s45
    s_lshl_b32 s44, s44, 10
    s_add_u32 s44, s44, {UF_OFF}
    s_add_u32 s45, s44, {NKST*1024}
    v_and_b32 v14, 31, v0
    s_lshr_b32 s54, s{S_W}, 1
    s_lshl_b32 s54, s54, 5
    v_add_u32 v14, s54, v14             ; row
    v_lshlrev_b32 v15, 1, v14           ; b2 offset
    v_lshlrev_b32 v2, 10, v14
    v_lshl_add_u32 v2, v3, 4, v2
    s_and_b32 s54, s{S_W}, 1
    s_lshl_b32 s54, s54, 5
    v_add_u32 v2, s54, v2
    """)
    for ks in range(PF):
        g2_issue(k, vm, ks)
    k("s_waitcnt lgkmcnt(0)")
    srd(k, 16, 8, 9, 2048 * 2)
    srd(k, 20, 12, 13, 2097152)
    srd(k, 28, 14, 15, 2097152)
    srd_off(k, 56, 48, 49, SLAB_OFF, 16 << 20)
    k(f"""
    s_lshl_b32 s54, s{S_MT2}, 16
    s_lshl_b32 s55, s{S_NT2}, 7
    s_add_u32 s54, s54, s55
    s_lshl_b32 s55, s{S_MT2}, 7         ; b2 base
    s_lshl_b32 s53, s{S_MT2}, 16
    s_lshr_b32 s52, s{S_NT2}, 1
    s_lshl_b32 s52, s52, 14
    s_add_u32 s53, s53, s52
    s_and_b32 s52, s{S_NT2}, 1
    s_lshl_b32 s52, s52, 13
    s_add_u32 s53, s53, s52
    s_lshl_b32 s52, s{S_W}, 10
    s_add_u32 s53, s53, s52
    """)
    k.e("buffer_load_ushort v9, v15, s[16:19], s55 offen"); vm.issue(("E", 0))
    k.e(f"buffer_load_dwordx4 v[248:251], v2, s[20:23], s54 offen"); vm.issue(("E", 0))
    k.e(f"buffer_load_dwordx4 v[252:255], v2, s[20:23], s54 offen offset:64"); vm.issue(("E", 0))

def g2_issue(k, vm, ks):
    RS = 4096
    NS, NB = G2_PF + 2, G2_PF + 1
    slot = ks % NS
    k.e(f"s_add_u32 m0, s46, {slot*2048}")
    bs = 144 + (ks % NB) * 8
    k.e(f"buffer_load_dwordx4 v[{bs}:{bs+3}], v11, s[{SRD_WS}:{SRD_WS+3}], s44 offen sc1"); vm.issue(("B", ks))
    k.e(f"buffer_load_dwordx4 v10, s[{SRD_WQ}:{SRD_WQ+3}], s43 offen lds"); vm.issue(("A", ks))
    k.e(f"buffer_load_dwordx4 v10, s[{SRD_WQ}:{SRD_WQ+3}], s47 offen offset:1024 lds"); vm.issue(("A", ks))
    k.e(f"buffer_load_dwordx4 v[{bs+4}:{bs+7}], v11, s[{SRD_WS}:{SRD_WS+3}], s45 offen sc1"); vm.issue(("B", ks))
    k.e(f"s_add_u32 s43, s43, {16*RS}")
    k.e(f"s_add_u32 s47, s47, {16*RS}")
    k.e(f"s_add_u32 s44, s44, 1024")
    k.e(f"s_add_u32 s45, s45, 1024")

def g2_main(k, vm, stamp, POLL_KS=10, SIG_KS=5):
    NKS = 28
    PF, NS, NB = G2_PF, G2_PF + 2, G2_PF + 1
    ACC, AF, BF = 64, 128, 144
    SL = 0
    SUM = 232
    def tr(ks):
        slot = ks % NS
        out = []
        for mb in range(2):
            for bp in range(2):
                d = AF + (ks & 1) * 8 + mb * 4 + bp * 2
                out.append(f"ds_read_b64_tr_b16 v[{d}:{d+1}], v{12+mb} offset:{slot*2048 + bp*1024}")
        return out
    n = vm.need(lambda t: t == ("A", 0))
    k.e(f"s_waitcnt vmcnt({n})")
    for ins in tr(0): k.e(ins)
    si = 0
    for ks in range(NKS):
        n = vm.need(lambda t: (t[0] == "A" and t[1] <= ks + 1) or (t[0] == "B" and t[1] <= ks))
        k.e("s_waitcnt lgkmcnt(0)" if n is None else f"s_waitcnt vmcnt({n}) lgkmcnt(0)")
        bs = BF + (ks % NB) * 8
        fill = tr(ks + 1) if ks + 1 < NKS else []
        mf = []
        for mb in range(2):
            for nb in range(2):
                a = AF + (ks & 1) * 8 + mb * 4
                b = bs + nb * 4
                d = ACC + (mb * 2 + nb) * 16
                c = "0" if ks == 0 else f"v[{d}:{d+15}]"
                mf.append(f"v_mfma_f32_32x32x16_bf16 v[{d}:{d+15}], v[{b}:{b+3}], v[{a}:{a+3}], {c}")
        k.e(mf[0])
        for ins in fill[:2]: k.e(ins)
        k.e(mf[1])
        for ins in fill[2:]: k.e(ins)
        k.e(mf[2])
        if ks + PF < NKS:
            g2_issue(k, vm, ks + PF)
        if ks == SIG_KS:
            n = vm.need(lambda t: t[0] == "ST")
            if n is not None: k.e(f"s_waitcnt vmcnt({n})")
            k.e("s_barrier")
            k.e(f"s_lshl_b32 s52, s{S_RB}, 8")
            k.e(f"s_add_u32 s52, s52, {CNT_OFF}")
            signal(k, "slab", 52)
        if ks == POLL_KS:
            k.e(f"s_lshl_b32 s52, s{S_MT2}, 8")
            k.e(f"s_add_u32 s52, s52, {CNT_OFF}")
            k.e(f"s_cmp_lg_u32 s{S_W}, 0")
            k.e("s_cbranch_scc1 L_slab_nopoll")
            poll(k, "slab", 52, 8)
            k.lab("L_slab_nopoll")
            k.e("s_barrier")
        if ks >= POLL_KS and si < 16:
            for rep in range(1 if ks < 26 else 2):
                if si < 16:
                    g, p = si >> 1, si & 1
                    k.e(f"s_add_u32 s52, s53, {g*2097152 + p*4096}")
                    k.e(f"buffer_load_dwordx4 a[{si*4}:{si*4+3}], v11, s[56:59], s52 offen sc1"); vm.issue(("S", si))
                    si += 1
        k.e(mf[3])
    assert si == 16
    stamp()
    PS = 64 * 272
    k(f"""
    v_and_b32 v3, 31, v0
    s_movk_i32 s52, 272
    v_mul_lo_u32 v3, v3, s52
    v_lshrrev_b32 v4, 5, v0
    v_lshl_add_u32 v3, v4, 4, v3
    s_mul_i32 s55, s{S_W}, {PS}
    v_add_u32 v3, s55, v3
    v_mul_lo_u32 v8, v14, s52
    v_lshl_add_u32 v8, v4, 5, v8
    s_and_b32 s52, s{S_W}, 1
    s_lshl_b32 s52, s52, 6
    v_add_u32 v8, s52, v8
    s_barrier
    """)
    for mb in range(2):
        for nb in range(2):
            for b in range(4):
                r = ACC + (mb * 2 + nb) * 16 + b * 4
                k.e(f"ds_write_b128 v3, v[{r}:{r+3}] offset:{mb*32*272 + nb*128 + b*32}")
    k(f"""
    s_waitcnt lgkmcnt(0)
    s_barrier
    """)
    for p in range(2):
        for src in range(4):
            r = ACC + p * 32 + src * 8
            k.e(f"ds_read_b128 v[{r}:{r+3}], v8 offset:{src*PS + p*128}")
            k.e(f"ds_read_b128 v[{r+4}:{r+7}], v8 offset:{src*PS + p*128 + 16}")
    for i in range(16):
        g, p = i >> 1, i & 1
        n = vm.need(lambda t: t[0] == "S" and t[1] <= i)
        if n is not None: k.e(f"s_waitcnt vmcnt({n})")
        for j in range(4):
            k.e(f"v_accvgpr_read_b32 v{20+j}, a{i*4+j}")
        for j in range(4):
            if g == 0:
                k.e(f"v_lshlrev_b32 v{SUM+p*8+2*j}, 16, v{20+j}")
                k.e(f"v_and_b32 v{SUM+p*8+2*j+1}, 0xffff0000, v{20+j}")
            else:
                k.e(f"v_lshlrev_b32 v{24+2*j}, 16, v{20+j}")
                k.e(f"v_and_b32 v{25+2*j}, 0xffff0000, v{20+j}")
        if g > 0:
            for j in range(4):
                k.e(f"v_pk_add_f32 v[{SUM+p*8+2*j}:{SUM+p*8+2*j+1}], v[{SUM+p*8+2*j}:{SUM+p*8+2*j+1}], v[{24+2*j}:{25+2*j}]")
    for p in range(2):
        for j in range(4):
            k.e(f"v_lshlrev_b32 v{128+p*8+2*j}, 16, v{248+p*4+j}")
            k.e(f"v_and_b32 v{129+p*8+2*j}, 0xffff0000, v{248+p*4+j}")
    k.e("v_lshlrev_b32 v18, 16, v9")
    k.e("v_mov_b32 v19, v18")
    k.e(f"s_mov_b32 s48, {f2h(-LOG2E)}")
    k.e(f"s_mov_b32 s49, {f2h(-LOG2E)}")
    k.e("s_waitcnt lgkmcnt(0)")
    for p in range(2):
        Y = ACC + p * 32
        for i in range(0, 8, 2):
            k.e(f"v_pk_add_f32 v[{Y+i}:{Y+i+1}], v[{Y+i}:{Y+i+1}], v[{Y+8+i}:{Y+9+i}]")
            k.e(f"v_pk_add_f32 v[{Y+16+i}:{Y+17+i}], v[{Y+16+i}:{Y+17+i}], v[{Y+24+i}:{Y+25+i}]")
        for i in range(0, 8, 2):
            k.e(f"v_pk_add_f32 v[{Y+i}:{Y+i+1}], v[{Y+i}:{Y+i+1}], v[{Y+16+i}:{Y+17+i}]")
        for i in range(0, 8, 2):
            k.e(f"v_pk_add_f32 v[{Y+i}:{Y+i+1}], v[{Y+i}:{Y+i+1}], v[18:19]")
    for p in range(2):
        Y = ACC + p * 32; T = Y + 8
        for i in range(0, 8, 2):
            k.e(f"v_pk_mul_f32 v[{T+i}:{T+i+1}], v[{Y+i}:{Y+i+1}], s[48:49]")
    for p in range(2):
        T = ACC + p * 32 + 8
        for i in range(8): k.e(f"v_exp_f32 v{T+i}, v{T+i}")
    for p in range(2):
        T = ACC + p * 32 + 8
        for i in range(8): k.e(f"v_add_f32 v{T+i}, 1.0, v{T+i}")
    for p in range(2):
        T = ACC + p * 32 + 8
        for i in range(8): k.e(f"v_rcp_f32 v{T+i}, v{T+i}")
    k.e("s_nop 0")
    for p in range(2):
        Y = ACC + p * 32; T = Y + 8
        for i in range(0, 8, 2):
            k.e(f"v_pk_mul_f32 v[{Y+i}:{Y+i+1}], v[{Y+i}:{Y+i+1}], v[{T+i}:{T+i+1}]")
    for p in range(2):
        Y = ACC + p * 32
        for i in range(0, 8, 2):
            k.e(f"v_pk_fma_f32 v[{Y+i}:{Y+i+1}], v[{Y+i}:{Y+i+1}], v[{SUM+p*8+i}:{SUM+p*8+i+1}], v[{128+p*8+i}:{129+p*8+i}]")
    for p in range(2):
        Y = ACC + p * 32
        for i in range(0, 8, 2):
            k.e(f"v_cvt_pk_bf16_f32 v{40+p*4+i//2}, v{Y+i}, v{Y+i+1}")
        k.e(f"buffer_store_dwordx4 v[{40+p*4}:{43+p*4}], v2, s[28:31], s54 offen offset:{64*p}")

XSRC = 239
UFL = 252

def gen_m7(name="main_kernel", debug=None, prof=False, l2pf=True, kidx=0, sched2=True):
    k = Em()
    M.SCHED2 = sched2
    M.PRE_HOOK = lambda kk: poll8(kk, 'h', HCNT_OFF, 32)
    nst = [0]
    def stamp():
        if prof is not True: return
        i = nst[0]; nst[0] += 1
        k.e(f"s_memtime s[{64+2*i}:{65+2*i}]")
        k.e(f"s_memrealtime s[100:101]")
        k.e("s_waitcnt lgkmcnt(0)")
        k.e(f"s_mov_b32 s{65+2*i}, s100")
    k.L.append(kernel_header(name))
    cscale = math.log2(math.e) / math.sqrt(128.0)
    tl_begin(k, prof)
    k(f"""
    s_cmp_ge_u32 s2, 256
    s_cbranch_scc1 L_at_done
    s_load_dwordx2 s[4:5], s[0:1], {KA_X}
    s_load_dwordx2 s[12:13], s[0:1], {KA_WS}
    s_load_dwordx2 s[14:15], s[0:1], {KA_DBG}
    v_lshrrev_b32 v1, 6, v0
    v_and_b32 v0, 63, v0
    s_and_b32 s{S_XCD}, s2, 7
    v_readfirstlane_b32 s{S_W}, v1
    s_lshr_b32 s{S_IDX}, s2, 3
    s_and_b32 s{S_G}, s{S_XCD}, 3
    s_lshl_b32 s{S_G}, s{S_G}, 1
    s_and_b32 s3, s{S_IDX}, 1
    s_add_u32 s{S_G}, s{S_G}, s3        ; g = 2*(x&3) + (idx&1)
    s_lshr_b32 s{S_RB}, s{S_XCD}, 2
    s_lshl_b32 s{S_RB}, s{S_RB}, 4
    s_lshr_b32 s3, s{S_IDX}, 1
    s_add_u32 s{S_RB}, s{S_RB}, s3
    v_and_b32 v2, 15, v0
    v_lshrrev_b32 v3, 4, v0
    v_lshlrev_b32 v2, 10, v2
    v_lshl_add_u32 v2, v3, 4, v2        ; r*1024 + part*16
    s_lshl_b32 s3, s{S_RB}, 16
    s_lshl_b32 s8, s{S_W}, 14
    s_add_u32 s3, s3, s8                ; (64rb + 16w)*1024
    s_waitcnt lgkmcnt(0)
    s_mov_b32 s16, s4
    s_mov_b32 s17, s5
    s_mov_b32 s18, 2097152
    s_mov_b32 s19, 0x00020000
    """)
    k(f"""
    v_lshlrev_b32 v4, 4, v0
    s_lshl_b32 s8, s{S_RB}, 16
    s_lshl_b32 s9, s{S_G}, 13
    s_add_u32 s8, s8, s9
    s_lshl_b32 s9, s{S_W}, 11
    s_add_u32 s8, s8, s9                ; (64rb + 8g + 2w)*1024
    buffer_load_dwordx4 v[160:163], v4, s[16:19], s8 offen
    buffer_load_dwordx4 v[164:167], v4, s[16:19], s8 offen offset:1024
    """)
    for i in range(16):
        k.e(f"buffer_load_dwordx4 v[{64+4*i}:{67+4*i}], v2, s[16:19], s3 offen offset:{64*i}")
    k(f"""
    s_load_dwordx2 s[16:17], s[0:1], {KA_K}
    s_load_dwordx2 s[20:21], s[0:1], {KA_V}
    s_load_dwordx2 s[8:9], s[0:1], {KA_WQ}
    s_load_dwordx2 s[10:11], s[0:1], {KA_WO}
    s_load_dwordx2 s[56:57], s[0:1], {KA_W1}
    s_load_dwordx2 s[34:35], s[0:1], {KA_B1}
    """)
    stamp()
    srd(k, SRD_WS, 12, 13, 8 << 20)
    srd(k, DBG_SRD, 14, 15, 256)
    k(f"""
    s_cmp_ge_u32 s2, 48
    s_cbranch_scc1 L_nozero
    s_cmp_lg_u32 s{S_W}, 0
    s_cbranch_scc1 L_nozero
    s_lshl_b32 s3, s2, 8
    s_cmp_ge_u32 s2, 40
    s_cselect_b32 s14, {16384 - 40*256}, 0
    s_add_u32 s3, s3, s14
    s_add_u32 s3, s3, {CNT_OFF}
    v_mov_b32 v1, 0
    v_lshlrev_b32 v3, 2, v0
    buffer_store_dword v1, v3, s[{SRD_WS}:{SRD_WS+3}], s3 offen sc1
    s_waitcnt vmcnt(0)
    v_mov_b32 v3, 1
    v_cmp_eq_u32 vcc, 0, v0
    s_and_saveexec_b64 s[14:15], vcc
    buffer_atomic_add v3, v1, s[{DBG_SRD}:{DBG_SRD+3}], 0 offen
    s_mov_b64 exec, s[14:15]
    L_nozero:
    s_lshl_b32 s14, s{S_G}, 19          ; g*524288
    s_lshl_b32 s3, s{S_G}, 21           ; g*2MB
    s_add_u32 s3, s3, {SLAB_OFF}
    s_waitcnt lgkmcnt(0)
    s_add_u32 s16, s16, s14
    s_addc_u32 s17, s17, 0
    s_mov_b32 s18, 524288
    s_mov_b32 s19, 0x00020000
    s_add_u32 s20, s20, s14
    s_addc_u32 s21, s21, 0
    s_mov_b32 s22, 524288
    s_mov_b32 s23, 0x00020000
    s_mov_b32 s58, {2048*3584}
    s_mov_b32 s59, 0x00020000
    """)
    srd(k, SRD_WQ, 8, 9, 4194304)
    srd(k, SRD_WO, 10, 11, 4194304)
    srd_off(k, SRD_SL, 12, 13, "s3", 2097152)
    k(f"""
    s_and_b32 s{S_NT}, s{S_XCD}, 1
    s_lshl_b32 s{S_NT}, s{S_NT}, 2
    s_and_b32 s3, s{S_IDX}, 3
    s_add_u32 s{S_NT}, s{S_NT}, s3
    s_mov_b32 s{S_NT2}, s{S_NT}
    s_lshr_b32 s{S_MT}, s{S_XCD}, 1
    s_lshl_b32 s{S_MT2}, s{S_MT}, 3
    s_mul_i32 s{S_MT}, s{S_MT}, 7
    s_lshr_b32 s3, s{S_IDX}, 2
    s_add_u32 s{S_MT}, s{S_MT}, s3
    s_add_u32 s{S_MT2}, s{S_MT2}, s3
    s_lshl_b32 s14, s{S_W}, 6
    v_add_u32 v1, s14, v0               ; tid
    v_lshrrev_b32 v2, 4, v1
    v_and_b32 v3, 15, v1
    v_lshlrev_b32 v2, 13, v2
    v_lshl_add_u32 v250, v3, 6, v2
    v_lshlrev_b32 v251, 6, v1           ; tid*64
    """)
    k(f"""
    v_lshrrev_b32 v1, 4, v0             ; l>>4 (0..3)
    v_and_b32 v2, 15, v0                ; p = l&15
    ; DV: (l>>4)*256 + ((p ^ ((l>>4)<<2))*16)
    v_lshlrev_b32 v3, 2, v1
    v_xor_b32 v3, v2, v3
    v_lshlrev_b32 v3, 4, v3
    v_lshl_add_u32 v{DV}, v1, 8, v3
    v_lshl_add_u32 v{DW}, v1, 13, v3
    """)
    for i in range(4):
        k(f"""
        v_add_u32 v4, {4*i}, v1
        v_xor_b32 v4, v2, v4
        v_lshlrev_b32 v4, 4, v4
        v_lshl_add_u32 v{DK+i}, v1, 8, v4
        """)
    k(f"""
    v_and_b32 v4, 31, v0
    v_lshrrev_b32 v5, 5, v0             ; hf
    v_xor_b32 v6, v5, v2
    v_lshlrev_b32 v7, 8, v4
    """)
    for t in range(8):
        k.e(f"v_xor_b32 v8, {2*t}, v6")
        k.e(f"v_lshl_add_u32 v{KA+t}, v8, 4, v7")
    k(f"""
    v_bfe_u32 v8, v0, 2, 2              ; r
    v_bfe_u32 v9, v0, 4, 1              ; csub
    v_and_b32 v10, 3, v0                ; c
    v_lshl_add_u32 v11, v5, 2, v8       ; 4hf + r
    v_lshlrev_b32 v11, 8, v11
    v_lshl_add_u32 v11, v9, 5, v11
    v_lshl_add_u32 v12, v10, 3, v11
    """)
    for db in range(4):
        k.e(f"v_xor_b32 v13, {db}, v8")
        k.e(f"v_lshl_add_u32 v13, v13, 6, v12")
        k.e(f"v_add_u32 v{VA+db}, {VRING}, v13")
    k(f"""
    s_and_b32 s14, s{S_W}, 1
    s_lshl_b32 s14, s14, 14
    s_lshr_b32 s15, s{S_W}, 1
    s_mul_i32 s15, s15, {131072-32768}
    s_add_u32 s{S_WRING}, s14, s15
    s_add_u32 s{S_WRING}, s{S_WRING}, 32768
    v_lshl_add_u32 v11, v5, 3, v8
    v_lshlrev_b32 v11, 8, v11
    v_lshl_add_u32 v11, v9, 5, v11
    v_and_b32 v13, 1, v10
    v_lshrrev_b32 v14, 1, v10
    v_lshl_or_b32 v13, v13, 1, v14      ; sigma(c)
    v_lshl_add_u32 v11, v13, 3, v11
    v_add_u32 v11, s{S_WRING}, v11
    """)
    for db in range(4):
        k.e(f"v_xor_b32 v13, {db}, v8")
        k.e(f"v_lshl_add_u32 v{WA+db}, v13, 6, v11")
    k(f"""
    v_lshlrev_b32 v15, 4, v0            ; lane*16
    v_add_u32 v{XA}, {XT}, v15
    s_lshr_b32 s14, s{S_IDX}, 1
    s_lshl_b32 s14, s14, 18             ; 32*8192*j
    s_lshl_b32 s15, s{S_G}, 10
    s_add_u32 s14, s14, s15
    """)
    k(f"""
    s_and_b32 s14, s{S_W}, 1
    s_lshl_b32 s14, s14, 14
    s_lshr_b32 s15, s{S_W}, 1
    s_mul_i32 s15, s15, {131072-32768}
    s_add_u32 s{S_WRING}, s14, s15
    s_add_u32 s{S_WRING}, s{S_WRING}, 32768
    """)
    k(f"""
    s_lshl_b32 s14, s{S_G}, 2
    s_add_u32 s14, s14, s{S_W}
    s_lshl_b32 s{S_WOFF}, s14, 8
    """)
    def wdma(t, srd, RS):
        out = [f"s_add_u32 m0, s{S_WRING}, {(t&3)*4096}"]
        for i in range(4):
            if i == 0:
                out.append("s_nop 0")
                out.append(f"buffer_load_dwordx4 v{DW}, s[{srd}:{srd+3}], s{S_WOFF} offen lds")
            else:
                out.append(f"s_add_u32 s{S_WOFF}, s{S_WOFF}, {4*RS-1024}")
                out.append(f"buffer_load_dwordx4 v{DW}, s[{srd}:{srd+3}], s{S_WOFF} offen offset:{1024*i} lds")
        out.append(f"s_add_u32 s{S_WOFF}, s{S_WOFF}, {4*RS+3072}")
        return out
    k(f"""
    s_lshl_b32 s{S_KOFF}, s{S_W}, 12          ; w*4096
    s_mov_b32 s{S_M0K}, s{S_KOFF}
    s_add_u32 s{S_M0V}, s{S_KOFF}, {VRING}
    s_mov_b32 s{S_VOFF}, s{S_KOFF}
    """)
    def kdma(slot):
        out = [f"s_add_u32 m0, s{S_M0K}, {slot*16384}", "s_nop 0"]
        for i in range(4):
            out.append(f"buffer_load_dwordx4 v{DK+i}, s[{SRD_K}:{SRD_K+3}], s{S_KOFF} offen offset:{1024*i} {POL()} lds")
        out.append(f"s_add_u32 s{S_KOFF}, s{S_KOFF}, 16384")
        return out
    def vdma(slot):
        out = [f"s_add_u32 m0, s{S_M0V}, {slot*16384}", "s_nop 0"]
        for i in range(4):
            out.append(f"buffer_load_dwordx4 v{DV}, s[{SRD_V}:{SRD_V+3}], s{S_VOFF} offen offset:{1024*i} {POL()} lds")
        out.append(f"s_add_u32 s{S_VOFF}, s{S_VOFF}, 16384")
        return out
    for ins in kdma(0) + kdma(1): k.e(ins)
    for t in range(4):
        for ins in wdma(t, SRD_WQ, 8192): k.e(ins)
    k(f"""
    s_lshr_b32 s14, s{S_IDX}, 1
    s_lshl_b32 s14, s14, 18
    s_lshl_b32 s15, s{S_G}, 10
    s_add_u32 s14, s14, s15
    buffer_load_dword v246, v250, s[{SRD_WQ}:{SRD_WQ+3}], s14 offen
    s_add_u32 s14, s14, {16*8192}
    buffer_load_dword v247, v250, s[{SRD_WQ}:{SRD_WQ+3}], s14 offen
    """)
    k.e(f"s_waitcnt vmcnt({16 + 26})")
    h_phase(k)
    local_ln(k)
    k.e("s_waitcnt vmcnt(20) lgkmcnt(0)")
    k.e("s_barrier")
    stamp()
    late = [f"v_mov_b32 v{UFL}, 0", f"buffer_load_dword v{UFL}, v{UFL}, s[{DBG_SRD}:{DBG_SRD+3}], 0 offen sc1"]
    gen_proj(k, "q", SRD_WQ, 8192, True, True, late)
    stamp()
    k(f"""
    s_waitcnt vmcnt(0) lgkmcnt(0)
    s_barrier
    """)
    for ins in vdma(0) + kdma(2) + vdma(1): k.e(ins)
    k(f"""
    s_cmp_lg_u32 s{S_W}, 0
    s_cbranch_scc1 L_hsig_done
    v_readfirstlane_b32 s14, v{UFL}
    s_cmp_ge_u32 s14, 48
    s_cbranch_scc1 L_rdy_ok
    s_mov_b32 s{S_FLG}, {POLL_MAX}
    v_mov_b32 v1, 0
    L_rdy_poll:
    buffer_load_dword v4, v1, s[{DBG_SRD}:{DBG_SRD+3}], 0 offen sc1
    s_waitcnt vmcnt(0)
    v_readfirstlane_b32 s14, v4
    s_cmp_ge_u32 s14, 48
    s_cbranch_scc1 L_rdy_ok
    s_sleep 8
    s_sub_u32 s{S_FLG}, s{S_FLG}, 1
    s_cmp_lg_u32 s{S_FLG}, 0
    s_cbranch_scc1 L_rdy_poll
    L_rdy_ok:
    s_lshl_b32 s14, s{S_XCD}, 8
    s_add_u32 s14, s14, {HCNT_OFF}
    v_mov_b32 v1, 0
    v_mov_b32 v4, 1
    v_cmp_eq_u32 vcc, 0, v0
    s_and_saveexec_b64 s[12:13], vcc
    buffer_atomic_add v4, v1, s[{SRD_WS}:{SRD_WS+3}], s14 offen
    s_mov_b64 exec, s[12:13]
    L_hsig_done:
    """)
    k.e(f"s_load_dwordx2 s[8:9], s[0:1], {KA_W2}")
    k(f"""
    s_lshl_b32 s14, s{S_W}, 6
    v_add_u32 v1, s14, v0                       ; tid
    v_lshrrev_b32 v2, 1, v1
    v_and_b32 v3, 1, v1
    v_lshlrev_b32 v4, 12, v2
    v_lshl_add_u32 v253, v3, 6, v4
    s_movk_i32 s14, 3584
    v_mul_lo_u32 v2, v2, s14
    v_lshl_add_u32 v250, v3, 6, v2
    s_waitcnt lgkmcnt(0)
    """)
    srd(k, SRD_WQ, 8, 9, 1792 * 4096)
    k.e(f"s_mov_b32 s14, {f2h(cscale)}")
    k.e(f"s_mov_b32 s15, {f2h(cscale)}")
    k.e("s_nop 7")
    for db in range(4):
        for qb in range(2):
            a = PACC + (db * 2 + qb) * 16
            for r in range(0, 16, 2):
                k.e(f"v_pk_mul_f32 v[{a+r}:{a+r+1}], v[{a+r}:{a+r+1}], s[14:15]")
            for r in range(0, 16, 2):
                q = QF + qb * 32 + (2 * db + (r >> 3)) * 4 + ((r & 7) >> 1)
                k.e(f"v_cvt_pk_bf16_f32 v{q}, v{a+r}, v{a+r+1}")
    g1_setup_v(k)
    for t in range(4):
        for ins in k_read(0, t, t): k.e(ins)
    for t in range(8):
        k.e(f"s_waitcnt lgkmcnt({min(3, 7-t)})")
        for qb in range(2):
            d = Sbuf(0, qb)
            k.e(mfma(d, KF + (t & 3) * 4, QF + qb * 32 + t * 4, "0" if t == 0 else d))
        if t + 4 < 8:
            for ins in k_read(0, t + 4, t + 4): k.e(ins)
    for i in range(128):
        k.e(f"v_accvgpr_write_b32 a{OA+i}, 0")
    k.e(f"v_mov_b32 v{LL}, 0")
    k.e(f"v_mov_b32 v{LL+1}, 0")
    k.e(f"v_mov_b32 v{LS+2}, 0")
    k.e(f"v_mov_b32 v{LS+3}, 0")
    k.e(f"s_mov_b32 s{S_THR}, {f2h(2.0**THR_LOG2)}")
    for qb in range(2):
        S = Sbuf(0, qb)
        t, t2 = T0, T0 + 1
        k.e(f"v_max3_f32 v{t}, v{S}, v{S+1}, v{S+2}")
        for r in range(3, 15, 2):
            k.e(f"v_max3_f32 v{t}, v{t}, v{S+r}, v{S+r+1}")
        k.e(f"v_max_f32 v{t}, v{t}, v{S+15}")
        k.e(f"v_mov_b32 v{t2}, v{t}")
        k.e("s_nop 1")
        k.e(f"v_permlane32_swap_b32 v{t2}, v{t}")
        k.e(f"v_max_f32 v{t}, v{t}, v{t2}")
        for r in range(16):
            k.e(f"v_sub_f32 v{S+r}, v{S+r}, v{t}")
            k.e(f"v_sub_f32 v{NEGM+16*qb+r}, 0, v{t}")
    if M.SCHED2:
        k.e(f"v_exp_f32 v{ET}, v{Sbuf(0,0)}")
        k.e(f"v_exp_f32 v{ET+1}, v{Sbuf(0,0)+1}")
    k.e("s_waitcnt vmcnt(8)")
    k.e("s_barrier")
    stamp()
    for ins in k_read(1, 0, 0) + k_read(1, 1, 1): k.e(ins)
    rare_sites = []
    def dma_plan(lst):
        return {8: [lst[0]], 11: [lst[2]], 15: [lst[3]], 19: [lst[4]], 23: [lst[5]], 27: [lst[6]]}
    def step(u, rid, **kw):
        S = dict(do_qk=True, do_pv=True, qk_next=True, pv_next=True, dma=None, pre=None, prev7=3)
        S.update(kw)
        lk = Look(u, S['do_qk'], S['do_pv'], S['qk_next'], S['pv_next'])
        lk.prev7 = S['prev7']
        gen_step(k, u, S['do_qk'], S['do_pv'], True, lk, S['dma'], S['pre'], rid)
        rare_sites.append((rid, u & 1))
    d0 = dma_plan(kdma(3))
    d0[28] = [f"s_lshr_b32 s14, s{S_IDX}, 1", f"s_lshl_b32 s14, s14, 15", f"s_lshl_b32 s15, s{S_G}, 19", "s_add_u32 s14, s14, s15",
              f"buffer_load_dword v248, v251, s[{SRD_WO}:{SRD_WO+3}], s14 offen"]
    d0[29] = ["s_add_u32 s14, s14, 16384", f"buffer_load_dword v249, v251, s[{SRD_WO}:{SRD_WO+3}], s14 offen"]
    step(0, "s0", do_pv=False, dma=d0, prev7=1)

    k.e(f"s_mov_b32 s{S_CNT}, 7")
    k.lab("L_main")
    for uu in range(1, 9):
        j = uu >> 1
        pre = None
        if uu & 1 == 0:
            pre = ["s_waitcnt vmcnt(8)", "s_barrier"]
            dm = dma_plan(kdma((j + 3) & 3))
        else:
            dm = dma_plan(vdma((j + 2) & 3))
        step(uu, f"m{uu}", dma=dm, pre=pre)
    k.e(f"s_sub_u32 s{S_CNT}, s{S_CNT}, 1")
    k.e(f"s_cmp_lg_u32 s{S_CNT}, 0")
    k.e(f"s_cbranch_scc1 L_main")
    def ta(i):
        return [f"s_and_b32 s14, s{S_IDX}, 3", f"s_mul_i32 s14, s14, {512*3584}", f"s_lshl_b32 s15, s{S_MT}, 7",
                f"s_add_u32 s14, s14, s15", f"s_add_u32 s14, s14, {i*128*3584}",
                f"buffer_load_dword v{246+(i&1)}, v250, s[{SRD_W1}:{SRD_W1+3}], s14 offen"]
    def tb(i):
        return [f"s_lshl_b32 s14, s{S_NT}, 18", f"s_lshr_b32 s15, s{S_IDX}, 2", f"s_and_b32 s15, s15, 3", f"s_lshl_b32 s15, s15, 16",
                f"s_add_u32 s14, s14, s15", f"s_add_u32 s14, s14, {HF_OFF + i*16384}",
                f"buffer_load_dword v{248+(i&1)}, v251, s[{SRD_WS}:{SRD_WS+3}], s14 offen sc1"]
    def merge(d, g, lst):
        d = dict(d) if d else {}
        d[g] = d.get(g, []) + lst
        return d
    k(f"""
    v_and_b32 v{UFL}, 7, v0
    v_lshlrev_b32 v{UFL}, 8, v{UFL}
    s_mov_b32 s14, {HCNT_OFF}
    buffer_load_dword v{UFL}, v{UFL}, s[{SRD_WS}:{SRD_WS+3}], s14 offen sc1
    """)
    step(57, "t57", dma=merge(dma_plan(vdma((28 + 2) & 3)), 29, ta(0)))
    step(58, "t58", pre=["s_waitcnt vmcnt(5)", "s_barrier", f"v_cmp_le_u32 vcc, 32, v{UFL}", "s_cmp_eq_u64 vcc, -1", "s_cbranch_scc1 L_hok", "UPOLL", "L_hok:"],
         dma=merge(merge(merge(merge(None, 3, ta(1)), 11, tb(0)), 19, ta(2)), 27, tb(1)))
    step(59, "t59", dma=merge(merge(merge(dma_plan(vdma((29 + 2) & 3)), 28, ta(3)), 29, tb(2)), 30, tb(3)))
    vmg = Ctr(63)
    def spread(lst, gaps_):
        d = {}
        per = (len(lst) + len(gaps_) - 1) // len(gaps_)
        for j, g in enumerate(gaps_):
            d[g] = lst[j * per:(j + 1) * per]
        return d
    ss = g1_setup_s()
    step(60, "t60", pre=["s_waitcnt vmcnt(11)", "s_barrier"])
    step(61, "t61", dma={5: ss[0], 13: ss[1], 21: ss[2], 29: ss[3]})
    la = []
    for ks in range(G1PF): la += g1_A(ks, vmg)
    step(62, "t62", pre=["s_waitcnt vmcnt(3)", "s_barrier"], qk_next=False, dma=spread(la, [1, 3, 5, 7, 9, 11, 13, 15, 17, 19, 21, 23, 25, 27]))
    lb = []
    for ks in range(G1PF): lb += g1_B(ks, vmg)
    lb += g1_bias_list(vmg)
    step(63, "t63", do_qk=False, qk_next=False, prev7=2, dma=spread(lb, [0, 1, 4, 5, 8, 9, 12, 13, 16, 17, 20, 21, 24, 25, 28, 29]))
    p = 63 & 1
    k.e(f"v_add_f32 v{LL}, v{LL}, v{LS+2*p}")
    k.e(f"v_add_f32 v{LL+1}, v{LL+1}, v{LS+2*p+1}")
    for i in range(8):
        nxt = v_read(63, i + 2, i + 2) if i + 2 < 8 else []
        prevn = 2 if (i == 0 or i + 1 < 8) else 0
        k.e(f"s_waitcnt lgkmcnt({prevn})")
        db, ks = i >> 1, i & 1
        for qb in range(2):
            d = OA + (db * 2 + qb) * 16
            k.e(mfma(d, VF + (i & 3) * 4, Pbuf(p, qb, ks), d, dfile='a'))
            if qb == 0:
                for ins in nxt: k.e(ins)
    k.e("s_waitcnt lgkmcnt(0)")
    stamp()
    k(f"""
    s_waitcnt lgkmcnt(0)
    s_barrier
    """)
    def wo_ring():
        k(f"""
        s_lshl_b32 s{S_WRING}, s{S_W}, 14
        v_lshrrev_b32 v1, 4, v0
        v_mul_u32_u24 v1, {1024-256}, v1
        v_add_u32 v{DW}, v{DV}, v1
        s_lshl_b32 s{S_WOFF}, s{S_G}, 19
        s_lshl_b32 s14, s{S_W}, 8
        s_add_u32 s{S_WOFF}, s{S_WOFF}, s14
        """)
        for t in range(4):
            for ins in wdma(t, SRD_WO, 1024): k.e(ins)
    l_final(k)
    k.e(f"s_cmp_ge_u32 s{S_IDX}, 28")
    k.e("s_cbranch_scc1 L_no_g1")
    g1_phase(k, vmg, stamp, wo_ring)
    g1_finish(k)
    k.e("s_branch L_g1_done")
    k.lab("L_no_g1")
    k.e("s_waitcnt vmcnt(0)")
    k.e("s_barrier")
    wo_ring()
    for g in onorm_groups():
        for ins in g: k.e(ins)
    nst[0] -= 2
    stamp(); stamp()
    k.lab("L_g1_done")
    k.e(f"s_sub_u32 s14, s{S_WRING}, {VRING}")
    for db in range(4):
        k.e(f"v_add_u32 v{WA+db}, s14, v{VA+db}")
    k("""
    s_waitcnt lgkmcnt(0)
    s_barrier
    """)
    stamp()
    def usig():
        k.e("s_barrier")
        k.e(f"s_cmp_ge_u32 s{S_IDX}, 28")
        k.e("s_cbranch_scc1 L_no_usig")
        k.e(f"s_lshl_b32 s14, s{S_NT}, 8")
        k.e(f"s_add_u32 s14, s14, {UCNT_OFF}")
        k.e(f"s_mov_b32 s15, s{S_WRING}")
        signal(k, "u", 14)
        k.e(f"s_mov_b32 s{S_WRING}, s15")
        k.lab("L_no_usig")
    def tw(i):
        return [f"s_and_b32 s14, s{S_IDX}, 3", f"s_mul_i32 s14, s14, {448*4096}", f"s_lshl_b32 s15, s{S_MT2}, 7",
                f"s_add_u32 s14, s14, s15", f"s_add_u32 s14, s14, {i*128*4096}",
                f"buffer_load_dword v{246+(i&1)}, v253, s[{SRD_WQ}:{SRD_WQ+3}], s14 offen"]
    ufl = [f"s_lshl_b32 s14, s{S_NT2}, 8", f"s_add_u32 s14, s14, {UCNT_OFF}", f"v_mov_b32 v{UFL}, 0",
           f"buffer_load_dword v{UFL}, v{UFL}, s[{SRD_DBG}:{SRD_DBG+3}], s14 offen sc1"]
    gen_proj(k, "o", SRD_WO, 1024, False, True, ufl + tw(0) + tw(1) + tw(2) + tw(3), after_body0=usig)
    stamp()
    vm1 = Ctr(63)
    k.e("s_waitcnt vmcnt(4) lgkmcnt(0)")
    k.e(f"v_readfirstlane_b32 s14, v{UFL}")
    k.e("s_cmp_ge_u32 s14, 28")
    k.e("s_cbranch_scc1 L_u_nopoll")
    k.e(f"s_cmp_lg_u32 s{S_W}, 0")
    k.e("s_cbranch_scc1 L_u_nopoll")
    k.e(f"s_lshl_b32 s14, s{S_NT2}, 8")
    k.e(f"s_add_u32 s14, s14, {UCNT_OFF}")
    poll(k, "u", 14, 28)
    k.lab("L_u_nopoll")
    k.e("s_barrier")
    g2_setup(k, vm1)
    k(f"""
    v_lshlrev_b32 v1, 4, v0
    s_lshl_b32 s14, s{S_RB}, 16          ; rb*65536
    s_lshl_b32 s15, s{S_W}, 14           ; w*16384
    s_add_u32 s14, s14, s15
    """)
    for cb in range(4):
        for qb in range(2):
            a = PACC + (cb * 2 + qb) * 16
            o = a
            for r in range(0, 16, 2):
                k.e(f"v_cvt_pk_bf16_f32 v{o+r//2}, v{a+r}, v{a+r+1}")
            k.e("s_nop 1")
            for pr in range(2):
                k.e(f"v_permlane32_swap_b32 v{o+4*pr}, v{o+4*pr+2}")
                k.e(f"v_permlane32_swap_b32 v{o+4*pr+1}, v{o+4*pr+3}")
            for pr in range(2):
                idx = cb * 4 + qb * 2 + pr
                k.e(f"buffer_store_dwordx4 v[{o+4*pr}:{o+4*pr+3}], v1, s[{SRD_SL}:{SRD_SL+3}], s14 offen offset:{(idx&3)*1024} sc1")
                vm1.issue(("ST", 0))
                if (idx & 3) == 3: k.e("s_add_u32 s14, s14, 4096")
    stamp()
    g2_main(k, vm1, stamp)
    if prof == 'tl':
        tl_end(k, prof, kidx)
    if prof is True:
        k.e("s_waitcnt vmcnt(0)")
        stamp()
        k.e(f"s_load_dwordx2 s[12:13], s[0:1], {KA_WS}")
        k.e("s_waitcnt lgkmcnt(0)")
        srd_off(k, 4, 12, 13, 64 << 20, 1 << 20)
        k.e(f"s_lshl_b32 s14, s2, 2")
        k.e(f"s_add_u32 s14, s14, s{S_W}")
        k.e(f"s_lshl_b32 s14, s14, 7")
        for i in range(nst[0]):
            k.e(f"v_mov_b32 v2, s{64+2*i}")
            k.e(f"v_mov_b32 v3, s{65+2*i}")
            k.e(f"v_mov_b32 v1, {8*i}")
            k.e(f"buffer_store_dwordx2 v[2:3], v1, s[4:7], s14 offen")
        tl_end(k, prof, kidx)
    k.lab("L_at_done")
    k.e("s_endpgm")
    for rid, p in rare_sites:
        k.lab(f"L_rare_{rid}")
        k.e(f"s_call_b64 s[{S_RET}:{S_RET+1}], L_raresub_{p}")
        k.e(f"s_branch L_back_{rid}")
    gen_rare(k, 0)
    gen_rare(k, 1)
    return k.text(), kernel_desc(name, 512, 102, 256), f"; @launch kernel={name} grid=(256,1,1) block=(256,1,1) lds=163840"
```

```python
from common import *
import k_main as M
from k_main import *
from k_ln import ln_rows
import math

S_MT2, S_NT2 = 10, 11
S_IDX, S_XCD = 32, 33
HCNT_OFF = CNT_OFF + 16384
DBG_SRD = 4
S_FLG = 51
SRD_DBG = 60
UCNT_OFF = CNT_OFF + 8192
POLL_MAX = 1 << 20

def poll(k, tag, off_sgpr, target):
    k(f"""
    s_mov_b32 s{S_FLG}, {POLL_MAX}
    v_mov_b32 v1, 0
    L_poll_{tag}:
    buffer_load_dword v4, v1, s[{SRD_DBG}:{SRD_DBG+3}], s{off_sgpr} offen sc1
    s_waitcnt vmcnt(0)
    v_readfirstlane_b32 s3, v4
    s_cmp_ge_u32 s3, {target}
    s_cbranch_scc1 L_polld_{tag}
    s_sleep 16
    s_sub_u32 s{S_FLG}, s{S_FLG}, 1
    s_cmp_lg_u32 s{S_FLG}, 0
    s_cbranch_scc1 L_poll_{tag}
    L_polld_{tag}:
    """)

def signal(k, tag, off_sgpr):
    k(f"""
    s_cmp_lg_u32 s{S_W}, 0
    s_cbranch_scc1 L_sig_{tag}
    v_mov_b32 v1, 0
    v_mov_b32 v4, 1
    v_cmp_eq_u32 vcc, 0, v0
    s_and_saveexec_b64 s[48:49], vcc
    buffer_atomic_add v4, v1, s[{SRD_DBG}:{SRD_DBG+3}], s{off_sgpr} offen
    s_mov_b64 exec, s[48:49]
    L_sig_{tag}:
    """)


def zip_streams(k, a, b):
    A = [l.strip() for l in a]; B = [l.strip() for l in b]
    assert len(A) == len(B)
    for x, y in zip(A, B):
        if x.startswith("s_nop"):
            if x == "s_nop 1": k.e("s_nop 0")
            continue
        k.e(x); k.e(y)

def local_ln(k):
    SUMA, SQA = 128, 130
    T = 132
    for i in range(16):
        k.e(f"s_waitcnt vmcnt({XYOUNG + 15 - i})")
        for j in range(4):
            src = 64 + 4 * i + j
            t = T + 2 * j
            k.e(f"v_lshlrev_b32 v{t}, 16, v{src}")
            k.e(f"v_and_b32 v{t+1}, 0xffff0000, v{src}")
        for j in range(4):
            t = T + 2 * j
            if i == 0 and j == 0:
                k.e(f"v_pk_mul_f32 v[{SQA}:{SQA+1}], v[{t}:{t+1}], v[{t}:{t+1}]")
                k.e(f"v_mov_b32 v{SUMA}, v{t}")
                k.e(f"v_mov_b32 v{SUMA+1}, v{t+1}")
            else:
                k.e(f"v_pk_add_f32 v[{SUMA}:{SUMA+1}], v[{SUMA}:{SUMA+1}], v[{t}:{t+1}]")
                k.e(f"v_pk_fma_f32 v[{SQA}:{SQA+1}], v[{t}:{t+1}], v[{t}:{t+1}], v[{SQA}:{SQA+1}]")
    S, Q, t1, t2 = 140, 141, 142, 143
    k.e(f"v_add_f32 v{S}, v{SUMA}, v{SUMA+1}")
    k.e(f"v_add_f32 v{Q}, v{SQA}, v{SQA+1}")
    for sw in ("v_permlane16_swap_b32", "v_permlane32_swap_b32"):
        k.e(f"v_mov_b32 v{t1}, v{S}")
        k.e(f"v_mov_b32 v{t2}, v{Q}")
        k.e("s_nop 1")
        k.e(f"{sw} v{t1}, v{S}")
        k.e(f"{sw} v{t2}, v{Q}")
        k.e(f"v_add_f32 v{S}, v{S}, v{t1}")
        k.e(f"v_add_f32 v{Q}, v{Q}, v{t2}")
    MB, R = 144, 146
    k(f"""
    v_mul_f32 v{S}, 0x3b000000, v{S}           ; mean
    v_mul_f32 v{Q}, 0x3b000000, v{Q}           ; E[x^2]
    v_fma_f32 v{Q}, -v{S}, v{S}, v{Q}          ; var
    v_max_f32 v{Q}, 0, v{Q}
    v_cvt_pk_bf16_f32 v{MB}, v{S}, v{S}
    v_lshlrev_b32 v{MB}, 16, v{MB}
    v_mov_b32 v{MB+1}, v{MB}
    v_cvt_pk_bf16_f32 v{Q}, v{Q}, v{Q}
    v_lshlrev_b32 v{Q}, 16, v{Q}
    v_add_f32 v{Q}, 0x3727c5ac, v{Q}
    v_cvt_pk_bf16_f32 v{Q}, v{Q}, v{Q}
    v_lshlrev_b32 v{Q}, 16, v{Q}
    v_sqrt_f32 v{Q}, v{Q}
    s_nop 0
    v_cvt_pk_bf16_f32 v{Q}, v{Q}, v{Q}
    v_lshlrev_b32 v{Q}, 16, v{Q}
    v_rcp_f32 v{R}, v{Q}
    s_nop 0
    v_fma_f32 v{t1}, -v{Q}, v{R}, 1.0
    v_fma_f32 v{R}, v{t1}, v{R}, v{R}
    v_mov_b32 v{R+1}, v{R}
    v_lshrrev_b32 v1, 4, v0                     ; part
    v_and_b32 v2, 15, v0                        ; r
    v_lshrrev_b32 v3, 1, v1
    v_lshlrev_b32 v3, 11, v3                    ; (part>>1)*2048
    v_and_b32 v4, 1, v1
    v_lshl_add_u32 v3, v4, 9, v3                ; + (part&1)*512
    v_lshl_add_u32 v3, v2, 4, v3                ; + r*16
    s_lshr_b32 s3, s{S_W}, 1
    s_lshl_b32 s3, s3, 10                       ; qb*1024
    s_and_b32 s14, s{S_W}, 1
    s_lshl_b32 s14, s14, 8                      ; 16*(w&1)*16
    s_add_u32 s3, s3, s14
    s_add_u32 s3, s3, {XT}
    v_add_u32 v3, s3, v3
    """)
    k.e(f"v_mul_f32 v{MB}, v{MB}, v{R}")
    k.e(f"v_sub_f32 v{MB}, 0, v{MB}")
    k.e(f"v_mov_b32 v{MB+1}, v{MB}")
    for i in range(16):
        O = 148 + (i & 1) * 4
        for j in range(4):
            src = 64 + 4 * i + j
            t = T + 2 * j
            k.e(f"v_lshlrev_b32 v{t}, 16, v{src}")
            k.e(f"v_and_b32 v{t+1}, 0xffff0000, v{src}")
        for j in range(4):
            t = T + 2 * j
            k.e(f"v_pk_fma_f32 v[{t}:{t+1}], v[{t}:{t+1}], v[{R}:{R+1}], v[{MB}:{MB+1}]")
        for j in range(4):
            t = T + 2 * j
            k.e(f"v_cvt_pk_bf16_f32 v{O+j}, v{t}, v{t+1}")
        k.e(f"ds_write_b128 v3, v[{O}:{O+3}] offset:{i*4096}")

HROW = 208
def h_read(k):
    k(f"""
    s_lshl_b32 s3, s{S_G}, 3
    s_lshl_b32 s14, s{S_W}, 1
    s_add_u32 s3, s3, s14                       ; row_local
    s_lshr_b32 s14, s3, 5
    s_lshl_b32 s14, s14, 10                     ; qb*1024
    s_and_b32 s3, s3, 31
    s_lshl_b32 s3, s3, 4                        ; q*16
    s_add_u32 s3, s3, s14
    s_add_u32 s3, s3, {XT}
    v_lshrrev_b32 v1, 1, v0
    v_lshlrev_b32 v1, 11, v1
    v_and_b32 v2, 1, v0
    v_lshl_add_u32 v1, v2, 9, v1
    v_add_u32 v1, s3, v1
    ds_read_b128 v[{HROW}:{HROW+3}], v1
    ds_read_b128 v[{HROW+4}:{HROW+7}], v1 offset:16
    """)

H_LDS = 131072
def h_phase(k):
    streams = []
    for r in range(2):
        kk = Em()
        base = HB + r * 20
        X = list(range(base, base + 8))
        src = HROW + 4 * r
        for i in range(4):
            kk.e(f"v_lshlrev_b32 v{X[2*i]}, 16, v{src+i}")
            kk.e(f"v_and_b32 v{X[2*i+1]}, 0xffff0000, v{src+i}")
        ln_rows(kk, X, base + 8, base + 12)
        kk.e(f"ds_write_b128 v{HB+40+r}, v[{base+8}:{base+11}]")
        streams.append(kk.L)
    k(f"""
    v_lshlrev_b32 v{HB+40}, 4, v0
    s_lshl_b32 s3, s{S_W}, 11
    s_add_u32 s3, s3, {H_LDS}
    v_add_u32 v{HB+40}, s3, v{HB+40}
    v_add_u32 v{HB+41}, 1024, v{HB+40}
    """)
    zip_streams(k, streams[0], streams[1])
    k(f"""
    s_lshl_b32 s3, s{S_W}, 6
    v_add_u32 v{HB+42}, s3, v0                 ; tid
    v_lshlrev_b32 v{HB+43}, 1, v{HB+42}
    v_add_u32 v{HB+43}, {H_LDS}, v{HB+43}
    s_waitcnt lgkmcnt(0)
    s_barrier
    """)
    for p in range(2):
        for r in range(8):
            k.e(f"ds_read_u16 v{HB+p*8+r}, v{HB+43} offset:{r*1024 + p*512}")
    k(f"""
    s_lshl_b32 s13, s{S_RB}, 2
    s_lshr_b32 s14, s{S_G}, 1
    s_add_u32 s13, s13, s14
    s_lshl_b32 s13, s13, 10
    s_and_b32 s14, s{S_G}, 1
    s_lshl_b32 s14, s14, 9
    s_add_u32 s13, s13, s14
    s_add_u32 s13, s13, {HF_OFF}
    v_lshrrev_b32 v{HB+44}, 5, v{HB+42}
    v_lshlrev_b32 v{HB+44}, 17, v{HB+44}
    v_and_b32 v{HB+45}, 31, v{HB+42}
    v_lshl_add_u32 v{HB+44}, v{HB+45}, 4, v{HB+44}
    s_add_u32 s15, s13, {8*131072}
    s_waitcnt lgkmcnt(0)
    """)
    for p in range(2):
        for j in range(4):
            k.e(f"v_lshl_or_b32 v{HB+20+p*4+j}, v{HB+p*8+2*j+1}, 16, v{HB+p*8+2*j}")
    k.e(f"buffer_store_dwordx4 v[{HB+20}:{HB+23}], v{HB+44}, s[{SRD_WS}:{SRD_WS+3}], s13 offen sc1")
    k.e(f"buffer_store_dwordx4 v[{HB+24}:{HB+27}], v{HB+44}, s[{SRD_WS}:{SRD_WS+3}], s15 offen sc1")

HB = 16
XYOUNG = 26

def poll8(k, tag, off, target):
    k(f"""
    s_mov_b32 s{S_FLG}, {POLL_MAX}
    v_and_b32 v1, 7, v0
    v_lshlrev_b32 v1, 8, v1
    s_mov_b32 s3, {off}
    L_poll8_{tag}:
    buffer_load_dword v4, v1, s[{SRD_WS}:{SRD_WS+3}], s3 offen sc1
    s_waitcnt vmcnt(0)
    v_cmp_le_u32 vcc, {target}, v4
    s_cmp_eq_u64 vcc, -1
    s_cbranch_scc1 L_poll8d_{tag}
    s_sleep 16
    s_sub_u32 s{S_FLG}, s{S_FLG}, 1
    s_cmp_lg_u32 s{S_FLG}, 0
    s_cbranch_scc1 L_poll8_{tag}
    L_poll8d_{tag}:
    """)

G1PF, G1NS, G1NB = 7, 8, 8
def g1_setup_v(k):
    RS = 3584
    k(f"""
    v_lshrrev_b32 v3, 3, v0
    v_and_b32 v4, 7, v0
    v_lshrrev_b32 v5, 1, v3
    v_and_b32 v5, 1, v5
    v_lshlrev_b32 v5, 2, v5
    v_xor_b32 v4, v4, v5
    v_mul_u32_u24 v3, {RS}, v3
    v_lshl_add_u32 v10, v4, 4, v3
    v_lshlrev_b32 v11, 4, v0
    v_lshrrev_b32 v3, 5, v0
    v_bfe_u32 v4, v0, 4, 1
    v_bfe_u32 v5, v0, 2, 2
    v_and_b32 v6, 3, v0
    v_lshlrev_b32 v7, 3, v3
    v_add_u32 v7, v7, v5
    v_lshlrev_b32 v7, 7, v7
    v_lshl_add_u32 v7, v4, 5, v7
    v_lshl_add_u32 v7, v6, 3, v7
    s_lshl_b32 s3, s{S_W}, 14
    s_cmp_eq_u32 s{S_W}, 3
    s_cselect_b32 s3, 131072, s3
    v_add_u32 v7, s3, v7
    v_lshrrev_b32 v8, 1, v5
    v_lshlrev_b32 v9, 6, v8
    v_add_u32 v12, v7, v9
    v_xor_b32 v9, 64, v9
    v_add_u32 v13, v7, v9
    v_lshlrev_b32 v14, 3, v3
    """)

def g1_setup_s():
    RS, NKS, NKST = 3584, 32, 128
    return [[f"s_lshl_b32 s46, s{S_W}, 14", f"s_cmp_eq_u32 s{S_W}, 3", "s_cselect_b32 s46, 131072, s46"],
            [f"s_mul_i32 s43, s{S_W}, {NKS*16*RS}", f"s_lshl_b32 s3, s{S_MT}, 7", "s_add_u32 s43, s43, s3"],
            [f"s_lshl_b32 s44, s{S_NT}, 1", f"s_mul_i32 s44, s44, {NKST}", f"s_mul_i32 s3, s{S_W}, {NKS}", "s_add_u32 s44, s44, s3"],
            ["s_lshl_b32 s44, s44, 10", f"s_add_u32 s44, s44, {HF_OFF}", f"s_add_u32 s45, s44, {NKST*1024}"]]

def g1_A(ks, vm=None):
    RS = 3584
    out = [f"s_add_u32 m0, s46, {(ks % G1NS)*2048}",
           f"s_add_u32 s47, s43, {8*RS-1024}",
           f"buffer_load_dwordx4 v10, s[{SRD_W1}:{SRD_W1+3}], s43 offen lds",
           f"buffer_load_dwordx4 v10, s[{SRD_W1}:{SRD_W1+3}], s47 offen offset:1024 lds",
           f"s_add_u32 s43, s43, {16*RS}"]
    if vm: vm.issue(("A", ks)); vm.issue(("A", ks))
    return out

def g1_B(ks, vm=None):
    bs = 144 + (ks % G1NB) * 8
    out = [f"buffer_load_dwordx4 v[{bs}:{bs+3}], v11, s[{SRD_WS}:{SRD_WS+3}], s44 offen sc1",
           f"buffer_load_dwordx4 v[{bs+4}:{bs+7}], v11, s[{SRD_WS}:{SRD_WS+3}], s45 offen sc1",
           "s_add_u32 s44, s44, 1024", "s_add_u32 s45, s45, 1024"]
    if vm: vm.issue(("B", ks)); vm.issue(("B", ks))
    return out

def g1_bias_list(vm=None):
    out = [f"s_lshr_b32 s3, s{S_W}, 1", "s_lshl_b32 s3, s3, 6", f"s_lshl_b32 s47, s{S_MT}, 7", "s_add_u32 s3, s3, s47",
           "s_mov_b32 s12, s34", "s_mov_b32 s13, s35", f"s_mov_b32 s14, {1792*2}", "s_mov_b32 s15, 0x00020000"]
    for b in range(4):
        out.append(f"buffer_load_dwordx2 a[{176+2*b}:{177+2*b}], v14, s[12:15], s3 offen offset:{16*b}")
        if vm: vm.issue(("E", 0))
    return out

def onorm_groups():
    groups = []
    for db in range(4):
        for qb in range(2):
            for ks in range(2):
                i = db * 4 + qb * 2 + ks
                tb = 28 + (i & 1) * 16
                g = []
                for r in range(8):
                    g.append(f"v_accvgpr_read_b32 v{tb+r}, a{OA+(db*2+qb)*16+ks*8+r}")
                for r in range(0, 8, 2):
                    g.append(f"v_pk_mul_f32 v[{tb+r}:{tb+r+1}], v[{tb+r}:{tb+r+1}], v[{LLP+2*qb}:{LLP+2*qb+1}]")
                for r in range(0, 8, 2):
                    g.append(f"v_cvt_pk_bf16_f32 v{tb+8+r//2}, v{tb+r}, v{tb+r+1}")
                g.append(f"ds_write_b128 v2, v[{tb+8}:{tb+11}] offset:{(2*db+ks)*2048 + qb*1024}")
                groups.append(g)
    return groups
LLP = 60

def l_final(k):
    for qb in range(2):
        k.e(f"v_mov_b32 v{T0+qb+2}, v{LL+qb}")
    k.e("s_nop 1")
    for qb in range(2):
        k.e(f"v_permlane32_swap_b32 v{T0+qb+2}, v{LL+qb}")
    for qb in range(2):
        k.e(f"v_add_f32 v{LL+qb}, v{LL+qb}, v{T0+qb+2}")
    for qb in range(2):
        k.e(f"v_rcp_f32 v{LLP+2*qb}, v{LL+qb}")
    k(f"""
    s_lshl_b32 s3, s{S_W}, 14
    s_add_u32 s3, s3, {XT}
    v_lshlrev_b32 v15, 4, v0
    v_add_u32 v2, s3, v15
    v_add_u32 v{XA}, {XT}, v15
    v_mov_b32 v{LLP+1}, v{LLP}
    v_mov_b32 v{LLP+3}, v{LLP+2}
    """)

def g1_phase(k, vm, stamp, after_exchange):
    NKS = 32
    PF, NS, NB = G1PF, G1NS, G1NB
    ACC, AF, BF = 64, 128, 144
    def tr(ks):
        slot = ks % NS
        out = []
        for mb in range(2):
            for bp in range(2):
                d = AF + (ks & 1) * 8 + mb * 4 + bp * 2
                out.append(f"ds_read_b64_tr_b16 v[{d}:{d+1}], v{12+mb} offset:{slot*2048 + bp*512}")
        return out
    n = vm.need(lambda t: t == ("A", 0))
    k.e(f"s_waitcnt vmcnt({n})")
    stamp()
    for ins in tr(0): k.e(ins)
    ng = onorm_groups()
    flat = [x for g in ng for x in g]
    per = (len(flat) + NKS - 1) // NKS
    for ks in range(NKS):
        n = vm.need(lambda t: (t[0] == "A" and t[1] <= ks + 1) or (t[0] == "B" and t[1] <= ks))
        k.e("s_waitcnt lgkmcnt(0)" if n is None else f"s_waitcnt vmcnt({n}) lgkmcnt(0)")
        bs = BF + (ks % NB) * 8
        fill = tr(ks + 1) if ks + 1 < NKS else []
        extra = flat[ks * per:(ks + 1) * per]
        mf = []
        for mb in range(2):
            for nb in range(2):
                d = ACC + (mb * 2 + nb) * 16
                mf.append(mfma(d, AF + (ks & 1) * 8 + mb * 4, bs + nb * 4, "0" if ks == 0 else d, dfile='v', afile='v', bfile='v'))
        k.e(mf[0])
        for ins in fill[:2]: k.e(ins)
        for ins in extra[:3]: k.e(ins)
        k.e(mf[1])
        for ins in fill[2:]: k.e(ins)
        for ins in extra[3:6]: k.e(ins)
        k.e(mf[2])
        for ins in extra[6:]: k.e(ins)
        k.e(mf[3])
        if ks + PF < NKS:
            for ins in g1_B(ks + PF, vm) + g1_A(ks + PF, vm): k.e(ins)
    stamp()
    k.e("s_nop 7")
    k.e("s_barrier")
    k(f"""
    s_lshl_b32 s3, s{S_W}, 14
    v_add_u32 v3, s3, v11
    s_nop 4
    """)
    for blk in range(4):
        for q in range(4):
            r = ACC + blk * 16 + q * 4
            k.e(f"ds_write_b128 v3, v[{r}:{r+3}] offset:{blk*4096 + q*1024}")
    k(f"""
    s_lshl_b32 s3, s{S_W}, 12
    v_add_u32 v3, s3, v11
    s_waitcnt lgkmcnt(0)
    s_barrier
    """)
    for src in range(4):
        for q in range(4):
            r = ACC + src * 16 + q * 4
            k.e(f"ds_read_b128 v[{r}:{r+3}], v3 offset:{src*16384 + q*1024}")
    n = vm.need(lambda t: t[0] == "E")
    if n is not None: k.e(f"s_waitcnt vmcnt({n})")
    for j in range(8):
        k.e(f"v_accvgpr_read_b32 v{20+j}, a{176+j}")
    for b in range(4):
        k.e(f"v_lshlrev_b32 v{32+4*b}, 16, v{20+2*b}")
        k.e(f"v_and_b32 v{33+4*b}, 0xffff0000, v{20+2*b}")
        k.e(f"v_lshlrev_b32 v{34+4*b}, 16, v{21+2*b}")
        k.e(f"v_and_b32 v{35+4*b}, 0xffff0000, v{21+2*b}")
    k.e("s_waitcnt lgkmcnt(0)")
    k.e("s_barrier")
    after_exchange()

def g1_finish(k):
    Y = 64
    c1 = -2.0 * 0.7978845608028654 * LOG2E
    k.e(f"s_mov_b32 s12, {f2h(c1)}")
    k.e(f"s_mov_b32 s13, {f2h(c1*0.044715)}")
    k.e(f"v_mov_b32 v48, s12")
    for r in range(0, 16, 2):
        k.e(f"v_pk_add_f32 v[{Y+r}:{Y+r+1}], v[{Y+r}:{Y+r+1}], v[{Y+16+r}:{Y+17+r}]")
        k.e(f"v_pk_add_f32 v[{Y+32+r}:{Y+33+r}], v[{Y+32+r}:{Y+33+r}], v[{Y+48+r}:{Y+49+r}]")
    for r in range(0, 16, 2):
        k.e(f"v_pk_add_f32 v[{Y+r}:{Y+r+1}], v[{Y+r}:{Y+r+1}], v[{Y+32+r}:{Y+33+r}]")
    for r in range(0, 16, 2):
        k.e(f"v_pk_add_f32 v[{Y+r}:{Y+r+1}], v[{Y+r}:{Y+r+1}], v[{32+r}:{33+r}]")
    T = Y + 16
    for r in range(0, 16, 2):
        k.e(f"v_pk_mul_f32 v[{T+r}:{T+r+1}], v[{Y+r}:{Y+r+1}], v[{Y+r}:{Y+r+1}]")
    for r in range(16):
        k.e(f"v_fma_f32 v{T+r}, v{T+r}, s13, v48")
    for r in range(0, 16, 2):
        k.e(f"v_pk_mul_f32 v[{T+r}:{T+r+1}], v[{T+r}:{T+r+1}], v[{Y+r}:{Y+r+1}]")
    for r in range(16):
        k.e(f"v_exp_f32 v{T+r}, v{T+r}")
    for r in range(16):
        k.e(f"v_add_f32 v{T+r}, 1.0, v{T+r}")
    for r in range(16):
        k.e(f"v_rcp_f32 v{T+r}, v{T+r}")
    k.e("s_nop 0")
    for r in range(0, 16, 2):
        k.e(f"v_pk_mul_f32 v[{Y+r}:{Y+r+1}], v[{Y+r}:{Y+r+1}], v[{T+r}:{T+r+1}]")
    for r in range(0, 16, 2):
        k.e(f"v_cvt_pk_bf16_f32 v{52 + r//2}, v{Y+r}, v{Y+r+1}")
    k(f"""
    s_and_b32 s12, s{S_W}, 1
    s_lshl_b32 s13, s{S_NT}, 1
    s_add_u32 s12, s12, s13
    s_mul_i32 s12, s12, 112
    s_lshl_b32 s13, s{S_MT}, 2
    s_add_u32 s12, s12, s13
    s_lshr_b32 s13, s{S_W}, 1
    s_lshl_b32 s13, s13, 1
    s_add_u32 s12, s12, s13
    s_lshl_b32 s12, s12, 10
    s_add_u32 s12, s12, {UF_OFF}
    buffer_store_dwordx4 v[52:55], v11, s[{SRD_WS}:{SRD_WS+3}], s12 offen sc1
    buffer_store_dwordx4 v[56:59], v11, s[{SRD_WS}:{SRD_WS+3}], s12 offen offset:1024 sc1
    """)

G2_PF = 10
def g2_setup(k, vm):
    RS, NKS, NKST = 4096, 28, 112
    PF, NS, NB = G2_PF, G2_PF + 2, G2_PF + 1
    k(f"""
    s_load_dwordx2 s[8:9], s[0:1], {KA_B2}
    s_load_dwordx2 s[12:13], s[0:1], {KA_X}
    s_load_dwordx2 s[14:15], s[0:1], {KA_OUT}
    s_load_dwordx2 s[48:49], s[0:1], {KA_WS}
    v_lshrrev_b32 v3, 3, v0
    v_and_b32 v4, 7, v0
    v_lshrrev_b32 v5, 1, v3
    v_and_b32 v5, 1, v5
    v_lshlrev_b32 v5, 2, v5
    v_xor_b32 v4, v4, v5
    v_lshlrev_b32 v3, 12, v3
    v_lshl_add_u32 v10, v4, 4, v3       ; voffA
    v_lshlrev_b32 v11, 4, v0
    v_lshrrev_b32 v3, 5, v0             ; hf
    v_bfe_u32 v4, v0, 4, 1
    v_bfe_u32 v5, v0, 2, 2
    v_and_b32 v6, 3, v0
    v_lshlrev_b32 v7, 2, v3
    v_add_u32 v7, v7, v5
    v_lshlrev_b32 v7, 7, v7
    v_lshl_add_u32 v7, v4, 5, v7
    v_lshl_add_u32 v7, v6, 3, v7
    s_mul_i32 s46, s{S_W}, {NS*2048}
    v_add_u32 v7, s46, v7
    v_lshrrev_b32 v8, 1, v5
    v_lshlrev_b32 v9, 6, v8
    v_add_u32 v12, v7, v9
    v_xor_b32 v9, 64, v9
    v_add_u32 v13, v7, v9
    s_mul_i32 s43, s{S_W}, {NKS*16*RS}
    s_lshl_b32 s47, s{S_MT2}, 7
    s_add_u32 s43, s43, s47
    s_add_u32 s47, s43, {8*RS-1024}
    s_lshl_b32 s44, s{S_NT2}, 1
    s_mul_i32 s44, s44, {NKST}
    s_mul_i32 s45, s{S_W}, {NKS}
    s_add_u32 s44, s44, s45
    s_lshl_b32 s44, s44, 10
    s_add_u32 s44, s44, {UF_OFF}
    s_add_u32 s45, s44, {NKST*1024}
    v_and_b32 v14, 31, v0
    s_lshr_b32 s54, s{S_W}, 1
    s_lshl_b32 s54, s54, 5
    v_add_u32 v14, s54, v14             ; row
    v_lshlrev_b32 v15, 1, v14           ; b2 offset
    v_lshlrev_b32 v2, 10, v14
    v_lshl_add_u32 v2, v3, 4, v2
    s_and_b32 s54, s{S_W}, 1
    s_lshl_b32 s54, s54, 5
    v_add_u32 v2, s54, v2
    """)
    for ks in range(PF):
        g2_issue(k, vm, ks)
    k("s_waitcnt lgkmcnt(0)")
    srd(k, 16, 8, 9, 2048 * 2)
    srd(k, 20, 12, 13, 2097152)
    srd(k, 28, 14, 15, 2097152)
    srd_off(k, 56, 48, 49, SLAB_OFF, 16 << 20)
    k(f"""
    s_lshl_b32 s54, s{S_MT2}, 16
    s_lshl_b32 s55, s{S_NT2}, 7
    s_add_u32 s54, s54, s55
    s_lshl_b32 s55, s{S_MT2}, 7         ; b2 base
    s_lshl_b32 s53, s{S_MT2}, 16
    s_lshr_b32 s52, s{S_NT2}, 1
    s_lshl_b32 s52, s52, 14
    s_add_u32 s53, s53, s52
    s_and_b32 s52, s{S_NT2}, 1
    s_lshl_b32 s52, s52, 13
    s_add_u32 s53, s53, s52
    s_lshl_b32 s52, s{S_W}, 10
    s_add_u32 s53, s53, s52
    """)
    k.e("buffer_load_ushort v9, v15, s[16:19], s55 offen"); vm.issue(("E", 0))
    k.e(f"buffer_load_dwordx4 v[248:251], v2, s[20:23], s54 offen"); vm.issue(("E", 0))
    k.e(f"buffer_load_dwordx4 v[252:255], v2, s[20:23], s54 offen offset:64"); vm.issue(("E", 0))

def g2_issue(k, vm, ks):
    RS = 4096
    NS, NB = G2_PF + 2, G2_PF + 1
    slot = ks % NS
    k.e(f"s_add_u32 m0, s46, {slot*2048}")
    bs = 144 + (ks % NB) * 8
    k.e(f"buffer_load_dwordx4 v[{bs}:{bs+3}], v11, s[{SRD_WS}:{SRD_WS+3}], s44 offen sc1"); vm.issue(("B", ks))
    k.e(f"buffer_load_dwordx4 v10, s[{SRD_WQ}:{SRD_WQ+3}], s43 offen lds"); vm.issue(("A", ks))
    k.e(f"buffer_load_dwordx4 v10, s[{SRD_WQ}:{SRD_WQ+3}], s47 offen offset:1024 lds"); vm.issue(("A", ks))
    k.e(f"buffer_load_dwordx4 v[{bs+4}:{bs+7}], v11, s[{SRD_WS}:{SRD_WS+3}], s45 offen sc1"); vm.issue(("B", ks))
    k.e(f"s_add_u32 s43, s43, {16*RS}")
    k.e(f"s_add_u32 s47, s47, {16*RS}")
    k.e(f"s_add_u32 s44, s44, 1024")
    k.e(f"s_add_u32 s45, s45, 1024")

def g2_main(k, vm, stamp, POLL_KS=10, SIG_KS=5):
    NKS = 28
    PF, NS, NB = G2_PF, G2_PF + 2, G2_PF + 1
    ACC, AF, BF = 64, 128, 144
    SL = 0
    SUM = 232
    def tr(ks):
        slot = ks % NS
        out = []
        for mb in range(2):
            for bp in range(2):
                d = AF + (ks & 1) * 8 + mb * 4 + bp * 2
                out.append(f"ds_read_b64_tr_b16 v[{d}:{d+1}], v{12+mb} offset:{slot*2048 + bp*1024}")
        return out
    n = vm.need(lambda t: t == ("A", 0))
    k.e(f"s_waitcnt vmcnt({n})")
    for ins in tr(0): k.e(ins)
    si = 0
    for ks in range(NKS):
        n = vm.need(lambda t: (t[0] == "A" and t[1] <= ks + 1) or (t[0] == "B" and t[1] <= ks))
        k.e("s_waitcnt lgkmcnt(0)" if n is None else f"s_waitcnt vmcnt({n}) lgkmcnt(0)")
        bs = BF + (ks % NB) * 8
        fill = tr(ks + 1) if ks + 1 < NKS else []
        mf = []
        for mb in range(2):
            for nb in range(2):
                a = AF + (ks & 1) * 8 + mb * 4
                b = bs + nb * 4
                d = ACC + (mb * 2 + nb) * 16
                c = "0" if ks == 0 else f"v[{d}:{d+15}]"
                mf.append(f"v_mfma_f32_32x32x16_bf16 v[{d}:{d+15}], v[{b}:{b+3}], v[{a}:{a+3}], {c}")
        k.e(mf[0])
        for ins in fill[:2]: k.e(ins)
        k.e(mf[1])
        for ins in fill[2:]: k.e(ins)
        k.e(mf[2])
        if ks + PF < NKS:
            g2_issue(k, vm, ks + PF)
        if ks == SIG_KS:
            n = vm.need(lambda t: t[0] == "ST")
            if n is not None: k.e(f"s_waitcnt vmcnt({n})")
            k.e("s_barrier")
            k.e(f"s_lshl_b32 s52, s{S_RB}, 8")
            k.e(f"s_add_u32 s52, s52, {CNT_OFF}")
            signal(k, "slab", 52)
        if ks == POLL_KS:
            k.e(f"s_lshl_b32 s52, s{S_MT2}, 8")
            k.e(f"s_add_u32 s52, s52, {CNT_OFF}")
            k.e(f"s_cmp_lg_u32 s{S_W}, 0")
            k.e("s_cbranch_scc1 L_slab_nopoll")
            poll(k, "slab", 52, 8)
            k.lab("L_slab_nopoll")
            k.e("s_barrier")
        if ks >= POLL_KS and si < 16:
            for rep in range(1 if ks < 26 else 2):
                if si < 16:
                    g, p = si >> 1, si & 1
                    k.e(f"s_add_u32 s52, s53, {g*2097152 + p*4096}")
                    k.e(f"buffer_load_dwordx4 a[{si*4}:{si*4+3}], v11, s[56:59], s52 offen sc1"); vm.issue(("S", si))
                    si += 1
        k.e(mf[3])
    assert si == 16
    stamp()
    PS = 64 * 272
    k(f"""
    v_and_b32 v3, 31, v0
    s_movk_i32 s52, 272
    v_mul_lo_u32 v3, v3, s52
    v_lshrrev_b32 v4, 5, v0
    v_lshl_add_u32 v3, v4, 4, v3
    s_mul_i32 s55, s{S_W}, {PS}
    v_add_u32 v3, s55, v3
    v_mul_lo_u32 v8, v14, s52
    v_lshl_add_u32 v8, v4, 5, v8
    s_and_b32 s52, s{S_W}, 1
    s_lshl_b32 s52, s52, 6
    v_add_u32 v8, s52, v8
    s_barrier
    """)
    for mb in range(2):
        for nb in range(2):
            for b in range(4):
                r = ACC + (mb * 2 + nb) * 16 + b * 4
                k.e(f"ds_write_b128 v3, v[{r}:{r+3}] offset:{mb*32*272 + nb*128 + b*32}")
    k(f"""
    s_waitcnt lgkmcnt(0)
    s_barrier
    """)
    for p in range(2):
        for src in range(4):
            r = ACC + p * 32 + src * 8
            k.e(f"ds_read_b128 v[{r}:{r+3}], v8 offset:{src*PS + p*128}")
            k.e(f"ds_read_b128 v[{r+4}:{r+7}], v8 offset:{src*PS + p*128 + 16}")
    for i in range(16):
        g, p = i >> 1, i & 1
        n = vm.need(lambda t: t[0] == "S" and t[1] <= i)
        if n is not None: k.e(f"s_waitcnt vmcnt({n})")
        for j in range(4):
            k.e(f"v_accvgpr_read_b32 v{20+j}, a{i*4+j}")
        for j in range(4):
            if g == 0:
                k.e(f"v_lshlrev_b32 v{SUM+p*8+2*j}, 16, v{20+j}")
                k.e(f"v_and_b32 v{SUM+p*8+2*j+1}, 0xffff0000, v{20+j}")
            else:
                k.e(f"v_lshlrev_b32 v{24+2*j}, 16, v{20+j}")
                k.e(f"v_and_b32 v{25+2*j}, 0xffff0000, v{20+j}")
        if g > 0:
            for j in range(4):
                k.e(f"v_pk_add_f32 v[{SUM+p*8+2*j}:{SUM+p*8+2*j+1}], v[{SUM+p*8+2*j}:{SUM+p*8+2*j+1}], v[{24+2*j}:{25+2*j}]")
    for p in range(2):
        for j in range(4):
            k.e(f"v_lshlrev_b32 v{128+p*8+2*j}, 16, v{248+p*4+j}")
            k.e(f"v_and_b32 v{129+p*8+2*j}, 0xffff0000, v{248+p*4+j}")
    k.e("v_lshlrev_b32 v18, 16, v9")
    k.e("v_mov_b32 v19, v18")
    k.e(f"s_mov_b32 s48, {f2h(-LOG2E)}")
    k.e(f"s_mov_b32 s49, {f2h(-LOG2E)}")
    k.e("s_waitcnt lgkmcnt(0)")
    for p in range(2):
        Y = ACC + p * 32
        for i in range(0, 8, 2):
            k.e(f"v_pk_add_f32 v[{Y+i}:{Y+i+1}], v[{Y+i}:{Y+i+1}], v[{Y+8+i}:{Y+9+i}]")
            k.e(f"v_pk_add_f32 v[{Y+16+i}:{Y+17+i}], v[{Y+16+i}:{Y+17+i}], v[{Y+24+i}:{Y+25+i}]")
        for i in range(0, 8, 2):
            k.e(f"v_pk_add_f32 v[{Y+i}:{Y+i+1}], v[{Y+i}:{Y+i+1}], v[{Y+16+i}:{Y+17+i}]")
        for i in range(0, 8, 2):
            k.e(f"v_pk_add_f32 v[{Y+i}:{Y+i+1}], v[{Y+i}:{Y+i+1}], v[18:19]")
    for p in range(2):
        Y = ACC + p * 32; T = Y + 8
        for i in range(0, 8, 2):
            k.e(f"v_pk_mul_f32 v[{T+i}:{T+i+1}], v[{Y+i}:{Y+i+1}], s[48:49]")
    for p in range(2):
        T = ACC + p * 32 + 8
        for i in range(8): k.e(f"v_exp_f32 v{T+i}, v{T+i}")
    for p in range(2):
        T = ACC + p * 32 + 8
        for i in range(8): k.e(f"v_add_f32 v{T+i}, 1.0, v{T+i}")
    for p in range(2):
        T = ACC + p * 32 + 8
        for i in range(8): k.e(f"v_rcp_f32 v{T+i}, v{T+i}")
    k.e("s_nop 0")
    for p in range(2):
        Y = ACC + p * 32; T = Y + 8
        for i in range(0, 8, 2):
            k.e(f"v_pk_mul_f32 v[{Y+i}:{Y+i+1}], v[{Y+i}:{Y+i+1}], v[{T+i}:{T+i+1}]")
    for p in range(2):
        Y = ACC + p * 32
        for i in range(0, 8, 2):
            k.e(f"v_pk_fma_f32 v[{Y+i}:{Y+i+1}], v[{Y+i}:{Y+i+1}], v[{SUM+p*8+i}:{SUM+p*8+i+1}], v[{128+p*8+i}:{129+p*8+i}]")
    for p in range(2):
        Y = ACC + p * 32
        for i in range(0, 8, 2):
            k.e(f"v_cvt_pk_bf16_f32 v{40+p*4+i//2}, v{Y+i}, v{Y+i+1}")
        k.e(f"buffer_store_dwordx4 v[{40+p*4}:{43+p*4}], v2, s[28:31], s54 offen offset:{64*p}")

XSRC = 239
UFL = 252

def gen_m8(name="main_kernel", debug=None, prof=False, l2pf=True, kidx=0, sched2=True):
    k = Em()
    M.SCHED2 = sched2
    M.PRE_HOOK = lambda kk: poll8(kk, 'h', HCNT_OFF, 32)
    nst = [0]
    def stamp():
        if prof is not True: return
        i = nst[0]; nst[0] += 1
        k.e(f"s_memtime s[{64+2*i}:{65+2*i}]")
        k.e(f"s_memrealtime s[100:101]")
        k.e("s_waitcnt lgkmcnt(0)")
        k.e(f"s_mov_b32 s{65+2*i}, s100")
    k.L.append(kernel_header(name))
    cscale = math.log2(math.e) / math.sqrt(128.0)
    tl_begin(k, prof)
    k(f"""
    s_cmp_ge_u32 s2, 256
    s_cbranch_scc1 L_at_done
    s_load_dwordx2 s[4:5], s[0:1], {KA_X}
    s_load_dwordx2 s[12:13], s[0:1], {KA_WS}
    s_load_dwordx2 s[14:15], s[0:1], {KA_DBG}
    v_lshrrev_b32 v1, 6, v0
    v_and_b32 v0, 63, v0
    s_and_b32 s{S_XCD}, s2, 7
    v_readfirstlane_b32 s{S_W}, v1
    s_lshr_b32 s{S_IDX}, s2, 3
    s_and_b32 s{S_G}, s{S_XCD}, 3
    s_lshl_b32 s{S_G}, s{S_G}, 1
    s_and_b32 s3, s{S_IDX}, 1
    s_add_u32 s{S_G}, s{S_G}, s3        ; g = 2*(x&3) + (idx&1)
    s_lshr_b32 s{S_RB}, s{S_XCD}, 2
    s_lshl_b32 s{S_RB}, s{S_RB}, 4
    s_lshr_b32 s3, s{S_IDX}, 1
    s_add_u32 s{S_RB}, s{S_RB}, s3
    v_and_b32 v2, 15, v0
    v_lshrrev_b32 v3, 4, v0
    v_lshlrev_b32 v2, 10, v2
    v_lshl_add_u32 v2, v3, 4, v2        ; r*1024 + part*16
    s_lshl_b32 s3, s{S_RB}, 16
    s_lshl_b32 s8, s{S_W}, 14
    s_add_u32 s3, s3, s8                ; (64rb + 16w)*1024
    s_waitcnt lgkmcnt(0)
    s_mov_b32 s16, s4
    s_mov_b32 s17, s5
    s_mov_b32 s18, 2097152
    s_mov_b32 s19, 0x00020000
    """)
    for i in range(16):
        k.e(f"buffer_load_dwordx4 v[{64+4*i}:{67+4*i}], v2, s[16:19], s3 offen offset:{64*i}")
    k(f"""
    s_load_dwordx2 s[16:17], s[0:1], {KA_K}
    s_load_dwordx2 s[20:21], s[0:1], {KA_V}
    s_load_dwordx2 s[8:9], s[0:1], {KA_WQ}
    s_load_dwordx2 s[10:11], s[0:1], {KA_WO}
    s_load_dwordx2 s[56:57], s[0:1], {KA_W1}
    s_load_dwordx2 s[34:35], s[0:1], {KA_B1}
    """)
    stamp()
    srd(k, SRD_WS, 12, 13, 8 << 20)
    srd(k, DBG_SRD, 14, 15, 256)
    k(f"""
    s_cmp_ge_u32 s2, 48
    s_cbranch_scc1 L_nozero
    s_cmp_lg_u32 s{S_W}, 0
    s_cbranch_scc1 L_nozero
    s_lshl_b32 s3, s2, 8
    s_cmp_ge_u32 s2, 40
    s_cselect_b32 s14, {16384 - 40*256}, 0
    s_add_u32 s3, s3, s14
    s_add_u32 s3, s3, {CNT_OFF}
    v_mov_b32 v1, 0
    v_lshlrev_b32 v3, 2, v0
    buffer_store_dword v1, v3, s[{SRD_WS}:{SRD_WS+3}], s3 offen sc1
    s_waitcnt vmcnt(0)
    v_mov_b32 v3, 1
    v_cmp_eq_u32 vcc, 0, v0
    s_and_saveexec_b64 s[14:15], vcc
    buffer_atomic_add v3, v1, s[{DBG_SRD}:{DBG_SRD+3}], 0 offen
    s_mov_b64 exec, s[14:15]
    L_nozero:
    s_lshl_b32 s14, s{S_G}, 19          ; g*524288
    s_lshl_b32 s3, s{S_G}, 21           ; g*2MB
    s_add_u32 s3, s3, {SLAB_OFF}
    s_waitcnt lgkmcnt(0)
    s_add_u32 s16, s16, s14
    s_addc_u32 s17, s17, 0
    s_mov_b32 s18, 524288
    s_mov_b32 s19, 0x00020000
    s_add_u32 s20, s20, s14
    s_addc_u32 s21, s21, 0
    s_mov_b32 s22, 524288
    s_mov_b32 s23, 0x00020000
    s_mov_b32 s58, {2048*3584}
    s_mov_b32 s59, 0x00020000
    """)
    srd(k, SRD_WQ, 8, 9, 4194304)
    srd(k, SRD_WO, 10, 11, 4194304)
    srd_off(k, SRD_SL, 12, 13, "s3", 2097152)
    k(f"""
    s_and_b32 s{S_NT}, s{S_XCD}, 1
    s_lshl_b32 s{S_NT}, s{S_NT}, 2
    s_and_b32 s3, s{S_IDX}, 3
    s_add_u32 s{S_NT}, s{S_NT}, s3
    s_mov_b32 s{S_NT2}, s{S_NT}
    s_lshr_b32 s{S_MT}, s{S_XCD}, 1
    s_lshl_b32 s{S_MT2}, s{S_MT}, 3
    s_mul_i32 s{S_MT}, s{S_MT}, 7
    s_lshr_b32 s3, s{S_IDX}, 2
    s_add_u32 s{S_MT}, s{S_MT}, s3
    s_add_u32 s{S_MT2}, s{S_MT2}, s3
    s_lshl_b32 s14, s{S_W}, 6
    v_add_u32 v1, s14, v0               ; tid
    v_lshrrev_b32 v2, 4, v1
    v_and_b32 v3, 15, v1
    v_lshlrev_b32 v2, 13, v2
    v_lshl_add_u32 v250, v3, 6, v2
    v_lshlrev_b32 v251, 6, v1           ; tid*64
    """)
    k(f"""
    v_lshrrev_b32 v1, 4, v0             ; l>>4 (0..3)
    v_and_b32 v2, 15, v0                ; p = l&15
    ; DV: (l>>4)*256 + ((p ^ ((l>>4)<<2))*16)
    v_lshlrev_b32 v3, 2, v1
    v_xor_b32 v3, v2, v3
    v_lshlrev_b32 v3, 4, v3
    v_lshl_add_u32 v{DV}, v1, 8, v3
    v_lshl_add_u32 v{DW}, v1, 13, v3
    """)
    for i in range(4):
        k(f"""
        v_add_u32 v4, {4*i}, v1
        v_xor_b32 v4, v2, v4
        v_lshlrev_b32 v4, 4, v4
        v_lshl_add_u32 v{DK+i}, v1, 8, v4
        """)
    k(f"""
    v_and_b32 v4, 31, v0
    v_lshrrev_b32 v5, 5, v0             ; hf
    v_xor_b32 v6, v5, v2
    v_lshlrev_b32 v7, 8, v4
    """)
    for t in range(8):
        k.e(f"v_xor_b32 v8, {2*t}, v6")
        k.e(f"v_lshl_add_u32 v{KA+t}, v8, 4, v7")
    k(f"""
    v_bfe_u32 v8, v0, 2, 2              ; r
    v_bfe_u32 v9, v0, 4, 1              ; csub
    v_and_b32 v10, 3, v0                ; c
    v_lshl_add_u32 v11, v5, 2, v8       ; 4hf + r
    v_lshlrev_b32 v11, 8, v11
    v_lshl_add_u32 v11, v9, 5, v11
    v_lshl_add_u32 v12, v10, 3, v11
    """)
    for db in range(4):
        k.e(f"v_xor_b32 v13, {db}, v8")
        k.e(f"v_lshl_add_u32 v13, v13, 6, v12")
        k.e(f"v_add_u32 v{VA+db}, {VRING}, v13")
    k(f"""
    s_and_b32 s14, s{S_W}, 1
    s_lshl_b32 s14, s14, 14
    s_lshr_b32 s15, s{S_W}, 1
    s_mul_i32 s15, s15, {131072-32768}
    s_add_u32 s{S_WRING}, s14, s15
    s_add_u32 s{S_WRING}, s{S_WRING}, 32768
    v_lshl_add_u32 v11, v5, 3, v8
    v_lshlrev_b32 v11, 8, v11
    v_lshl_add_u32 v11, v9, 5, v11
    v_and_b32 v13, 1, v10
    v_lshrrev_b32 v14, 1, v10
    v_lshl_or_b32 v13, v13, 1, v14      ; sigma(c)
    v_lshl_add_u32 v11, v13, 3, v11
    v_add_u32 v11, s{S_WRING}, v11
    """)
    for db in range(4):
        k.e(f"v_xor_b32 v13, {db}, v8")
        k.e(f"v_lshl_add_u32 v{WA+db}, v13, 6, v11")
    k(f"""
    v_lshlrev_b32 v15, 4, v0            ; lane*16
    v_add_u32 v{XA}, {XT}, v15
    s_lshr_b32 s14, s{S_IDX}, 1
    s_lshl_b32 s14, s14, 18             ; 32*8192*j
    s_lshl_b32 s15, s{S_G}, 10
    s_add_u32 s14, s14, s15
    """)
    k(f"""
    s_and_b32 s14, s{S_W}, 1
    s_lshl_b32 s14, s14, 14
    s_lshr_b32 s15, s{S_W}, 1
    s_mul_i32 s15, s15, {131072-32768}
    s_add_u32 s{S_WRING}, s14, s15
    s_add_u32 s{S_WRING}, s{S_WRING}, 32768
    """)
    k(f"""
    s_lshl_b32 s14, s{S_G}, 2
    s_add_u32 s14, s14, s{S_W}
    s_lshl_b32 s{S_WOFF}, s14, 8
    """)
    def wdma(t, srd, RS):
        out = [f"s_add_u32 m0, s{S_WRING}, {(t&3)*4096}"]
        for i in range(4):
            if i == 0:
                out.append("s_nop 0")
                out.append(f"buffer_load_dwordx4 v{DW}, s[{srd}:{srd+3}], s{S_WOFF} offen lds")
            else:
                out.append(f"s_add_u32 s{S_WOFF}, s{S_WOFF}, {4*RS-1024}")
                out.append(f"buffer_load_dwordx4 v{DW}, s[{srd}:{srd+3}], s{S_WOFF} offen offset:{1024*i} lds")
        out.append(f"s_add_u32 s{S_WOFF}, s{S_WOFF}, {4*RS+3072}")
        return out
    k(f"""
    s_lshl_b32 s{S_KOFF}, s{S_W}, 12          ; w*4096
    s_mov_b32 s{S_M0K}, s{S_KOFF}
    s_add_u32 s{S_M0V}, s{S_KOFF}, {VRING}
    s_mov_b32 s{S_VOFF}, s{S_KOFF}
    """)
    def kdma(slot):
        out = [f"s_add_u32 m0, s{S_M0K}, {slot*16384}", "s_nop 0"]
        for i in range(4):
            out.append(f"buffer_load_dwordx4 v{DK+i}, s[{SRD_K}:{SRD_K+3}], s{S_KOFF} offen offset:{1024*i} {POL()} lds")
        out.append(f"s_add_u32 s{S_KOFF}, s{S_KOFF}, 16384")
        return out
    def vdma(slot):
        out = [f"s_add_u32 m0, s{S_M0V}, {slot*16384}", "s_nop 0"]
        for i in range(4):
            out.append(f"buffer_load_dwordx4 v{DV}, s[{SRD_V}:{SRD_V+3}], s{S_VOFF} offen offset:{1024*i} {POL()} lds")
        out.append(f"s_add_u32 s{S_VOFF}, s{S_VOFF}, 16384")
        return out
    for ins in kdma(0) + kdma(1): k.e(ins)
    for t in range(4):
        for ins in wdma(t, SRD_WQ, 8192): k.e(ins)
    k(f"""
    s_lshr_b32 s14, s{S_IDX}, 1
    s_lshl_b32 s14, s14, 18
    s_lshl_b32 s15, s{S_G}, 10
    s_add_u32 s14, s14, s15
    buffer_load_dword v246, v250, s[{SRD_WQ}:{SRD_WQ+3}], s14 offen
    s_add_u32 s14, s14, {16*8192}
    buffer_load_dword v247, v250, s[{SRD_WQ}:{SRD_WQ+3}], s14 offen
    """)
    local_ln(k)
    k.e("s_waitcnt vmcnt(18) lgkmcnt(0)")
    k.e("s_barrier")
    h_read(k)
    stamp()
    late = []
    gen_proj(k, "q", SRD_WQ, 8192, True, True, late)
    stamp()
    k(f"""
    s_waitcnt vmcnt(0) lgkmcnt(0)
    s_barrier
    """)
    for ins in vdma(0) + kdma(2) + vdma(1): k.e(ins)
    k.e(f"s_load_dwordx2 s[8:9], s[0:1], {KA_W2}")
    k(f"""
    s_lshl_b32 s14, s{S_W}, 6
    v_add_u32 v1, s14, v0                       ; tid
    v_lshrrev_b32 v2, 1, v1
    v_and_b32 v3, 1, v1
    v_lshlrev_b32 v4, 12, v2
    v_lshl_add_u32 v253, v3, 6, v4
    s_movk_i32 s14, 3584
    v_mul_lo_u32 v2, v2, s14
    v_lshl_add_u32 v250, v3, 6, v2
    s_waitcnt lgkmcnt(0)
    """)
    srd(k, SRD_WQ, 8, 9, 1792 * 4096)
    k.e(f"s_mov_b32 s14, {f2h(cscale)}")
    k.e(f"s_mov_b32 s15, {f2h(cscale)}")
    k.e("s_nop 7")
    for db in range(4):
        for qb in range(2):
            a = PACC + (db * 2 + qb) * 16
            for r in range(0, 16, 2):
                k.e(f"v_pk_mul_f32 v[{a+r}:{a+r+1}], v[{a+r}:{a+r+1}], s[14:15]")
            for r in range(0, 16, 2):
                q = QF + qb * 32 + (2 * db + (r >> 3)) * 4 + ((r & 7) >> 1)
                k.e(f"v_cvt_pk_bf16_f32 v{q}, v{a+r}, v{a+r+1}")
    h_phase(k)
    g1_setup_v(k)
    k(f"""
    v_mov_b32 v{UFL}, 0
    buffer_load_dword v{UFL}, v{UFL}, s[{DBG_SRD}:{DBG_SRD+3}], 0 offen sc1
    """)
    for t in range(4):
        for ins in k_read(0, t, t): k.e(ins)
    for t in range(8):
        k.e(f"s_waitcnt lgkmcnt({min(3, 7-t)})")
        for qb in range(2):
            d = Sbuf(0, qb)
            k.e(mfma(d, KF + (t & 3) * 4, QF + qb * 32 + t * 4, "0" if t == 0 else d))
        if t + 4 < 8:
            for ins in k_read(0, t + 4, t + 4): k.e(ins)
    for i in range(128):
        k.e(f"v_accvgpr_write_b32 a{OA+i}, 0")
    k.e(f"v_mov_b32 v{LL}, 0")
    k.e(f"v_mov_b32 v{LL+1}, 0")
    k.e(f"v_mov_b32 v{LS+2}, 0")
    k.e(f"v_mov_b32 v{LS+3}, 0")
    k.e(f"s_mov_b32 s{S_THR}, {f2h(2.0**THR_LOG2)}")
    for qb in range(2):
        S = Sbuf(0, qb)
        t, t2 = T0, T0 + 1
        k.e(f"v_max3_f32 v{t}, v{S}, v{S+1}, v{S+2}")
        for r in range(3, 15, 2):
            k.e(f"v_max3_f32 v{t}, v{t}, v{S+r}, v{S+r+1}")
        k.e(f"v_max_f32 v{t}, v{t}, v{S+15}")
        k.e(f"v_mov_b32 v{t2}, v{t}")
        k.e("s_nop 1")
        k.e(f"v_permlane32_swap_b32 v{t2}, v{t}")
        k.e(f"v_max_f32 v{t}, v{t}, v{t2}")
        for r in range(16):
            k.e(f"v_sub_f32 v{S+r}, v{S+r}, v{t}")
            k.e(f"v_sub_f32 v{NEGM+16*qb+r}, 0, v{t}")
    if M.SCHED2:
        k.e(f"v_exp_f32 v{ET}, v{Sbuf(0,0)}")
        k.e(f"v_exp_f32 v{ET+1}, v{Sbuf(0,0)+1}")
    k.e("s_waitcnt vmcnt(11)")
    k.e("s_barrier")
    stamp()
    for ins in k_read(1, 0, 0) + k_read(1, 1, 1): k.e(ins)
    rare_sites = []
    def dma_plan(lst):
        return {8: [lst[0]], 11: [lst[2]], 15: [lst[3]], 19: [lst[4]], 23: [lst[5]], 27: [lst[6]]}
    def step(u, rid, **kw):
        S = dict(do_qk=True, do_pv=True, qk_next=True, pv_next=True, dma=None, pre=None, prev7=3)
        S.update(kw)
        lk = Look(u, S['do_qk'], S['do_pv'], S['qk_next'], S['pv_next'])
        lk.prev7 = S['prev7']
        gen_step(k, u, S['do_qk'], S['do_pv'], True, lk, S['dma'], S['pre'], rid)
        rare_sites.append((rid, u & 1))
    d0 = dma_plan(kdma(3))
    d0[28] = [f"s_lshr_b32 s14, s{S_IDX}, 1", f"s_lshl_b32 s14, s14, 15", f"s_lshl_b32 s15, s{S_G}, 19", "s_add_u32 s14, s14, s15",
              f"buffer_load_dword v248, v251, s[{SRD_WO}:{SRD_WO+3}], s14 offen"]
    d0[29] = ["s_add_u32 s14, s14, 16384", f"buffer_load_dword v249, v251, s[{SRD_WO}:{SRD_WO+3}], s14 offen"]
    step(0, "s0", do_pv=False, dma=d0, prev7=1)
    k(f"""
    s_waitcnt vmcnt(6)
    s_barrier
    s_cmp_lg_u32 s{S_W}, 0
    s_cbranch_scc1 L_hsig_done
    v_readfirstlane_b32 s14, v{UFL}
    s_cmp_ge_u32 s14, 48
    s_cbranch_scc1 L_rdy_ok
    s_mov_b32 s{S_FLG}, {POLL_MAX}
    v_mov_b32 v1, 0
    L_rdy_poll:
    buffer_load_dword v4, v1, s[{DBG_SRD}:{DBG_SRD+3}], 0 offen sc1
    s_waitcnt vmcnt(0)
    v_readfirstlane_b32 s14, v4
    s_cmp_ge_u32 s14, 48
    s_cbranch_scc1 L_rdy_ok
    s_sleep 8
    s_sub_u32 s{S_FLG}, s{S_FLG}, 1
    s_cmp_lg_u32 s{S_FLG}, 0
    s_cbranch_scc1 L_rdy_poll
    L_rdy_ok:
    s_lshl_b32 s14, s{S_XCD}, 8
    s_add_u32 s14, s14, {HCNT_OFF}
    v_mov_b32 v1, 0
    v_mov_b32 v4, 1
    v_cmp_eq_u32 vcc, 0, v0
    s_and_saveexec_b64 s[12:13], vcc
    buffer_atomic_add v4, v1, s[{SRD_WS}:{SRD_WS+3}], s14 offen
    s_mov_b64 exec, s[12:13]
    L_hsig_done:
    """)
    k.e(f"s_mov_b32 s{S_CNT}, 7")
    k.lab("L_main")
    for uu in range(1, 9):
        j = uu >> 1
        pre = None
        if uu & 1 == 0:
            pre = ["s_waitcnt vmcnt(8)", "s_barrier"]
            dm = dma_plan(kdma((j + 3) & 3))
        else:
            dm = dma_plan(vdma((j + 2) & 3))
        step(uu, f"m{uu}", dma=dm, pre=pre)
    k.e(f"s_sub_u32 s{S_CNT}, s{S_CNT}, 1")
    k.e(f"s_cmp_lg_u32 s{S_CNT}, 0")
    k.e(f"s_cbranch_scc1 L_main")
    def ta(i):
        return [f"s_and_b32 s14, s{S_IDX}, 3", f"s_mul_i32 s14, s14, {512*3584}", f"s_lshl_b32 s15, s{S_MT}, 7",
                f"s_add_u32 s14, s14, s15", f"s_add_u32 s14, s14, {i*128*3584}",
                f"buffer_load_dword v{246+(i&1)}, v250, s[{SRD_W1}:{SRD_W1+3}], s14 offen"]
    def tb(i):
        return [f"s_lshl_b32 s14, s{S_NT}, 18", f"s_lshr_b32 s15, s{S_IDX}, 2", f"s_and_b32 s15, s15, 3", f"s_lshl_b32 s15, s15, 16",
                f"s_add_u32 s14, s14, s15", f"s_add_u32 s14, s14, {HF_OFF + i*16384}",
                f"buffer_load_dword v{248+(i&1)}, v251, s[{SRD_WS}:{SRD_WS+3}], s14 offen sc1"]
    def merge(d, g, lst):
        d = dict(d) if d else {}
        d[g] = d.get(g, []) + lst
        return d
    k(f"""
    v_and_b32 v{UFL}, 7, v0
    v_lshlrev_b32 v{UFL}, 8, v{UFL}
    s_mov_b32 s14, {HCNT_OFF}
    buffer_load_dword v{UFL}, v{UFL}, s[{SRD_WS}:{SRD_WS+3}], s14 offen sc1
    """)
    step(57, "t57", dma=merge(dma_plan(vdma((28 + 2) & 3)), 29, ta(0)))
    step(58, "t58", pre=["s_waitcnt vmcnt(5)", "s_barrier", f"v_cmp_le_u32 vcc, 32, v{UFL}", "s_cmp_eq_u64 vcc, -1", "s_cbranch_scc1 L_hok", "UPOLL", "L_hok:"],
         dma=merge(merge(merge(merge(None, 3, ta(1)), 11, tb(0)), 19, ta(2)), 27, tb(1)))
    step(59, "t59", dma=merge(merge(merge(dma_plan(vdma((29 + 2) & 3)), 28, ta(3)), 29, tb(2)), 30, tb(3)))
    vmg = Ctr(63)
    def spread(lst, gaps_):
        d = {}
        per = (len(lst) + len(gaps_) - 1) // len(gaps_)
        for j, g in enumerate(gaps_):
            d[g] = lst[j * per:(j + 1) * per]
        return d
    ss = g1_setup_s()
    step(60, "t60", pre=["s_waitcnt vmcnt(11)", "s_barrier"])
    step(61, "t61", dma={5: ss[0], 13: ss[1], 21: ss[2], 29: ss[3]})
    la = []
    for ks in range(G1PF): la += g1_A(ks, vmg)
    step(62, "t62", pre=["s_waitcnt vmcnt(3)", "s_barrier"], qk_next=False, dma=spread(la, [1, 3, 5, 7, 9, 11, 13, 15, 17, 19, 21, 23, 25, 27]))
    lb = []
    for ks in range(G1PF): lb += g1_B(ks, vmg)
    lb += g1_bias_list(vmg)
    step(63, "t63", do_qk=False, qk_next=False, prev7=2, dma=spread(lb, [0, 1, 4, 5, 8, 9, 12, 13, 16, 17, 20, 21, 24, 25, 28, 29]))
    p = 63 & 1
    k.e(f"v_add_f32 v{LL}, v{LL}, v{LS+2*p}")
    k.e(f"v_add_f32 v{LL+1}, v{LL+1}, v{LS+2*p+1}")
    for i in range(8):
        nxt = v_read(63, i + 2, i + 2) if i + 2 < 8 else []
        prevn = 2 if (i == 0 or i + 1 < 8) else 0
        k.e(f"s_waitcnt lgkmcnt({prevn})")
        db, ks = i >> 1, i & 1
        for qb in range(2):
            d = OA + (db * 2 + qb) * 16
            k.e(mfma(d, VF + (i & 3) * 4, Pbuf(p, qb, ks), d, dfile='a'))
            if qb == 0:
                for ins in nxt: k.e(ins)
    k.e("s_waitcnt lgkmcnt(0)")
    stamp()
    k(f"""
    s_waitcnt lgkmcnt(0)
    s_barrier
    """)
    def wo_ring():
        k(f"""
        s_lshl_b32 s{S_WRING}, s{S_W}, 14
        v_lshrrev_b32 v1, 4, v0
        v_mul_u32_u24 v1, {1024-256}, v1
        v_add_u32 v{DW}, v{DV}, v1
        s_lshl_b32 s{S_WOFF}, s{S_G}, 19
        s_lshl_b32 s14, s{S_W}, 8
        s_add_u32 s{S_WOFF}, s{S_WOFF}, s14
        """)
        for t in range(4):
            for ins in wdma(t, SRD_WO, 1024): k.e(ins)
    l_final(k)
    k.e(f"s_cmp_ge_u32 s{S_IDX}, 28")
    k.e("s_cbranch_scc1 L_no_g1")
    g1_phase(k, vmg, stamp, wo_ring)
    g1_finish(k)
    k.e("s_branch L_g1_done")
    k.lab("L_no_g1")
    k.e("s_waitcnt vmcnt(0)")
    k.e("s_barrier")
    wo_ring()
    for g in onorm_groups():
        for ins in g: k.e(ins)
    nst[0] -= 2
    stamp(); stamp()
    k.lab("L_g1_done")
    k.e(f"s_sub_u32 s14, s{S_WRING}, {VRING}")
    for db in range(4):
        k.e(f"v_add_u32 v{WA+db}, s14, v{VA+db}")
    k("""
    s_waitcnt vmcnt(0) lgkmcnt(0)
    s_barrier
    """)
    k.e(f"s_cmp_ge_u32 s{S_IDX}, 28")
    k.e("s_cbranch_scc1 L_no_usig")
    k.e(f"s_lshl_b32 s14, s{S_NT}, 8")
    k.e(f"s_add_u32 s14, s14, {UCNT_OFF}")
    k.e(f"s_mov_b32 s15, s{S_WRING}")
    signal(k, "u", 14)
    k.e(f"s_mov_b32 s{S_WRING}, s15")
    k.lab("L_no_usig")
    stamp()
    def tw(i):
        return [f"s_and_b32 s14, s{S_IDX}, 3", f"s_mul_i32 s14, s14, {448*4096}", f"s_lshl_b32 s15, s{S_MT2}, 7",
                f"s_add_u32 s14, s14, s15", f"s_add_u32 s14, s14, {i*128*4096}",
                f"buffer_load_dword v{246+(i&1)}, v253, s[{SRD_WQ}:{SRD_WQ+3}], s14 offen"]
    ufl = [f"s_lshl_b32 s14, s{S_NT2}, 8", f"s_add_u32 s14, s14, {UCNT_OFF}", f"v_mov_b32 v{UFL}, 0",
           f"buffer_load_dword v{UFL}, v{UFL}, s[{SRD_DBG}:{SRD_DBG+3}], s14 offen sc1"]
    gen_proj(k, "o", SRD_WO, 1024, False, True, ufl + tw(0) + tw(1) + tw(2) + tw(3))
    stamp()
    vm1 = Ctr(63)
    k.e("s_waitcnt vmcnt(4) lgkmcnt(0)")
    k.e(f"v_readfirstlane_b32 s14, v{UFL}")
    k.e("s_cmp_ge_u32 s14, 28")
    k.e("s_cbranch_scc1 L_u_nopoll")
    k.e(f"s_cmp_lg_u32 s{S_W}, 0")
    k.e("s_cbranch_scc1 L_u_nopoll")
    k.e(f"s_lshl_b32 s14, s{S_NT2}, 8")
    k.e(f"s_add_u32 s14, s14, {UCNT_OFF}")
    poll(k, "u", 14, 28)
    k.lab("L_u_nopoll")
    k.e("s_barrier")
    g2_setup(k, vm1)
    k(f"""
    v_lshlrev_b32 v1, 4, v0
    s_lshl_b32 s14, s{S_RB}, 16          ; rb*65536
    s_lshl_b32 s15, s{S_W}, 14           ; w*16384
    s_add_u32 s14, s14, s15
    """)
    for cb in range(4):
        for qb in range(2):
            a = PACC + (cb * 2 + qb) * 16
            o = a
            for r in range(0, 16, 2):
                k.e(f"v_cvt_pk_bf16_f32 v{o+r//2}, v{a+r}, v{a+r+1}")
            k.e("s_nop 1")
            for pr in range(2):
                k.e(f"v_permlane32_swap_b32 v{o+4*pr}, v{o+4*pr+2}")
                k.e(f"v_permlane32_swap_b32 v{o+4*pr+1}, v{o+4*pr+3}")
            for pr in range(2):
                idx = cb * 4 + qb * 2 + pr
                k.e(f"buffer_store_dwordx4 v[{o+4*pr}:{o+4*pr+3}], v1, s[{SRD_SL}:{SRD_SL+3}], s14 offen offset:{(idx&3)*1024} sc1")
                vm1.issue(("ST", 0))
                if (idx & 3) == 3: k.e("s_add_u32 s14, s14, 4096")
    stamp()
    g2_main(k, vm1, stamp)
    if prof == 'tl':
        tl_end(k, prof, kidx)
    if prof is True:
        k.e("s_waitcnt vmcnt(0)")
        stamp()
        k.e(f"s_load_dwordx2 s[12:13], s[0:1], {KA_WS}")
        k.e("s_waitcnt lgkmcnt(0)")
        srd_off(k, 4, 12, 13, 64 << 20, 1 << 20)
        k.e(f"s_lshl_b32 s14, s2, 2")
        k.e(f"s_add_u32 s14, s14, s{S_W}")
        k.e(f"s_lshl_b32 s14, s14, 7")
        for i in range(nst[0]):
            k.e(f"v_mov_b32 v2, s{64+2*i}")
            k.e(f"v_mov_b32 v3, s{65+2*i}")
            k.e(f"v_mov_b32 v1, {8*i}")
            k.e(f"buffer_store_dwordx2 v[2:3], v1, s[4:7], s14 offen")
        tl_end(k, prof, kidx)
    k.lab("L_at_done")
    k.e("s_endpgm")
    for rid, p in rare_sites:
        k.lab(f"L_rare_{rid}")
        k.e(f"s_call_b64 s[{S_RET}:{S_RET+1}], L_raresub_{p}")
        k.e(f"s_branch L_back_{rid}")
    gen_rare(k, 0)
    gen_rare(k, 1)
    return k.text(), kernel_desc(name, 512, 102, 256), f"; @launch kernel={name} grid=(256,1,1) block=(256,1,1) lds=163840"
```

```python
import sys
sys.path.insert(0, 'gen')
from common import *
from k_ln import gen_ln
from k_g import gen_g
from k_attn import gen_attn
from k_main import gen_main
from k_fin import gen_fin
from k_m2 import gen_m2
from k_m3 import gen_m3
from k_m4 import gen_m4
from k_m5 import gen_m5
from k_m6 import gen_m6
from k_m7 import gen_m7
from k_m8 import gen_m8

HEADER = open('recurrent_scan__gqa_block_cached__mixer_token_mlp__prompt.s.ref').read().split("; Override launch")[0]

def build(kernels, path):
    launches = [x[2] for x in kernels]
    s = HEADER + "\n".join(launches) + "\n"
    s += '.amdgcn_target "amdgcn-amd-amdhsa--gfx950"\n.text\n'
    for t, d, l in kernels:
        s += t + "\n"
    s += '.section .rodata,"a"\n'
    for t, d, l in kernels:
        s += ".p2align 6\n" + d
    open(path, "w").write(s)

OFFICIAL = "recurrent_scan__gqa_block_cached__mixer_token_mlp__prompt_kernel"
def build_single(kern, path):
    t, d, l = kern
    t = t.replace("main_kernel", OFFICIAL); d = d.replace("main_kernel", OFFICIAL)
    geo = l.split("main_kernel ")[1]
    s = HEADER + "; @launch " + geo + "\n"
    s += '.amdgcn_target "amdgcn-amd-amdhsa--gfx950"\n.text\n' + t + "\n"
    s += '.section .rodata,"a"\n.p2align 6\n' + d
    open(path, "w").write(s)

if __name__ == "__main__":
    dbg = sys.argv[2] if len(sys.argv) > 2 else None
    out = sys.argv[1] if len(sys.argv) > 1 else 'recurrent_scan__gqa_block_cached__mixer_token_mlp__prompt.s'
    pf = (dbg=='prof')
    if dbg == 'single' or out.startswith('cdna_kernels'):
        build_single(gen_m8(), out)
    else:
        build([gen_m8(debug=(None if pf else dbg), prof=pf)], out)
    print("wrote", out)
```
